```python
import torch

def _softmax(x, axis=-1):
    return torch.softmax(x, dim=axis)
def _gelu(x):
    return torch.nn.functional.gelu(x, approximate="tanh")
def _silu(x):
    return torch.nn.functional.silu(x)
def _sigmoid(x):
    return torch.sigmoid(x)
def _layernorm(x, axis=-1, eps=1e-5):
    m = x.mean(dim=axis, keepdim=True)
    v = x.var(dim=axis, keepdim=True, unbiased=False)
    return (x - m) / torch.sqrt(v + eps)
def _scatter_add(tgt, idx, src, axis=0):
    return tgt.clone().index_add_(axis, idx, src)
def _segment_sum(src, seg, n):
    out = torch.zeros((n,) + src.shape[1:], dtype=src.dtype)
    return out.index_add_(0, seg, src)
def _pad(x, pw):
    flat = tuple(v for pair in reversed(pw) for v in pair)
    return torch.nn.functional.pad(x, flat)

kernel_name = 'standalone__mha_softmax__decode'

def setup_inputs():

    _w = (lambda a: (lambda t: t.to(torch.bfloat16) if t.is_floating_point() else t)(torch.as_tensor(a)))
    B, H, Sq, Sk, D = 1, 32, 1, 32768, 192
    return {
        "q": _w((lambda *s: torch.randn(*s, dtype=torch.bfloat16) * 0.8)(B, H, Sq, D)),
        "k": _w((lambda *s: torch.randn(*s, dtype=torch.bfloat16) * 0.8)(B, H, Sk, D)),
        "v": _w((lambda *s: torch.randn(*s, dtype=torch.bfloat16) * 0.05)(B, H, Sk, D)),
    }

def reference(q, k, v):
    scale = q.shape[-1] ** -0.5
    scores = torch.einsum("bhqd,bhkd->bhqk", q, k) * scale
    p = _softmax(scores, axis=-1)
    return torch.einsum("bhqk,bhkd->bhqd", p, v)
```

```python
import math, struct, sys, argparse

H = 32; SK = 32768; D = 192
ROWB = D * 2
HEADB = SK * ROWB

def f32hex(x):
    return "0x%08x" % struct.unpack("<I", struct.pack("<f", x))[0]

HEADER = """; Kernarg layout for this problem (48 bytes, ptrs only, base s[0:1]):
"""

def gen(NW=8, R=4, NBUF=2, NSPLIT=8, POL="nt", MAP="A", ILV=0, STAMP=0, CSTRIDE=4, KNAME="standalone__mha_softmax__decode_kernel"):
    o = []
    e = o.append
    NWG = H * NSPLIT
    TILEK = 8 * R
    TILEB = TILEK * ROWB
    WGTB = NW * TILEB
    CHUNKB = HEADB // NSPLIT
    NT = CHUNKB // WGTB
    assert NT * WGTB == CHUNKB
    assert NT % NBUF == 0
    LOGS = int(math.log2(NSPLIT)); assert 1 << LOGS == NSPLIT
    PSTR = 1024
    LDS = NW * PSTR
    pol = (" " + POL) if POL else ""
    C = (D ** -0.5) * math.log2(math.e)

    vLANE = 0; vOFF = 1; vM = 2; vMC = 3; vL = 4; vA = 5
    vS = 6
    vT = vS + R + (R & 1)
    if vT & 1: vT += 1
    vQ = vT + 8
    vO = vQ + 12
    vK = vO + 24
    vK = (vK + 3) // 4 * 4
    vV = vK + NBUF * 12 * R
    vEND = vV + NBUF * 12 * R
    need_ep = max(NW, NSPLIT) * 6 + 16
    assert vEND - vK >= need_ep, (vEND - vK, need_ep)
    NVGPR = vEND
    sHEAD = 24; sSPL = 25; sWAVE = 26; sMASK = 27; sC = 28; sCNT = 29; sLIN = 30; sTMP = 31
    sKO = 32
    NSO = (R + 1) // 2
    sVO = sKO + NSO
    sT0 = 40
    STEP = WGTB * (NSPLIT if ILV else 1)

    e(HEADER + "; @launch grid=(%d,1,1) block=(%d,1,1) lds=%d" % (NWG, NW * 64, LDS))
    e('.amdgcn_target "amdgcn-amd-amdhsa--gfx950"')
    e(".text")
    e(".globl %s" % KNAME)
    e(".p2align 8")
    e(".type %s,@function" % KNAME)
    e("%s:" % KNAME)
    e("    s_cmp_ge_u32 s2, %d" % NWG)
    e("    s_cbranch_scc1 L_done")
    e("    s_load_dwordx4 s[4:7], s[0:1], 0")
    e("    s_load_dwordx4 s[8:11], s[0:1], 16")
    e("    s_load_dwordx4 s[12:15], s[0:1], 32")
    if STAMP:
        e("    s_memrealtime s[%d:%d]" % (sT0, sT0 + 1))
    if MAP == "A":
        e("    s_mov_b32 s%d, s2" % sLIN)
    else:
        e("    s_and_b32 s%d, s2, 7" % sLIN)
        e("    s_mul_i32 s%d, s%d, %d" % (sLIN, sLIN, NWG // 8))
        e("    s_lshr_b32 s%d, s2, 3" % sTMP)
        e("    s_add_u32 s%d, s%d, s%d" % (sLIN, sLIN, sTMP))
    e("    s_lshr_b32 s%d, s%d, %d" % (sHEAD, sLIN, LOGS))
    e("    s_and_b32 s%d, s%d, %d" % (sSPL, sLIN, NSPLIT - 1))
    e("    v_lshrrev_b32 v%d, 6, v0" % vA)
    e("    v_and_b32 v%d, 63, v0" % vLANE)
    e("    v_readfirstlane_b32 s%d, v%d" % (sWAVE, vA))
    e("    v_lshrrev_b32 v%d, 3, v%d" % (vT, vLANE))
    e("    v_and_b32 v%d, 7, v%d" % (vT + 1, vLANE))
    e("    v_lshlrev_b32 v%d, 4, v%d" % (vT + 1, vT + 1))
    e("    v_mul_u32_u24 v%d, %d, v%d" % (vT, ROWB, vT))
    e("    v_add_u32 v%d, v%d, v%d" % (vOFF, vT, vT + 1))
    if ILV:
        e("    s_mul_i32 s%d, s%d, %d" % (sTMP, sHEAD, HEADB))
        e("    s_mul_i32 s%d, s%d, %d" % (sCNT, sSPL, WGTB))
        e("    s_add_u32 s%d, s%d, s%d" % (sTMP, sTMP, sCNT))
        e("    s_sub_u32 s18, %d, s%d" % (HEADB, sCNT))
    else:
        e("    s_mul_i32 s%d, s%d, %d" % (sTMP, sLIN, CHUNKB))
        e("    s_mov_b32 s18, %d" % CHUNKB)
    e("    s_mov_b32 s22, s18")
    e("    s_mov_b32 s19, 0x00020000")
    e("    s_mov_b32 s23, 0x00020000")
    e("    s_mul_i32 s%d, s%d, %d" % (sKO, sWAVE, TILEB))
    for i in range(1, NSO):
        e("    s_add_u32 s%d, s%d, %d" % (sKO + i, sKO, i * 2 * 8 * ROWB))
    for i in range(NSO):
        e("    s_mov_b32 s%d, s%d" % (sVO + i, sKO + i))
    e("    s_mul_i32 s%d, s%d, %d" % (sCNT, sHEAD, ROWB))
    e("    v_add_u32 v%d, s%d, v%d" % (vT + 1, sCNT, vT + 1))
    e("    s_waitcnt lgkmcnt(0)")
    e("    s_add_u32 s16, s6, s%d" % sTMP)
    e("    s_addc_u32 s17, s7, 0")
    e("    s_add_u32 s20, s8, s%d" % sTMP)
    e("    s_addc_u32 s21, s9, 0")
    e("    s_and_b32 s17, s17, 0xffff")
    e("    s_and_b32 s21, s21, 0xffff")

    def kreg(b, r, j): return vK + (b * R + r) * 12 + j * 4
    def vreg(b, r, j): return vV + (b * R + r) * 12 + j * 4
    def loadK(b, r):
        for j in range(3):
            rr = kreg(b, r, j)
            e("    buffer_load_dwordx4 v[%d:%d], v%d, s[16:19], s%d offen offset:%d%s" %
              (rr, rr + 3, vOFF, sKO + r // 2, (r & 1) * 8 * ROWB + j * 128, pol))
    def loadV(b, r):
        for j in range(3):
            rr = vreg(b, r, j)
            e("    buffer_load_dwordx4 v[%d:%d], v%d, s[20:23], s%d offen offset:%d%s" %
              (rr, rr + 3, vOFF, sVO + r // 2, (r & 1) * 8 * ROWB + j * 128, pol))
    def advK():
        for i in range(NSO): e("    s_add_u32 s%d, s%d, %d" % (sKO + i, sKO + i, STEP))
    def advV():
        for i in range(NSO): e("    s_add_u32 s%d, s%d, %d" % (sVO + i, sVO + i, STEP))

    for r in range(R): loadK(0, r)
    advK()
    for j in range(3):
        e("    global_load_dwordx4 v[%d:%d], v%d, s[4:5] offset:%d" % (vQ + 4 * j, vQ + 4 * j + 3, vT + 1, j * 128))
    for r in range(R): loadV(0, r)
    advV()
    for b in range(1, NBUF):
        for r in range(R): loadK(b, r)
        advK()
        for r in range(R): loadV(b, r)
        advV()
    e("    s_mov_b32 s%d, 0xffff0000" % sMASK)
    e("    s_mov_b32 s%d, %s" % (sC, f32hex(C)))
    e("    s_mov_b32 s%d, %d" % (sCNT, NT // NBUF))
    e("    v_mov_b32 v%d, 0xff800000" % vM)
    e("    v_mov_b32 v%d, 0xff800000" % vMC)
    e("    v_mov_b32 v%d, 0" % vL)
    for i in range(24): e("    v_mov_b32 v%d, 0" % (vO + i))
    e("    s_waitcnt vmcnt(%d)" % (3 * R + 6 * R * (NBUF - 1)))
    e("L_loop:")
    for b in range(NBUF):
        for r0 in range(0, R, 2):
            rs = [r for r in (r0, r0 + 1) if r < R]
            n = 3 * (R - 1 - rs[-1]) + 3 * R + 6 * R * (NBUF - 1)
            e("    s_waitcnt vmcnt(%d)" % n)
            for j in range(3):
                for i in range(4):
                    for r in rs:
                        if j == 0 and i == 0:
                            e("    v_dot2_f32_bf16 v%d, v%d, v%d, 0" % (vS + r, kreg(b, r, j) + i, vQ + 4 * j + i))
                        else:
                            e("    v_dot2_f32_bf16 v%d, v%d, v%d, v%d" % (vS + r, kreg(b, r, j) + i, vQ + 4 * j + i, vS + r))
        for r in range(R): loadK(b, r)
        advK()
        for pat in ("quad_perm:[1,0,3,2]", "quad_perm:[2,3,0,1]", "row_half_mirror"):
            for r in range(R):
                e("    v_add_f32_dpp v%d, v%d, v%d %s row_mask:0xf bank_mask:0xf" % (vS + r, vS + r, vS + r, pat))
            if R < 3: e("    s_nop %d" % (2 - R))
        rest = list(range(R))
        while rest:
            if len(rest) >= 2:
                a, c = rest.pop(0), rest.pop(0)
                e("    v_max3_f32 v%d, v%d, v%d, v%d" % (vM, vM, vS + a, vS + c))
            else:
                a = rest.pop(0)
                e("    v_max_f32 v%d, v%d, v%d" % (vM, vM, vS + a))
        e("    v_mov_b32 v%d, v%d" % (vA, vMC))
        e("    v_mul_f32 v%d, s%d, v%d" % (vMC, sC, vM))
        e("    v_sub_f32 v%d, v%d, v%d" % (vA, vA, vMC))
        for r in range(R):
            e("    v_fma_f32 v%d, v%d, s%d, -v%d" % (vS + r, vS + r, sC, vMC))
        e("    v_exp_f32 v%d, v%d" % (vA, vA))
        for r in range(R):
            e("    v_exp_f32 v%d, v%d" % (vS + r, vS + r))
        for i in range(12):
            e("    v_pk_mul_f32 v[%d:%d], v[%d:%d], v[%d:%d] op_sel:[0,1] op_sel_hi:[1,1]" %
              (vO + 2 * i, vO + 2 * i + 1, vO + 2 * i, vO + 2 * i + 1, vA - 1, vA))
        e("    v_fma_f32 v%d, v%d, v%d, v%d" % (vL, vL, vA, vS))
        for r in range(1, R):
            e("    v_add_f32 v%d, v%d, v%d" % (vL, vL, vS + r))
        tix = 0
        for r in range(R):
            n = 3 * (R - 1) + 3 * R + 6 * R * (NBUF - 1)
            e("    s_waitcnt vmcnt(%d)" % n)
            p = vS + r
            pb = p & ~1
            sel = "op_sel:[0,%d,0] op_sel_hi:[1,%d,1]" % (p & 1, p & 1)
            items = [(j, i) for j in range(3) for i in range(4)]
            pend = []
            for (j, i) in items:
                t = vT + 2 * (tix % 4); tix += 1
                src = vreg(b, r, j) + i
                e("    v_lshlrev_b32 v%d, 16, v%d" % (t, src))
                e("    v_and_b32 v%d, s%d, v%d" % (t + 1, sMASK, src))
                pend.append((t, vO + j * 8 + 2 * i))
                if len(pend) > 1:
                    tt, oo = pend.pop(0)
                    e("    v_pk_fma_f32 v[%d:%d], v[%d:%d], v[%d:%d], v[%d:%d] %s" % (oo, oo + 1, tt, tt + 1, pb, pb + 1, oo, oo + 1, sel))
            for tt, oo in pend:
                e("    v_pk_fma_f32 v[%d:%d], v[%d:%d], v[%d:%d], v[%d:%d] %s" % (oo, oo + 1, tt, tt + 1, pb, pb + 1, oo, oo + 1, sel))
            loadV(b, r)
        advV()
    e("    s_sub_u32 s%d, s%d, 1" % (sCNT, sCNT))
    e("    s_cmp_lg_u32 s%d, 0" % sCNT)
    e("    s_cbranch_scc1 L_loop")

    if STAMP:
        e("    s_memrealtime s[%d:%d]" % (sT0 + 2, sT0 + 3))
    t0, t1 = vT, vT + 1
    vMX = vT + 2
    e("    s_nop 1")
    e("    v_max_f32_dpp v%d, v%d, v%d row_ror:8 row_mask:0xf bank_mask:0xf" % (vMX, vMC, vMC))
    e("    s_nop 0")
    e("    v_mov_b32 v%d, v%d" % (t0, vMX))
    e("    s_nop 1")
    e("    v_permlane16_swap_b32 v%d, v%d" % (vMX, t0))
    e("    s_nop 1")
    e("    v_max_f32 v%d, v%d, v%d" % (vMX, vMX, t0))
    e("    s_nop 0")
    e("    v_mov_b32 v%d, v%d" % (t0, vMX))
    e("    s_nop 1")
    e("    v_permlane32_swap_b32 v%d, v%d" % (vMX, t0))
    e("    s_nop 1")
    e("    v_max_f32 v%d, v%d, v%d" % (vMX, vMX, t0))
    e("    v_sub_f32 v%d, v%d, v%d" % (vA, vMC, vMX))
    e("    v_exp_f32 v%d, v%d" % (vA, vA))
    e("    s_nop 0")
    e("    v_mul_f32 v%d, v%d, v%d" % (vL, vL, vA))
    for i in range(12):
        e("    v_pk_mul_f32 v[%d:%d], v[%d:%d], v[%d:%d] op_sel:[0,1] op_sel_hi:[1,1]" %
          (vO + 2 * i, vO + 2 * i + 1, vO + 2 * i, vO + 2 * i + 1, vA - 1, vA))
    vLX = vMX + 1
    e("    v_add_f32_dpp v%d, v%d, v%d row_ror:8 row_mask:0xf bank_mask:0xf" % (vLX, vL, vL))
    for j in range(3):
        for ee in range(4):
            a = vO + j * 8 + ee; b_ = a + 4
            e("    v_permlane32_swap_b32 v%d, v%d" % (a, b_))
    e("    v_mov_b32 v%d, v%d" % (t0, vLX))
    for j in range(3):
        for ee in range(4):
            a = vO + j * 8 + ee; b_ = a + 4
            e("    v_add_f32 v%d, v%d, v%d" % (a, a, b_))
    e("    v_permlane16_swap_b32 v%d, v%d" % (vLX, t0))
    for j in range(3):
        for ee in range(2):
            a = vO + j * 8 + ee; b_ = a + 2
            e("    v_permlane16_swap_b32 v%d, v%d" % (a, b_))
    e("    v_add_f32 v%d, v%d, v%d" % (vLX, vLX, t0))
    for j in range(3):
        for ee in range(2):
            a = vO + j * 8 + ee; b_ = a + 2
            e("    v_add_f32 v%d, v%d, v%d" % (a, a, b_))
    e("    v_mov_b32 v%d, v%d" % (t0, vLX))
    e("    v_and_b32 v%d, 7, v%d" % (vT + 4, vLANE))
    e("    v_lshlrev_b32 v%d, 5, v%d" % (vT + 4, vT + 4))
    e("    v_lshrrev_b32 v%d, 3, v%d" % (vT + 5, vLANE))
    e("    v_lshl_add_u32 v%d, v%d, 2, v%d" % (vT + 4, vT + 5, vT + 4))
    e("    s_mul_i32 s%d, s%d, %d" % (sTMP, sWAVE, PSTR))
    e("    v_permlane32_swap_b32 v%d, v%d" % (vLX, t0))
    for j in range(3):
        a = vO + j * 8
        e("    v_add_f32_dpp v%d, v%d, v%d row_ror:8 row_mask:0xf bank_mask:0x3" % (a + 2, a, a))
    for j in range(3):
        a = vO + j * 8
        e("    v_add_f32_dpp v%d, v%d, v%d row_ror:8 row_mask:0xf bank_mask:0xc" % (a + 2, a + 1, a + 1))
    e("    v_add_f32 v%d, v%d, v%d" % (vLX, vLX, t0))
    e("    v_add_u32 v%d, s%d, v%d" % (vT + 4, sTMP, vT + 4))
    e("    v_mov_b32 v%d, s%d" % (vT + 5, sTMP))
    for j in range(3):
        e("    ds_write_b32 v%d, v%d offset:%d" % (vT + 4, vO + j * 8 + 2, j * 256))
    e("    ds_write_b64 v%d, v[%d:%d] offset:768" % (vT + 5, vMX, vLX))
    e("    s_waitcnt vmcnt(0) lgkmcnt(0)")
    e("    s_barrier")
    e("    s_cmp_lg_u32 s%d, 0" % sWAVE)
    e("    s_cbranch_scc1 L_done")
    vX = vK
    vY = vK + max(NW, NSPLIT) * 4
    vZ = vY + max(NW, NSPLIT) * 2
    e("    v_lshlrev_b32 v%d, 4, v%d" % (vT, vLANE))
    e("    v_mov_b32 v%d, 0" % (vT + 1))
    for w in range(NW):
        e("    ds_read_b64 v[%d:%d], v%d offset:%d" % (vY + 2 * w, vY + 2 * w + 1, vT + 1, w * PSTR + 768))
    for w in range(NW):
        e("    ds_read_b128 v[%d:%d], v%d offset:%d" % (vX + 4 * w, vX + 4 * w + 3, vT, w * PSTR))

    def combine(n, waitfirst, waitsecond):
        e(waitfirst)
        e("    v_mov_b32 v%d, v%d" % (vZ + 4, vY))
        rest = list(range(1, n))
        while rest:
            if len(rest) >= 2:
                a, c = rest.pop(0), rest.pop(0)
                e("    v_max3_f32 v%d, v%d, v%d, v%d" % (vZ + 4, vZ + 4, vY + 2 * a, vY + 2 * c))
            else:
                a = rest.pop(0)
                e("    v_max_f32 v%d, v%d, v%d" % (vZ + 4, vZ + 4, vY + 2 * a))
        for w in range(n):
            e("    v_sub_f32 v%d, v%d, v%d" % (vY + 2 * w, vY + 2 * w, vZ + 4))
        for w in range(n):
            e("    v_exp_f32 v%d, v%d" % (vY + 2 * w, vY + 2 * w))
        e("    s_nop 0")
        e("    v_mul_f32 v%d, v%d, v%d" % (vZ + 5, vY, vY + 1))
        for w in range(1, n):
            e("    v_fma_f32 v%d, v%d, v%d, v%d" % (vZ + 5, vY + 2 * w, vY + 2 * w + 1, vZ + 5))
        e(waitsecond)
        for h in range(2):
            e("    v_pk_mul_f32 v[%d:%d], v[%d:%d], v[%d:%d] op_sel_hi:[1,0]" %
              (vZ + 2 * h, vZ + 2 * h + 1, vX + 2 * h, vX + 2 * h + 1, vY, vY + 1))
        for w in range(1, n):
            for h in range(2):
                e("    v_pk_fma_f32 v[%d:%d], v[%d:%d], v[%d:%d], v[%d:%d] op_sel_hi:[1,0,1]" %
                  (vZ + 2 * h, vZ + 2 * h + 1, vX + 4 * w + 2 * h, vX + 4 * w + 2 * h + 1, vY + 2 * w, vY + 2 * w + 1, vZ + 2 * h, vZ + 2 * h + 1))

    combine(NW, "    s_waitcnt lgkmcnt(%d)" % min(NW, 15), "    s_waitcnt lgkmcnt(0)")
    e("    v_cmp_eq_u32 vcc, 48, v%d" % vLANE)
    e("    s_lshl_b32 s%d, s%d, 10" % (sTMP, sLIN))
    e("    v_add_u32 v%d, s%d, v%d" % (vT + 2, sTMP, vT))
    e("    v_cndmask_b32 v%d, v%d, v%d, vcc" % (vZ, vZ, vZ + 4))
    e("    v_cndmask_b32 v%d, v%d, v%d, vcc" % (vZ + 1, vZ + 1, vZ + 5))
    e("    v_cmp_gt_u32 vcc, 49, v%d" % vLANE)
    e("    s_mul_i32 s%d, s%d, %d" % (sTMP, sHEAD, CSTRIDE))
    e("    v_mov_b32 v%d, s%d" % (vT + 3, sTMP))
    e("    v_mov_b32 v%d, 1" % (vT + 4))
    e("    s_mov_b64 exec, vcc")
    e("    global_store_dwordx4 v%d, v[%d:%d], s[14:15] sc0 sc1" % (vT + 2, vZ, vZ + 3))
    if STAMP:
        e("    s_waitcnt lgkmcnt(0)")
        e("    s_memrealtime s[%d:%d]" % (sT0 + 4, sT0 + 5))
    e("    s_mov_b64 exec, 1")
    e("    s_waitcnt vmcnt(0)")
    e("    global_atomic_add v%d, v%d, v%d, s[12:13] sc0 sc1" % (vT + 5, vT + 3, vT + 4))
    e("    s_waitcnt vmcnt(0)")
    e("    v_readfirstlane_b32 s%d, v%d" % (sTMP, vT + 5))
    e("    s_mov_b64 exec, -1")
    if STAMP:
        e("    s_memrealtime s[%d:%d]" % (sT0 + 6, sT0 + 7))
        e("    s_getreg_b32 s%d, hwreg(HW_REG_XCC_ID)" % (sT0 + 8))
        e("    s_getreg_b32 s%d, hwreg(HW_REG_HW_ID)" % (sT0 + 9))
        e("    s_waitcnt lgkmcnt(0)")
        for i in range(10):
            e("    v_mov_b32 v%d, s%d" % (vX + i, sT0 + i))
        e("    s_lshl_b32 s%d, s2, 6" % (sT0))
        e("    s_add_u32 s%d, s%d, 0x100000" % (sT0, sT0))
        e("    v_mov_b32 v%d, s%d" % (vT + 6, sT0))
        e("    s_mov_b64 exec, 1")
        e("    global_store_dwordx4 v%d, v[%d:%d], s[14:15]" % (vT + 6, vX, vX + 3))
        e("    global_store_dwordx4 v%d, v[%d:%d], s[14:15] offset:16" % (vT + 6, vX + 4, vX + 7))
        e("    global_store_dwordx2 v%d, v[%d:%d], s[14:15] offset:32" % (vT + 6, vX + 8, vX + 9))
        e("    s_waitcnt vmcnt(0)")
        e("    s_mov_b64 exec, -1")
    e("    s_cmp_lg_u32 s%d, %d" % (sTMP, NSPLIT - 1))
    e("    s_cbranch_scc1 L_done")
    e("    s_lshl_b32 s%d, s%d, %d" % (sTMP, sHEAD, 10 + LOGS))
    e("    v_add_u32 v%d, s%d, v%d" % (vT + 2, sTMP, vT))
    e("    v_mov_b32 v%d, s%d" % (vT + 3, sTMP))
    for j in range(NSPLIT):
        if j and j % 4 == 0:
            e("    v_add_u32 v%d, 4096, v%d" % (vT + 3, vT + 3))
        e("    global_load_dwordx2 v[%d:%d], v%d, s[14:15] offset:%d sc0 sc1" % (vY + 2 * j, vY + 2 * j + 1, vT + 3, (j % 4) * 1024 + 768))
    for j in range(NSPLIT):
        if j and j % 4 == 0:
            e("    v_add_u32 v%d, 4096, v%d" % (vT + 2, vT + 2))
        e("    global_load_dwordx4 v[%d:%d], v%d, s[14:15] offset:%d sc0 sc1" % (vX + 4 * j, vX + 4 * j + 3, vT + 2, (j % 4) * 1024))
    combine(NSPLIT, "    s_waitcnt vmcnt(%d)" % NSPLIT, "    s_waitcnt vmcnt(0)")
    e("    v_rcp_f32 v%d, v%d" % (vZ + 4, vZ + 5))
    e("    s_mul_i32 s%d, s%d, %d" % (sTMP, sHEAD, ROWB))
    e("    v_lshlrev_b32 v%d, 3, v%d" % (vT, vLANE))
    e("    v_add_u32 v%d, s%d, v%d" % (vT, sTMP, vT))
    for h in range(2):
        e("    v_pk_mul_f32 v[%d:%d], v[%d:%d], v[%d:%d] op_sel_hi:[1,0]" %
          (vZ + 2 * h, vZ + 2 * h + 1, vZ + 2 * h, vZ + 2 * h + 1, vZ + 4, vZ + 5))
    e("    v_cmp_gt_u32 vcc, 48, v%d" % vLANE)
    e("    v_cvt_pk_bf16_f32 v%d, v%d, v%d" % (vZ, vZ, vZ + 1))
    e("    v_cvt_pk_bf16_f32 v%d, v%d, v%d" % (vZ + 1, vZ + 2, vZ + 3))
    e("    s_mov_b64 exec, vcc")
    e("    global_store_dwordx2 v%d, v[%d:%d], s[10:11]" % (vT, vZ, vZ + 1))
    e("L_done:")
    e("    s_endpgm")
    e('.section .rodata,"a"')
    e(".p2align 6")
    e(".amdhsa_kernel %s" % KNAME)
    e("  .amdhsa_next_free_vgpr %d" % NVGPR)
    e("  .amdhsa_next_free_sgpr 56")
    e("  .amdhsa_accum_offset %d" % ((NVGPR + 3) // 4 * 4))
    e("  .amdhsa_group_segment_fixed_size 0")
    e("  .amdhsa_kernarg_size 48")
    e("  .amdhsa_user_sgpr_count 2")
    e("  .amdhsa_user_sgpr_kernarg_segment_ptr 1")
    e("  .amdhsa_system_sgpr_workgroup_id_x 1")
    e("  .amdhsa_float_denorm_mode_32 3")
    e(".end_amdhsa_kernel")
    return "\n".join(o) + "\n"

if __name__ == "__main__":
    ap = argparse.ArgumentParser()
    ap.add_argument("-o", default="standalone__mha_softmax__decode.s")
    for k, d in dict(NW=8, R=4, NBUF=2, NSPLIT=8, ILV=0, STAMP=0, CSTRIDE=4).items():
        ap.add_argument("--" + k, type=int, default=d)
    ap.add_argument("--POL", default="nt")
    ap.add_argument("--MAP", default="A")
    a = vars(ap.parse_args())
    out = a.pop("o")
    open(out, "w").write(gen(**a))
    print("wrote", out)
```

```python
import math, struct, sys, argparse

H = 32; SK = 32768; D = 192
ROWB = D * 2
HEADB = SK * ROWB

def f32hex(x):
    return "0x%08x" % struct.unpack("<I", struct.pack("<f", x))[0]

HEADER = """; Kernarg layout for this problem (48 bytes, ptrs only, base s[0:1]):
"""

def gen(NW=8, R=4, NBUF=2, NSPLIT=8, POL="nt", MAP="A", ILV=0, STAMP=0, CSTRIDE=8, DYN=0, NS=8, SP=0, KNAME="standalone__mha_softmax__decode_kernel"):
    o = []
    e = o.append
    NWG = H * NSPLIT
    TILEK = 8 * R
    TILEB = TILEK * ROWB
    WGTB = NW * TILEB
    CHUNKB = HEADB // NSPLIT
    NT = CHUNKB // WGTB
    assert NT * WGTB == CHUNKB
    assert DYN or NT % NBUF == 0
    LOGS = int(math.log2(NSPLIT)); assert 1 << LOGS == NSPLIT
    PSTR = 1024
    LDS = NW * PSTR
    pol = (" " + POL) if POL else ""
    C = (D ** -0.5) * math.log2(math.e)

    vLANE = 0; vOFF = 1; vM = 2; vMC = 3; vL = 4; vA = 5
    vS = 6
    vT = vS + R + (R & 1)
    if vT & 1: vT += 1
    vQ = vT + 8
    vO = vQ + 12
    vRET = vO + 24; vCA = vRET + 1; vONE = vRET + 2; vCW = vRET + 3; vFLG = vRET + 4
    vK = vO + 24 + (5 if DYN else 0)
    vK = (vK + 3) // 4 * 4
    vV = vK + NBUF * 12 * R
    vEND = vV + NBUF * 12 * R
    need_ep = max(NW, NSPLIT) * 6 + 16
    NVGPR = max(vEND, vK + need_ep)
    sHEAD = 24; sSPL = 25; sWAVE = 26; sMASK = 27; sC = 28; sCNT = 29; sLIN = 30; sTMP = 31
    sKO = 32
    NSO = (R + 1) // 2
    sVO = sKO + NSO
    sT0 = 40
    STEP = WGTB * (NSPLIT if ILV else 1)
    UNITB = NBUF * TILEB
    NUNITS = HEADB // UNITB
    assert NUNITS * UNITB == HEADB
    G = NSPLIT * NW
    sIDX = 38; sFLAG = 39
    CTR_OFF = 0x200000
    if DYN: STEP = TILEB

    e(HEADER + "; @launch grid=(%d,1,1) block=(%d,1,1) lds=%d" % (NWG, NW * 64, LDS))
    e('.amdgcn_target "amdgcn-amd-amdhsa--gfx950"')
    e(".text")
    e(".globl %s" % KNAME)
    e(".p2align 8")
    e(".type %s,@function" % KNAME)
    e("%s:" % KNAME)
    e("    s_cmp_ge_u32 s2, %d" % NWG)
    e("    s_cbranch_scc1 L_done")
    e("    s_load_dwordx4 s[4:7], s[0:1], 0")
    e("    s_load_dwordx4 s[8:11], s[0:1], 16")
    e("    s_load_dwordx4 s[12:15], s[0:1], 32")
    if STAMP:
        e("    s_memrealtime s[%d:%d]" % (sT0, sT0 + 1))
    if MAP == "A":
        e("    s_mov_b32 s%d, s2" % sLIN)
    else:
        e("    s_and_b32 s%d, s2, 7" % sLIN)
        e("    s_mul_i32 s%d, s%d, %d" % (sLIN, sLIN, NWG // 8))
        e("    s_lshr_b32 s%d, s2, 3" % sTMP)
        e("    s_add_u32 s%d, s%d, s%d" % (sLIN, sLIN, sTMP))
    e("    s_lshr_b32 s%d, s%d, %d" % (sHEAD, sLIN, LOGS))
    e("    s_and_b32 s%d, s%d, %d" % (sSPL, sLIN, NSPLIT - 1))
    e("    v_lshrrev_b32 v%d, 6, v0" % vA)
    e("    v_and_b32 v%d, 63, v0" % vLANE)
    e("    v_readfirstlane_b32 s%d, v%d" % (sWAVE, vA))
    e("    v_lshrrev_b32 v%d, 3, v%d" % (vT, vLANE))
    e("    v_and_b32 v%d, 7, v%d" % (vT + 1, vLANE))
    e("    v_lshlrev_b32 v%d, 4, v%d" % (vT + 1, vT + 1))
    e("    v_mul_u32_u24 v%d, %d, v%d" % (vT, ROWB, vT))
    e("    v_add_u32 v%d, v%d, v%d" % (vOFF, vT, vT + 1))
    if DYN:
        e("    s_mul_i32 s%d, s%d, %d" % (sTMP, sHEAD, HEADB))
        e("    s_mov_b32 s18, %d" % HEADB)
    elif ILV:
        e("    s_mul_i32 s%d, s%d, %d" % (sTMP, sHEAD, HEADB))
        e("    s_mul_i32 s%d, s%d, %d" % (sCNT, sSPL, WGTB))
        e("    s_add_u32 s%d, s%d, s%d" % (sTMP, sTMP, sCNT))
        e("    s_sub_u32 s18, %d, s%d" % (HEADB, sCNT))
    else:
        e("    s_mul_i32 s%d, s%d, %d" % (sTMP, sLIN, CHUNKB))
        e("    s_mov_b32 s18, %d" % CHUNKB)
    e("    s_mov_b32 s22, s18")
    e("    s_mov_b32 s19, 0x00020000")
    e("    s_mov_b32 s23, 0x00020000")
    if DYN:
        if SP == 0:
            e("    s_mul_i32 s%d, s%d, %d" % (sIDX, sSPL, NW))
            e("    s_add_u32 s%d, s%d, s%d" % (sIDX, sIDX, sWAVE))
            SSTEP = G
        elif SP == 1:
            e("    s_mul_i32 s%d, s%d, %d" % (sIDX, sSPL, NW))
            e("    s_add_u32 s%d, s%d, s%d" % (sIDX, sIDX, sWAVE))
            e("    s_mul_i32 s%d, s%d, %d" % (sIDX, sIDX, NS))
            SSTEP = 1
        else:
            e("    s_mul_i32 s%d, s%d, %d" % (sIDX, sSPL, NW * NS))
            e("    s_add_u32 s%d, s%d, s%d" % (sIDX, sIDX, sWAVE))
            SSTEP = NW
        e("    s_mul_i32 s%d, s%d, %d" % (sKO, sIDX, UNITB))
        e("    s_mul_i32 s%d, s%d, %d" % (sFLAG, sHEAD, CSTRIDE))
        e("    v_mov_b32 v%d, s%d" % (vCA, sFLAG))
        e("    v_mov_b32 v%d, 1" % vONE)
        if DYN == 1: e("    s_sub_u32 s%d, s%d, %d" % (sFLAG, sIDX, G))
        else: e("    s_sub_u32 s%d, s%d, %d" % (sFLAG, sIDX, NS * G - (NS - 1) * SSTEP))
        e("    v_mov_b32 v%d, s%d" % (vRET, sFLAG))
        if DYN == 2:
            e("    s_lshl_b32 s%d, s%d, 8" % (sFLAG, sHEAD))
            e("    s_add_u32 s%d, s%d, 0x%x" % (sFLAG, sFLAG, CTR_OFF))
            e("    v_mov_b32 v%d, s%d" % (vCW, sFLAG))
            e("    v_mov_b32 v%d, 0" % vFLG)
            e("    s_mov_b32 s%d, 0" % sFLAG)
    else:
        e("    s_mul_i32 s%d, s%d, %d" % (sKO, sWAVE, TILEB))
    for i in range(1, NSO):
        e("    s_add_u32 s%d, s%d, %d" % (sKO + i, sKO, i * 2 * 8 * ROWB))
    for i in range(NSO):
        e("    s_mov_b32 s%d, s%d" % (sVO + i, sKO + i))
    e("    s_mul_i32 s%d, s%d, %d" % (sCNT, sHEAD, ROWB))
    e("    v_add_u32 v%d, s%d, v%d" % (vT + 1, sCNT, vT + 1))
    e("    s_waitcnt lgkmcnt(0)")
    e("    s_add_u32 s16, s6, s%d" % sTMP)
    e("    s_addc_u32 s17, s7, 0")
    e("    s_add_u32 s20, s8, s%d" % sTMP)
    e("    s_addc_u32 s21, s9, 0")
    e("    s_and_b32 s17, s17, 0xffff")
    e("    s_and_b32 s21, s21, 0xffff")

    def kreg(b, r, j): return vK + (b * R + r) * 12 + j * 4
    def vreg(b, r, j): return vV + (b * R + r) * 12 + j * 4
    def loadK(b, r):
        for j in range(3):
            rr = kreg(b, r, j)
            e("    buffer_load_dwordx4 v[%d:%d], v%d, s[16:19], s%d offen offset:%d%s" %
              (rr, rr + 3, vOFF, sKO + r // 2, (r & 1) * 8 * ROWB + j * 128, pol))
    def loadV(b, r):
        for j in range(3):
            rr = vreg(b, r, j)
            e("    buffer_load_dwordx4 v[%d:%d], v%d, s[20:23], s%d offen offset:%d%s" %
              (rr, rr + 3, vOFF, sVO + r // 2, (r & 1) * 8 * ROWB + j * 128, pol))
    def advK():
        for i in range(NSO): e("    s_add_u32 s%d, s%d, %d" % (sKO + i, sKO + i, STEP))
    def advV():
        for i in range(NSO): e("    s_add_u32 s%d, s%d, %d" % (sVO + i, sVO + i, STEP))

    if DYN == 2:
        e("    s_cmp_lg_u32 s%d, 0" % sWAVE)
        e("    s_cbranch_scc1 L_noelect")
        e("    s_mov_b64 exec, 1")
        e("    global_atomic_add v%d, v%d, v%d, s[12:13] sc0 sc1" % (vA, vCA, vONE))
        e("    s_mov_b64 exec, -1")
        e("L_noelect:")
    for r in range(R): loadK(0, r)
    advK()
    for j in range(3):
        e("    global_load_dwordx4 v[%d:%d], v%d, s[4:5] offset:%d" % (vQ + 4 * j, vQ + 4 * j + 3, vT + 1, j * 128))
    for r in range(R): loadV(0, r)
    advV()
    for b in range(1, NBUF):
        for r in range(R): loadK(b, r)
        advK()
        for r in range(R): loadV(b, r)
        advV()
    e("    s_mov_b32 s%d, 0xffff0000" % sMASK)
    e("    s_mov_b32 s%d, %s" % (sC, f32hex(C)))
    e("    s_mov_b32 s%d, %d" % (sCNT, NT // NBUF))
    e("    v_mov_b32 v%d, 0xff800000" % vM)
    e("    v_mov_b32 v%d, 0xff800000" % vMC)
    e("    v_mov_b32 v%d, 0" % vL)
    for i in range(24): e("    v_mov_b32 v%d, 0" % (vO + i))
    if DYN == 2:
        e("    s_cmp_lg_u32 s%d, 0" % sWAVE)
        e("    s_cbranch_scc1 L_noinit")
        e("    s_waitcnt vmcnt(%d)" % (3 + 6 * R * NBUF))
        e("    v_readfirstlane_b32 s%d, v%d" % (sTMP, vA))
        e("    s_cmp_lg_u32 s%d, 0" % sTMP)
        e("    s_cbranch_scc1 L_noinit")
        e("    s_mov_b64 exec, 1")
        e("    global_store_dword v%d, v%d, s[14:15] sc0 sc1" % (vCW, vL))
        e("    s_waitcnt vmcnt(0)")
        e("    global_store_dword v%d, v%d, s[12:13] offset:4 sc0 sc1" % (vCA, vONE))
        e("    s_mov_b64 exec, -1")
        e("L_noinit:")
        e("    s_mov_b32 s%d, %d" % (sCNT, NS - 2))
    e("    s_waitcnt vmcnt(%d)" % (3 * R + 6 * R * (NBUF - 1)))
    def body(mode):
        for b in range(NBUF):
            for r0 in range(0, R, 2):
                rs = [r for r in (r0, r0 + 1) if r < R]
                n = 3 * (R - 1 - rs[-1]) + 3 * R + 6 * R * (NBUF - 1)
                if DYN and b > 0: n += 1
                e("    s_waitcnt vmcnt(%d)" % n)
                for j in range(3):
                    for i in range(4):
                        for r in rs:
                            if j == 0 and i == 0:
                                e("    v_dot2_f32_bf16 v%d, v%d, v%d, 0" % (vS + r, kreg(b, r, j) + i, vQ + 4 * j + i))
                            else:
                                e("    v_dot2_f32_bf16 v%d, v%d, v%d, v%d" % (vS + r, kreg(b, r, j) + i, vQ + 4 * j + i, vS + r))
            if DYN and b == 0:
                if mode == "S":
                    e("    v_readfirstlane_b32 s%d, v%d" % (sFLAG, vFLG))
                    e("    s_mov_b64 exec, 1")
                    e("    global_load_dword v%d, v%d, s[12:13] offset:4 sc0 sc1" % (vFLG, vCA))
                    e("    s_mov_b64 exec, -1")
                    e("    s_add_u32 s%d, s%d, %d" % (sIDX, sIDX, SSTEP))
                else:
                    e("    v_readfirstlane_b32 s%d, v%d" % (sIDX, vRET))
                    e("    s_mov_b64 exec, 1")
                    if DYN == 1:
                        e("    global_atomic_add v%d, v%d, v%d, s[12:13] sc0 sc1" % (vRET, vCW if False else vCA, vONE))
                    else:
                        e("    global_atomic_add v%d, v%d, v%d, s[14:15] sc0 sc1" % (vRET, vCW, vONE))
                    e("    s_mov_b64 exec, -1")
                    e("    s_add_u32 s%d, s%d, %d" % (sIDX, sIDX, (2 if DYN == 1 else NS) * G))
                    e("    s_min_u32 s%d, s%d, %d" % (sIDX, sIDX, NUNITS))
                e("    s_mul_i32 s%d, s%d, %d" % (sKO, sIDX, UNITB))
                for i in range(1, NSO):
                    e("    s_add_u32 s%d, s%d, %d" % (sKO + i, sKO, i * 2 * 8 * ROWB))
                for i in range(NSO):
                    e("    s_mov_b32 s%d, s%d" % (sVO + i, sKO + i))
            for r in range(R): loadK(b, r)
            advK()
            for pat in ("quad_perm:[1,0,3,2]", "quad_perm:[2,3,0,1]", "row_half_mirror"):
                for r in range(R):
                    e("    v_add_f32_dpp v%d, v%d, v%d %s row_mask:0xf bank_mask:0xf" % (vS + r, vS + r, vS + r, pat))
                if R < 3: e("    s_nop %d" % (2 - R))
            rest = list(range(R))
            while rest:
                if len(rest) >= 2:
                    a, c = rest.pop(0), rest.pop(0)
                    e("    v_max3_f32 v%d, v%d, v%d, v%d" % (vM, vM, vS + a, vS + c))
                else:
                    a = rest.pop(0)
                    e("    v_max_f32 v%d, v%d, v%d" % (vM, vM, vS + a))
            e("    v_mov_b32 v%d, v%d" % (vA, vMC))
            e("    v_mul_f32 v%d, s%d, v%d" % (vMC, sC, vM))
            e("    v_sub_f32 v%d, v%d, v%d" % (vA, vA, vMC))
            for r in range(R):
                e("    v_fma_f32 v%d, v%d, s%d, -v%d" % (vS + r, vS + r, sC, vMC))
            e("    v_exp_f32 v%d, v%d" % (vA, vA))
            for r in range(R):
                e("    v_exp_f32 v%d, v%d" % (vS + r, vS + r))
            for i in range(12):
                e("    v_pk_mul_f32 v[%d:%d], v[%d:%d], v[%d:%d] op_sel:[0,1] op_sel_hi:[1,1]" %
                  (vO + 2 * i, vO + 2 * i + 1, vO + 2 * i, vO + 2 * i + 1, vA - 1, vA))
            e("    v_fma_f32 v%d, v%d, v%d, v%d" % (vL, vL, vA, vS))
            for r in range(1, R):
                e("    v_add_f32 v%d, v%d, v%d" % (vL, vL, vS + r))
            tix = 0
            for r in range(R):
                n = 3 * (R - 1) + 3 * R + 6 * R * (NBUF - 1)
                if DYN: n += 1
                e("    s_waitcnt vmcnt(%d)" % n)
                p = vS + r
                pb = p & ~1
                sel = "op_sel:[0,%d,0] op_sel_hi:[1,%d,1]" % (p & 1, p & 1)
                items = [(j, i) for j in range(3) for i in range(4)]
                pend = []
                for (j, i) in items:
                    t = vT + 2 * (tix % 4); tix += 1
                    src = vreg(b, r, j) + i
                    e("    v_lshlrev_b32 v%d, 16, v%d" % (t, src))
                    e("    v_and_b32 v%d, s%d, v%d" % (t + 1, sMASK, src))
                    pend.append((t, vO + j * 8 + 2 * i))
                    if len(pend) > 1:
                        tt, oo = pend.pop(0)
                        e("    v_pk_fma_f32 v[%d:%d], v[%d:%d], v[%d:%d], v[%d:%d] %s" % (oo, oo + 1, tt, tt + 1, pb, pb + 1, oo, oo + 1, sel))
                for tt, oo in pend:
                    e("    v_pk_fma_f32 v[%d:%d], v[%d:%d], v[%d:%d], v[%d:%d] %s" % (oo, oo + 1, tt, tt + 1, pb, pb + 1, oo, oo + 1, sel))
                loadV(b, r)
            advV()
    if DYN == 2:
        assert NS >= 4 and NS * G <= NUNITS
        e("L_sloop:")
        body("S")
        e("    s_sub_u32 s%d, s%d, 1" % (sCNT, sCNT))
        e("    s_cmp_lg_u32 s%d, 0" % sCNT)
        e("    s_cbranch_scc1 L_sloop")
        e("    s_cmp_lg_u32 s%d, 0" % sFLAG)
        e("    s_cbranch_scc1 L_ready")
        e("L_spin:")
        e("    s_waitcnt vmcnt(0)")
        e("    v_readfirstlane_b32 s%d, v%d" % (sFLAG, vFLG))
        e("    s_cmp_lg_u32 s%d, 0" % sFLAG)
        e("    s_cbranch_scc1 L_ready")
        e("    global_load_dword v%d, v%d, s[12:13] offset:4 sc0 sc1" % (vFLG, vCA))
        e("    s_branch L_spin")
        e("L_ready:")
    e("L_loop:")
    body("D")
    if DYN:
        e("    s_cmp_lt_u32 s%d, %d" % (sIDX, NUNITS))
    else:
        e("    s_sub_u32 s%d, s%d, 1" % (sCNT, sCNT))
        e("    s_cmp_lg_u32 s%d, 0" % sCNT)
    e("    s_cbranch_scc1 L_loop")

    if STAMP:
        e("    s_memrealtime s[%d:%d]" % (sT0 + 2, sT0 + 3))
    t0, t1 = vT, vT + 1
    vMX = vT + 2
    e("    s_nop 1")
    e("    v_max_f32_dpp v%d, v%d, v%d row_ror:8 row_mask:0xf bank_mask:0xf" % (vMX, vMC, vMC))
    e("    s_nop 0")
    e("    v_mov_b32 v%d, v%d" % (t0, vMX))
    e("    s_nop 1")
    e("    v_permlane16_swap_b32 v%d, v%d" % (vMX, t0))
    e("    s_nop 1")
    e("    v_max_f32 v%d, v%d, v%d" % (vMX, vMX, t0))
    e("    s_nop 0")
    e("    v_mov_b32 v%d, v%d" % (t0, vMX))
    e("    s_nop 1")
    e("    v_permlane32_swap_b32 v%d, v%d" % (vMX, t0))
    e("    s_nop 1")
    e("    v_max_f32 v%d, v%d, v%d" % (vMX, vMX, t0))
    e("    v_sub_f32 v%d, v%d, v%d" % (vA, vMC, vMX))
    e("    v_exp_f32 v%d, v%d" % (vA, vA))
    e("    s_nop 0")
    e("    v_mul_f32 v%d, v%d, v%d" % (vL, vL, vA))
    for i in range(12):
        e("    v_pk_mul_f32 v[%d:%d], v[%d:%d], v[%d:%d] op_sel:[0,1] op_sel_hi:[1,1]" %
          (vO + 2 * i, vO + 2 * i + 1, vO + 2 * i, vO + 2 * i + 1, vA - 1, vA))
    vLX = vMX + 1
    e("    v_add_f32_dpp v%d, v%d, v%d row_ror:8 row_mask:0xf bank_mask:0xf" % (vLX, vL, vL))
    for j in range(3):
        for ee in range(4):
            a = vO + j * 8 + ee; b_ = a + 4
            e("    v_permlane32_swap_b32 v%d, v%d" % (a, b_))
    e("    v_mov_b32 v%d, v%d" % (t0, vLX))
    for j in range(3):
        for ee in range(4):
            a = vO + j * 8 + ee; b_ = a + 4
            e("    v_add_f32 v%d, v%d, v%d" % (a, a, b_))
    e("    v_permlane16_swap_b32 v%d, v%d" % (vLX, t0))
    for j in range(3):
        for ee in range(2):
            a = vO + j * 8 + ee; b_ = a + 2
            e("    v_permlane16_swap_b32 v%d, v%d" % (a, b_))
    e("    v_add_f32 v%d, v%d, v%d" % (vLX, vLX, t0))
    for j in range(3):
        for ee in range(2):
            a = vO + j * 8 + ee; b_ = a + 2
            e("    v_add_f32 v%d, v%d, v%d" % (a, a, b_))
    e("    v_mov_b32 v%d, v%d" % (t0, vLX))
    e("    v_and_b32 v%d, 7, v%d" % (vT + 4, vLANE))
    e("    v_lshlrev_b32 v%d, 5, v%d" % (vT + 4, vT + 4))
    e("    v_lshrrev_b32 v%d, 3, v%d" % (vT + 5, vLANE))
    e("    v_lshl_add_u32 v%d, v%d, 2, v%d" % (vT + 4, vT + 5, vT + 4))
    e("    s_mul_i32 s%d, s%d, %d" % (sTMP, sWAVE, PSTR))
    e("    v_permlane32_swap_b32 v%d, v%d" % (vLX, t0))
    for j in range(3):
        a = vO + j * 8
        e("    v_add_f32_dpp v%d, v%d, v%d row_ror:8 row_mask:0xf bank_mask:0x3" % (a + 2, a, a))
    for j in range(3):
        a = vO + j * 8
        e("    v_add_f32_dpp v%d, v%d, v%d row_ror:8 row_mask:0xf bank_mask:0xc" % (a + 2, a + 1, a + 1))
    e("    v_add_f32 v%d, v%d, v%d" % (vLX, vLX, t0))
    e("    v_add_u32 v%d, s%d, v%d" % (vT + 4, sTMP, vT + 4))
    e("    v_mov_b32 v%d, s%d" % (vT + 5, sTMP))
    for j in range(3):
        e("    ds_write_b32 v%d, v%d offset:%d" % (vT + 4, vO + j * 8 + 2, j * 256))
    e("    ds_write_b64 v%d, v[%d:%d] offset:768" % (vT + 5, vMX, vLX))
    e("    s_waitcnt vmcnt(0) lgkmcnt(0)")
    e("    s_barrier")
    e("    s_cmp_lg_u32 s%d, 0" % sWAVE)
    e("    s_cbranch_scc1 L_done")
    vX = vK
    vY = vK + max(NW, NSPLIT) * 4
    vZ = vY + max(NW, NSPLIT) * 2
    e("    v_lshlrev_b32 v%d, 4, v%d" % (vT, vLANE))
    e("    v_mov_b32 v%d, 0" % (vT + 1))
    for w in range(NW):
        e("    ds_read_b64 v[%d:%d], v%d offset:%d" % (vY + 2 * w, vY + 2 * w + 1, vT + 1, w * PSTR + 768))
    for w in range(NW):
        e("    ds_read_b128 v[%d:%d], v%d offset:%d" % (vX + 4 * w, vX + 4 * w + 3, vT, w * PSTR))

    def combine(n, waitfirst, waitsecond):
        e(waitfirst)
        e("    v_mov_b32 v%d, v%d" % (vZ + 4, vY))
        rest = list(range(1, n))
        while rest:
            if len(rest) >= 2:
                a, c = rest.pop(0), rest.pop(0)
                e("    v_max3_f32 v%d, v%d, v%d, v%d" % (vZ + 4, vZ + 4, vY + 2 * a, vY + 2 * c))
            else:
                a = rest.pop(0)
                e("    v_max_f32 v%d, v%d, v%d" % (vZ + 4, vZ + 4, vY + 2 * a))
        for w in range(n):
            e("    v_sub_f32 v%d, v%d, v%d" % (vY + 2 * w, vY + 2 * w, vZ + 4))
        for w in range(n):
            e("    v_exp_f32 v%d, v%d" % (vY + 2 * w, vY + 2 * w))
        e("    s_nop 0")
        e("    v_mul_f32 v%d, v%d, v%d" % (vZ + 5, vY, vY + 1))
        for w in range(1, n):
            e("    v_fma_f32 v%d, v%d, v%d, v%d" % (vZ + 5, vY + 2 * w, vY + 2 * w + 1, vZ + 5))
        e(waitsecond)
        for h in range(2):
            e("    v_pk_mul_f32 v[%d:%d], v[%d:%d], v[%d:%d] op_sel_hi:[1,0]" %
              (vZ + 2 * h, vZ + 2 * h + 1, vX + 2 * h, vX + 2 * h + 1, vY, vY + 1))
        for w in range(1, n):
            for h in range(2):
                e("    v_pk_fma_f32 v[%d:%d], v[%d:%d], v[%d:%d], v[%d:%d] op_sel_hi:[1,0,1]" %
                  (vZ + 2 * h, vZ + 2 * h + 1, vX + 4 * w + 2 * h, vX + 4 * w + 2 * h + 1, vY + 2 * w, vY + 2 * w + 1, vZ + 2 * h, vZ + 2 * h + 1))

    combine(NW, "    s_waitcnt lgkmcnt(%d)" % min(NW, 15), "    s_waitcnt lgkmcnt(0)")
    e("    v_cmp_eq_u32 vcc, 48, v%d" % vLANE)
    e("    s_lshl_b32 s%d, s%d, 10" % (sTMP, sLIN))
    e("    v_add_u32 v%d, s%d, v%d" % (vT + 2, sTMP, vT))
    e("    v_cndmask_b32 v%d, v%d, v%d, vcc" % (vZ, vZ, vZ + 4))
    e("    v_cndmask_b32 v%d, v%d, v%d, vcc" % (vZ + 1, vZ + 1, vZ + 5))
    e("    v_cmp_gt_u32 vcc, 49, v%d" % vLANE)
    e("    s_mul_i32 s%d, s%d, %d" % (sTMP, sHEAD, CSTRIDE))
    e("    v_mov_b32 v%d, s%d" % (vT + 3, sTMP))
    e("    v_mov_b32 v%d, %d" % (vT + 4, 0x100 if DYN == 2 else 1))
    e("    s_mov_b64 exec, vcc")
    e("    global_store_dwordx4 v%d, v[%d:%d], s[14:15] sc0 sc1" % (vT + 2, vZ, vZ + 3))
    if STAMP:
        e("    s_waitcnt lgkmcnt(0)")
        e("    s_memrealtime s[%d:%d]" % (sT0 + 4, sT0 + 5))
    e("    s_mov_b64 exec, 1")
    e("    s_waitcnt vmcnt(0)")
    e("    global_atomic_add v%d, v%d, v%d, s[12:13] offset:%d sc0 sc1" % (vT + 5, vT + 3, vT + 4, 4 if (CSTRIDE >= 8 and DYN != 2) else 0))
    e("    s_waitcnt vmcnt(0)")
    e("    v_readfirstlane_b32 s%d, v%d" % (sTMP, vT + 5))
    e("    s_mov_b64 exec, -1")
    if STAMP:
        e("    s_memrealtime s[%d:%d]" % (sT0 + 6, sT0 + 7))
        e("    s_getreg_b32 s%d, hwreg(HW_REG_XCC_ID)" % (sT0 + 8))
        e("    s_getreg_b32 s%d, hwreg(HW_REG_HW_ID)" % (sT0 + 9))
        e("    s_waitcnt lgkmcnt(0)")
        for i in range(10):
            e("    v_mov_b32 v%d, s%d" % (vX + i, sT0 + i))
        e("    s_lshl_b32 s%d, s2, 6" % (sT0))
        e("    s_add_u32 s%d, s%d, 0x100000" % (sT0, sT0))
        e("    v_mov_b32 v%d, s%d" % (vT + 6, sT0))
        e("    s_mov_b64 exec, 1")
        e("    global_store_dwordx4 v%d, v[%d:%d], s[14:15]" % (vT + 6, vX, vX + 3))
        e("    global_store_dwordx4 v%d, v[%d:%d], s[14:15] offset:16" % (vT + 6, vX + 4, vX + 7))
        e("    global_store_dwordx2 v%d, v[%d:%d], s[14:15] offset:32" % (vT + 6, vX + 8, vX + 9))
        e("    s_waitcnt vmcnt(0)")
        e("    s_mov_b64 exec, -1")
    if DYN == 2: e("    s_lshr_b32 s%d, s%d, 8" % (sTMP, sTMP))
    e("    s_cmp_lg_u32 s%d, %d" % (sTMP, NSPLIT - 1))
    e("    s_cbranch_scc1 L_done")
    e("    s_lshl_b32 s%d, s%d, %d" % (sTMP, sHEAD, 10 + LOGS))
    e("    v_add_u32 v%d, s%d, v%d" % (vT + 2, sTMP, vT))
    e("    v_mov_b32 v%d, s%d" % (vT + 3, sTMP))
    for j in range(NSPLIT):
        if j and j % 4 == 0:
            e("    v_add_u32 v%d, 4096, v%d" % (vT + 3, vT + 3))
        e("    global_load_dwordx2 v[%d:%d], v%d, s[14:15] offset:%d sc0 sc1" % (vY + 2 * j, vY + 2 * j + 1, vT + 3, (j % 4) * 1024 + 768))
    for j in range(NSPLIT):
        if j and j % 4 == 0:
            e("    v_add_u32 v%d, 4096, v%d" % (vT + 2, vT + 2))
        e("    global_load_dwordx4 v[%d:%d], v%d, s[14:15] offset:%d sc0 sc1" % (vX + 4 * j, vX + 4 * j + 3, vT + 2, (j % 4) * 1024))
    combine(NSPLIT, "    s_waitcnt vmcnt(%d)" % NSPLIT, "    s_waitcnt vmcnt(0)")
    e("    v_rcp_f32 v%d, v%d" % (vZ + 4, vZ + 5))
    e("    s_mul_i32 s%d, s%d, %d" % (sTMP, sHEAD, ROWB))
    e("    v_lshlrev_b32 v%d, 3, v%d" % (vT, vLANE))
    e("    v_add_u32 v%d, s%d, v%d" % (vT, sTMP, vT))
    for h in range(2):
        e("    v_pk_mul_f32 v[%d:%d], v[%d:%d], v[%d:%d] op_sel_hi:[1,0]" %
          (vZ + 2 * h, vZ + 2 * h + 1, vZ + 2 * h, vZ + 2 * h + 1, vZ + 4, vZ + 5))
    e("    v_cmp_gt_u32 vcc, 48, v%d" % vLANE)
    e("    v_cvt_pk_bf16_f32 v%d, v%d, v%d" % (vZ, vZ, vZ + 1))
    e("    v_cvt_pk_bf16_f32 v%d, v%d, v%d" % (vZ + 1, vZ + 2, vZ + 3))
    e("    s_mov_b64 exec, vcc")
    e("    global_store_dwordx2 v%d, v[%d:%d], s[10:11]" % (vT, vZ, vZ + 1))
    e("L_done:")
    e("    s_endpgm")
    e('.section .rodata,"a"')
    e(".p2align 6")
    e(".amdhsa_kernel %s" % KNAME)
    e("  .amdhsa_next_free_vgpr %d" % NVGPR)
    e("  .amdhsa_next_free_sgpr 56")
    e("  .amdhsa_accum_offset %d" % ((NVGPR + 3) // 4 * 4))
    e("  .amdhsa_group_segment_fixed_size 0")
    e("  .amdhsa_kernarg_size 48")
    e("  .amdhsa_user_sgpr_count 2")
    e("  .amdhsa_user_sgpr_kernarg_segment_ptr 1")
    e("  .amdhsa_system_sgpr_workgroup_id_x 1")
    e("  .amdhsa_float_denorm_mode_32 3")
    e(".end_amdhsa_kernel")
    return "\n".join(o) + "\n"

if __name__ == "__main__":
    ap = argparse.ArgumentParser()
    ap.add_argument("-o", default="standalone__mha_softmax__decode.s")
    for k, d in dict(NW=8, R=4, NBUF=2, NSPLIT=8, ILV=0, STAMP=0, CSTRIDE=8, DYN=0, NS=8, SP=0).items():
        ap.add_argument("--" + k, type=int, default=d)
    ap.add_argument("--POL", default="nt")
    ap.add_argument("--MAP", default="A")
    a = vars(ap.parse_args())
    out = a.pop("o")
    open(out, "w").write(gen(**a))
    print("wrote", out)
```

```python
import math, struct, sys, argparse

H = 32; SK = 32768; D = 192
ROWB = D * 2
HEADB = SK * ROWB

def f32hex(x):
    return "0x%08x" % struct.unpack("<I", struct.pack("<f", x))[0]

HEADER = """; Kernarg layout for this problem (48 bytes, ptrs only, base s[0:1]):
"""

def gen(NW=8, R=4, NBUF=2, NSPLIT=8, POL="nt", MAP="A", ILV=0, STAMP=0, CSTRIDE=8, DYN=0, NS=8, SP=0, TRACE=0, DUMMY=0, CWS=8, SHARD=0, KNAME="standalone__mha_softmax__decode_kernel"):
    o = []
    e = o.append
    NWG = H * NSPLIT
    TILEK = 8 * R
    TILEB = TILEK * ROWB
    WGTB = NW * TILEB
    CHUNKB = HEADB // NSPLIT
    NT = CHUNKB // WGTB
    assert NT * WGTB == CHUNKB
    assert DYN or NT % NBUF == 0
    LOGS = int(math.log2(NSPLIT)); assert 1 << LOGS == NSPLIT
    PSTR = 1024
    LDS = NW * PSTR
    pol = (" " + POL) if POL else ""
    C = (D ** -0.5) * math.log2(math.e)

    vLANE = 0; vOFF = 1; vM = 2; vMC = 3; vL = 4; vA = 5
    vS = 6
    vT = vS + R + (R & 1)
    if vT & 1: vT += 1
    vQ = vT + 8
    vO = vQ + 12
    vRET = vO + 24; vCA = vRET + 1; vONE = vRET + 2; vCW = vRET + 3; vFLG = vRET + 4; vTR = vRET + 5
    vK = vO + 24 + 7
    vK = (vK + 3) // 4 * 4
    vV = vK + NBUF * 12 * R
    vEND = vV + NBUF * 12 * R
    need_ep = max(NW, NSPLIT) * 6 + 16
    NVGPR = max(vEND, vK + need_ep)
    sHEAD = 24; sSPL = 25; sWAVE = 26; sMASK = 27; sC = 28; sCNT = 29; sLIN = 30; sTMP = 31
    sKO = 32
    NSO = (R + 1) // 2
    sVO = sKO + NSO
    sT0 = 40
    STEP = WGTB * (NSPLIT if ILV else 1)
    UNITB = NBUF * TILEB
    NUNITS = HEADB // UNITB
    assert NUNITS * UNITB == HEADB
    G = NSPLIT * NW
    UMUL = UNITB
    if SHARD:
        G = NSPLIT; UMUL = UNITB * NW; NUNITS //= NW
    sIDX = 38; sFLAG = 39
    CTR_OFF = 0x200000
    if DYN: STEP = TILEB

    e(HEADER + "; @launch grid=(%d,1,1) block=(%d,1,1) lds=%d" % (NWG, NW * 64, LDS))
    e('.amdgcn_target "amdgcn-amd-amdhsa--gfx950"')
    e(".text")
    e(".globl %s" % KNAME)
    e(".p2align 8")
    e(".type %s,@function" % KNAME)
    e("%s:" % KNAME)
    e("    s_cmp_ge_u32 s2, %d" % NWG)
    e("    s_cbranch_scc1 L_done")
    e("    s_load_dwordx4 s[4:7], s[0:1], 0")
    e("    s_load_dwordx4 s[8:11], s[0:1], 16")
    e("    s_load_dwordx4 s[12:15], s[0:1], 32")
    if STAMP:
        e("    s_memrealtime s[%d:%d]" % (sT0, sT0 + 1))
    if MAP == "A":
        e("    s_mov_b32 s%d, s2" % sLIN)
    else:
        e("    s_and_b32 s%d, s2, 7" % sLIN)
        e("    s_mul_i32 s%d, s%d, %d" % (sLIN, sLIN, NWG // 8))
        e("    s_lshr_b32 s%d, s2, 3" % sTMP)
        e("    s_add_u32 s%d, s%d, s%d" % (sLIN, sLIN, sTMP))
    e("    s_lshr_b32 s%d, s%d, %d" % (sHEAD, sLIN, LOGS))
    e("    s_and_b32 s%d, s%d, %d" % (sSPL, sLIN, NSPLIT - 1))
    e("    v_lshrrev_b32 v%d, 6, v0" % vA)
    e("    v_and_b32 v%d, 63, v0" % vLANE)
    e("    v_readfirstlane_b32 s%d, v%d" % (sWAVE, vA))
    e("    v_lshrrev_b32 v%d, 3, v%d" % (vT, vLANE))
    e("    v_and_b32 v%d, 7, v%d" % (vT + 1, vLANE))
    e("    v_lshlrev_b32 v%d, 4, v%d" % (vT + 1, vT + 1))
    e("    v_mul_u32_u24 v%d, %d, v%d" % (vT, ROWB, vT))
    e("    v_add_u32 v%d, v%d, v%d" % (vOFF, vT, vT + 1))
    if DYN and SHARD:
        e("    s_mul_i32 s%d, s%d, %d" % (sTMP, sHEAD, HEADB))
        e("    s_mul_i32 s%d, s%d, %d" % (sCNT, sWAVE, UNITB))
        e("    s_add_u32 s%d, s%d, s%d" % (sTMP, sTMP, sCNT))
        e("    s_sub_u32 s18, %d, s%d" % (HEADB, sCNT))
    elif DYN:
        e("    s_mul_i32 s%d, s%d, %d" % (sTMP, sHEAD, HEADB))
        e("    s_mov_b32 s18, %d" % HEADB)
    elif ILV:
        e("    s_mul_i32 s%d, s%d, %d" % (sTMP, sHEAD, HEADB))
        e("    s_mul_i32 s%d, s%d, %d" % (sCNT, sSPL, WGTB))
        e("    s_add_u32 s%d, s%d, s%d" % (sTMP, sTMP, sCNT))
        e("    s_sub_u32 s18, %d, s%d" % (HEADB, sCNT))
    else:
        e("    s_mul_i32 s%d, s%d, %d" % (sTMP, sLIN, CHUNKB))
        e("    s_mov_b32 s18, %d" % CHUNKB)
    e("    s_mov_b32 s22, s18")
    e("    s_mov_b32 s19, 0x00020000")
    e("    s_mov_b32 s23, 0x00020000")
    if DYN:
        if SHARD and SP == 0:
            e("    s_mov_b32 s%d, s%d" % (sIDX, sSPL))
            SSTEP = NSPLIT
        elif SHARD:
            e("    s_mul_i32 s%d, s%d, %d" % (sIDX, sSPL, NS))
            SSTEP = 1
        elif SP == 0:
            e("    s_mul_i32 s%d, s%d, %d" % (sIDX, sSPL, NW))
            e("    s_add_u32 s%d, s%d, s%d" % (sIDX, sIDX, sWAVE))
            SSTEP = G
        elif SP == 1:
            e("    s_mul_i32 s%d, s%d, %d" % (sIDX, sSPL, NW))
            e("    s_add_u32 s%d, s%d, s%d" % (sIDX, sIDX, sWAVE))
            e("    s_mul_i32 s%d, s%d, %d" % (sIDX, sIDX, NS))
            SSTEP = 1
        else:
            e("    s_mul_i32 s%d, s%d, %d" % (sIDX, sSPL, NW * NS))
            e("    s_add_u32 s%d, s%d, s%d" % (sIDX, sIDX, sWAVE))
            SSTEP = NW
        e("    s_mul_i32 s%d, s%d, %d" % (sKO, sIDX, UMUL))
        e("    s_mul_i32 s%d, s%d, %d" % (sFLAG, sHEAD, CSTRIDE))
        e("    v_mov_b32 v%d, s%d" % (vCA, sFLAG))
        e("    v_mov_b32 v%d, 1" % vONE)
        if DYN == 1: e("    s_sub_u32 s%d, s%d, %d" % (sFLAG, sIDX, G))
        else: e("    s_sub_u32 s%d, s%d, %d" % (sFLAG, sIDX, NS * G - (NS - 1) * SSTEP))
        e("    v_mov_b32 v%d, s%d" % (vRET, sFLAG))
        if DYN == 2:
            if SHARD:
                e("    s_mul_i32 s%d, s%d, %d" % (sFLAG, sHEAD, NW))
                e("    s_add_u32 s%d, s%d, s%d" % (sFLAG, sFLAG, sWAVE))
                e("    s_lshl_b32 s%d, s%d, %d" % (sFLAG, sFLAG, CWS))
            else:
                e("    s_lshl_b32 s%d, s%d, %d" % (sFLAG, sHEAD, CWS))
            e("    s_add_u32 s%d, s%d, 0x%x" % (sFLAG, sFLAG, CTR_OFF))
            e("    v_mov_b32 v%d, s%d" % (vCW, sFLAG))
            e("    v_mov_b32 v%d, 0" % vFLG)
            e("    s_mov_b32 s%d, 0" % sFLAG)
    else:
        e("    s_mul_i32 s%d, s%d, %d" % (sKO, sWAVE, TILEB))
    for i in range(1, NSO):
        e("    s_add_u32 s%d, s%d, %d" % (sKO + i, sKO, i * 2 * 8 * ROWB))
    for i in range(NSO):
        e("    s_mov_b32 s%d, s%d" % (sVO + i, sKO + i))
    e("    s_mul_i32 s%d, s%d, %d" % (sCNT, sHEAD, ROWB))
    e("    v_add_u32 v%d, s%d, v%d" % (vT + 1, sCNT, vT + 1))
    e("    s_waitcnt lgkmcnt(0)")
    e("    s_add_u32 s16, s6, s%d" % sTMP)
    e("    s_addc_u32 s17, s7, 0")
    e("    s_add_u32 s20, s8, s%d" % sTMP)
    e("    s_addc_u32 s21, s9, 0")
    e("    s_and_b32 s17, s17, 0xffff")
    e("    s_and_b32 s21, s21, 0xffff")

    def kreg(b, r, j): return vK + (b * R + r) * 12 + j * 4
    def vreg(b, r, j): return vV + (b * R + r) * 12 + j * 4
    def loadK(b, r):
        for j in range(3):
            rr = kreg(b, r, j)
            e("    buffer_load_dwordx4 v[%d:%d], v%d, s[16:19], s%d offen offset:%d%s" %
              (rr, rr + 3, vOFF, sKO + r // 2, (r & 1) * 8 * ROWB + j * 128, pol))
    def loadV(b, r):
        for j in range(3):
            rr = vreg(b, r, j)
            e("    buffer_load_dwordx4 v[%d:%d], v%d, s[20:23], s%d offen offset:%d%s" %
              (rr, rr + 3, vOFF, sVO + r // 2, (r & 1) * 8 * ROWB + j * 128, pol))
    def advK():
        for i in range(NSO): e("    s_add_u32 s%d, s%d, %d" % (sKO + i, sKO + i, STEP))
    def advV():
        for i in range(NSO): e("    s_add_u32 s%d, s%d, %d" % (sVO + i, sVO + i, STEP))

    if DYN == 2:
        e("    s_cmp_lg_u32 s%d, 0" % sWAVE)
        e("    s_cbranch_scc1 L_noelect")
        e("    s_mov_b64 exec, 1")
        e("    global_atomic_add v%d, v%d, v%d, s[12:13] sc0 sc1" % (vA, vCA, vONE))
        e("    s_mov_b64 exec, -1")
        e("L_noelect:")
    for r in range(R): loadK(0, r)
    advK()
    for j in range(3):
        e("    global_load_dwordx4 v[%d:%d], v%d, s[4:5] offset:%d" % (vQ + 4 * j, vQ + 4 * j + 3, vT + 1, j * 128))
    for r in range(R): loadV(0, r)
    advV()
    for b in range(1, NBUF):
        for r in range(R): loadK(b, r)
        advK()
        for r in range(R): loadV(b, r)
        advV()
    if TRACE:
        e("    s_mul_i32 s52, s2, %d" % NW)
        e("    s_add_u32 s52, s52, s%d" % sWAVE)
        e("    s_lshl_b32 s52, s52, 10")
        e("    s_add_u32 s52, s52, 0x400000")
        e("    v_mov_b32 v%d, s52" % vTR)
    e("    s_mov_b32 s%d, 0xffff0000" % sMASK)
    e("    s_mov_b32 s%d, %s" % (sC, f32hex(C)))
    e("    s_mov_b32 s%d, %d" % (sCNT, NT // NBUF))
    e("    v_mov_b32 v%d, 0xff800000" % vM)
    e("    v_mov_b32 v%d, 0xff800000" % vMC)
    e("    v_mov_b32 v%d, 0" % vL)
    for i in range(24): e("    v_mov_b32 v%d, 0" % (vO + i))
    if DYN == 2:
        e("    s_cmp_lg_u32 s%d, 0" % sWAVE)
        e("    s_cbranch_scc1 L_noinit")
        e("    s_waitcnt vmcnt(%d)" % (3 + 6 * R * NBUF))
        e("    v_readfirstlane_b32 s%d, v%d" % (sTMP, vA))
        e("    s_cmp_lg_u32 s%d, 0" % sTMP)
        e("    s_cbranch_scc1 L_noinit")
        if SHARD:
            e("    v_lshlrev_b32 v%d, %d, v%d" % (vT, CWS, vLANE))
            e("    v_add_u32 v%d, v%d, v%d" % (vT, vT, vCW))
            e("    s_mov_b64 exec, %d" % ((1 << NW) - 1))
            e("    global_store_dword v%d, v%d, s[14:15] sc0 sc1" % (vT, vL))
            e("    s_mov_b64 exec, 1")
        else:
            e("    s_mov_b64 exec, 1")
            e("    global_store_dword v%d, v%d, s[14:15] sc0 sc1" % (vCW, vL))
        e("    s_waitcnt vmcnt(0)")
        e("    global_store_dword v%d, v%d, s[12:13] offset:4 sc0 sc1" % (vCA, vONE))
        e("    s_mov_b64 exec, -1")
        e("L_noinit:")
        e("    s_mov_b32 s%d, %d" % (sCNT, NS - 2))
    e("    s_waitcnt vmcnt(%d)" % (3 * R + 6 * R * (NBUF - 1)))
    def body(mode):
        for b in range(NBUF):
            for r0 in range(0, R, 2):
                rs = [r for r in (r0, r0 + 1) if r < R]
                n = 3 * (R - 1 - rs[-1]) + 3 * R + 6 * R * (NBUF - 1)
                if DYN and b > 0: n += 1
                e("    s_waitcnt vmcnt(%d)" % n)
                for j in range(3):
                    for i in range(4):
                        for r in rs:
                            if j == 0 and i == 0:
                                e("    v_dot2_f32_bf16 v%d, v%d, v%d, 0" % (vS + r, kreg(b, r, j) + i, vQ + 4 * j + i))
                            else:
                                e("    v_dot2_f32_bf16 v%d, v%d, v%d, v%d" % (vS + r, kreg(b, r, j) + i, vQ + 4 * j + i, vS + r))
            if DYN and b == 0:
                if mode == "S":
                    e("    v_readfirstlane_b32 s%d, v%d" % (sFLAG, vFLG))
                    e("    s_mov_b64 exec, 1")
                    e("    global_load_dword v%d, v%d, s[12:13] offset:4 sc0 sc1" % (vFLG, vCA))
                    if DUMMY == 1:
                        e("    global_atomic_add v%d, v%d, v%d, s[14:15] offset:64 sc0 sc1" % (vTR + 1, vCW, vONE))
                    if DUMMY == 2:
                        e("    global_load_dword v%d, v%d, s[14:15] offset:64 sc0 sc1" % (vTR + 1, vCW))
                    e("    s_mov_b64 exec, -1")
                    e("    s_add_u32 s%d, s%d, %d" % (sIDX, sIDX, SSTEP))
                else:
                    e("    v_readfirstlane_b32 s%d, v%d" % (sIDX, vRET))
                    e("    s_mov_b64 exec, 1")
                    if DYN == 1:
                        e("    global_atomic_add v%d, v%d, v%d, s[12:13] sc0 sc1" % (vRET, vCW if False else vCA, vONE))
                    else:
                        e("    global_atomic_add v%d, v%d, v%d, s[14:15] sc0 sc1" % (vRET, vCW, vONE))
                    e("    s_mov_b64 exec, -1")
                    e("    s_add_u32 s%d, s%d, %d" % (sIDX, sIDX, (2 if DYN == 1 else NS) * G))
                    e("    s_min_u32 s%d, s%d, %d" % (sIDX, sIDX, NUNITS))
                e("    s_mul_i32 s%d, s%d, %d" % (sKO, sIDX, UMUL))
                for i in range(1, NSO):
                    e("    s_add_u32 s%d, s%d, %d" % (sKO + i, sKO, i * 2 * 8 * ROWB))
                for i in range(NSO):
                    e("    s_mov_b32 s%d, s%d" % (sVO + i, sKO + i))
            for r in range(R): loadK(b, r)
            advK()
            for pat in ("quad_perm:[1,0,3,2]", "quad_perm:[2,3,0,1]", "row_half_mirror"):
                for r in range(R):
                    e("    v_add_f32_dpp v%d, v%d, v%d %s row_mask:0xf bank_mask:0xf" % (vS + r, vS + r, vS + r, pat))
                if R < 3: e("    s_nop %d" % (2 - R))
            rest = list(range(R))
            while rest:
                if len(rest) >= 2:
                    a, c = rest.pop(0), rest.pop(0)
                    e("    v_max3_f32 v%d, v%d, v%d, v%d" % (vM, vM, vS + a, vS + c))
                else:
                    a = rest.pop(0)
                    e("    v_max_f32 v%d, v%d, v%d" % (vM, vM, vS + a))
            e("    v_mov_b32 v%d, v%d" % (vA, vMC))
            e("    v_mul_f32 v%d, s%d, v%d" % (vMC, sC, vM))
            e("    v_sub_f32 v%d, v%d, v%d" % (vA, vA, vMC))
            for r in range(R):
                e("    v_fma_f32 v%d, v%d, s%d, -v%d" % (vS + r, vS + r, sC, vMC))
            e("    v_exp_f32 v%d, v%d" % (vA, vA))
            for r in range(R):
                e("    v_exp_f32 v%d, v%d" % (vS + r, vS + r))
            for i in range(12):
                e("    v_pk_mul_f32 v[%d:%d], v[%d:%d], v[%d:%d] op_sel:[0,1] op_sel_hi:[1,1]" %
                  (vO + 2 * i, vO + 2 * i + 1, vO + 2 * i, vO + 2 * i + 1, vA - 1, vA))
            e("    v_fma_f32 v%d, v%d, v%d, v%d" % (vL, vL, vA, vS))
            for r in range(1, R):
                e("    v_add_f32 v%d, v%d, v%d" % (vL, vL, vS + r))
            tix = 0
            for r in range(R):
                n = 3 * (R - 1) + 3 * R + 6 * R * (NBUF - 1)
                if DYN: n += 1
                e("    s_waitcnt vmcnt(%d)" % n)
                p = vS + r
                pb = p & ~1
                sel = "op_sel:[0,%d,0] op_sel_hi:[1,%d,1]" % (p & 1, p & 1)
                items = [(j, i) for j in range(3) for i in range(4)]
                pend = []
                for (j, i) in items:
                    t = vT + 2 * (tix % 4); tix += 1
                    src = vreg(b, r, j) + i
                    e("    v_lshlrev_b32 v%d, 16, v%d" % (t, src))
                    e("    v_and_b32 v%d, s%d, v%d" % (t + 1, sMASK, src))
                    pend.append((t, vO + j * 8 + 2 * i))
                    if len(pend) > 1:
                        tt, oo = pend.pop(0)
                        e("    v_pk_fma_f32 v[%d:%d], v[%d:%d], v[%d:%d], v[%d:%d] %s" % (oo, oo + 1, tt, tt + 1, pb, pb + 1, oo, oo + 1, sel))
                for tt, oo in pend:
                    e("    v_pk_fma_f32 v[%d:%d], v[%d:%d], v[%d:%d], v[%d:%d] %s" % (oo, oo + 1, tt, tt + 1, pb, pb + 1, oo, oo + 1, sel))
                loadV(b, r)
            advV()
        if TRACE:
            e("    s_memrealtime s[50:51]")
            e("    s_waitcnt lgkmcnt(0)")
            e("    v_mov_b32 v%d, s50" % vT)
            e("    s_mov_b64 exec, 1")
            e("    global_store_dword v%d, v%d, s[14:15]" % (vTR, vT))
            e("    s_mov_b64 exec, -1")
            e("    v_add_u32 v%d, 4, v%d" % (vTR, vTR))
    if DYN == 2:
        assert NS >= 4 and NS * G <= NUNITS
        e("L_sloop:")
        body("S")
        e("    s_sub_u32 s%d, s%d, 1" % (sCNT, sCNT))
        e("    s_cmp_lg_u32 s%d, 0" % sCNT)
        e("    s_cbranch_scc1 L_sloop")
        e("    s_cmp_lg_u32 s%d, 0" % sFLAG)
        e("    s_cbranch_scc1 L_ready")
        e("L_spin:")
        e("    s_waitcnt vmcnt(0)")
        e("    v_readfirstlane_b32 s%d, v%d" % (sFLAG, vFLG))
        e("    s_cmp_lg_u32 s%d, 0" % sFLAG)
        e("    s_cbranch_scc1 L_ready")
        e("    global_load_dword v%d, v%d, s[12:13] offset:4 sc0 sc1" % (vFLG, vCA))
        e("    s_branch L_spin")
        e("L_ready:")
    e("L_loop:")
    body("D")
    if DYN:
        e("    s_cmp_lt_u32 s%d, %d" % (sIDX, NUNITS))
    else:
        e("    s_sub_u32 s%d, s%d, 1" % (sCNT, sCNT))
        e("    s_cmp_lg_u32 s%d, 0" % sCNT)
    e("    s_cbranch_scc1 L_loop")

    if STAMP:
        e("    s_memrealtime s[%d:%d]" % (sT0 + 2, sT0 + 3))
    t0, t1 = vT, vT + 1
    vMX = vT + 2
    e("    s_nop 1")
    e("    v_max_f32_dpp v%d, v%d, v%d row_ror:8 row_mask:0xf bank_mask:0xf" % (vMX, vMC, vMC))
    e("    s_nop 0")
    e("    v_mov_b32 v%d, v%d" % (t0, vMX))
    e("    s_nop 1")
    e("    v_permlane16_swap_b32 v%d, v%d" % (vMX, t0))
    e("    s_nop 1")
    e("    v_max_f32 v%d, v%d, v%d" % (vMX, vMX, t0))
    e("    s_nop 0")
    e("    v_mov_b32 v%d, v%d" % (t0, vMX))
    e("    s_nop 1")
    e("    v_permlane32_swap_b32 v%d, v%d" % (vMX, t0))
    e("    s_nop 1")
    e("    v_max_f32 v%d, v%d, v%d" % (vMX, vMX, t0))
    e("    v_sub_f32 v%d, v%d, v%d" % (vA, vMC, vMX))
    e("    v_exp_f32 v%d, v%d" % (vA, vA))
    e("    s_nop 0")
    e("    v_mul_f32 v%d, v%d, v%d" % (vL, vL, vA))
    for i in range(12):
        e("    v_pk_mul_f32 v[%d:%d], v[%d:%d], v[%d:%d] op_sel:[0,1] op_sel_hi:[1,1]" %
          (vO + 2 * i, vO + 2 * i + 1, vO + 2 * i, vO + 2 * i + 1, vA - 1, vA))
    vLX = vMX + 1
    e("    v_add_f32_dpp v%d, v%d, v%d row_ror:8 row_mask:0xf bank_mask:0xf" % (vLX, vL, vL))
    for j in range(3):
        for ee in range(4):
            a = vO + j * 8 + ee; b_ = a + 4
            e("    v_permlane32_swap_b32 v%d, v%d" % (a, b_))
    e("    v_mov_b32 v%d, v%d" % (t0, vLX))
    for j in range(3):
        for ee in range(4):
            a = vO + j * 8 + ee; b_ = a + 4
            e("    v_add_f32 v%d, v%d, v%d" % (a, a, b_))
    e("    v_permlane16_swap_b32 v%d, v%d" % (vLX, t0))
    for j in range(3):
        for ee in range(2):
            a = vO + j * 8 + ee; b_ = a + 2
            e("    v_permlane16_swap_b32 v%d, v%d" % (a, b_))
    e("    v_add_f32 v%d, v%d, v%d" % (vLX, vLX, t0))
    for j in range(3):
        for ee in range(2):
            a = vO + j * 8 + ee; b_ = a + 2
            e("    v_add_f32 v%d, v%d, v%d" % (a, a, b_))
    e("    v_mov_b32 v%d, v%d" % (t0, vLX))
    e("    v_and_b32 v%d, 7, v%d" % (vT + 4, vLANE))
    e("    v_lshlrev_b32 v%d, 5, v%d" % (vT + 4, vT + 4))
    e("    v_lshrrev_b32 v%d, 3, v%d" % (vT + 5, vLANE))
    e("    v_lshl_add_u32 v%d, v%d, 2, v%d" % (vT + 4, vT + 5, vT + 4))
    e("    s_mul_i32 s%d, s%d, %d" % (sTMP, sWAVE, PSTR))
    e("    v_permlane32_swap_b32 v%d, v%d" % (vLX, t0))
    for j in range(3):
        a = vO + j * 8
        e("    v_add_f32_dpp v%d, v%d, v%d row_ror:8 row_mask:0xf bank_mask:0x3" % (a + 2, a, a))
    for j in range(3):
        a = vO + j * 8
        e("    v_add_f32_dpp v%d, v%d, v%d row_ror:8 row_mask:0xf bank_mask:0xc" % (a + 2, a + 1, a + 1))
    e("    v_add_f32 v%d, v%d, v%d" % (vLX, vLX, t0))
    e("    v_add_u32 v%d, s%d, v%d" % (vT + 4, sTMP, vT + 4))
    e("    v_mov_b32 v%d, s%d" % (vT + 5, sTMP))
    for j in range(3):
        e("    ds_write_b32 v%d, v%d offset:%d" % (vT + 4, vO + j * 8 + 2, j * 256))
    e("    ds_write_b64 v%d, v[%d:%d] offset:768" % (vT + 5, vMX, vLX))
    e("    s_waitcnt vmcnt(0) lgkmcnt(0)")
    e("    s_barrier")
    e("    s_cmp_lg_u32 s%d, 0" % sWAVE)
    e("    s_cbranch_scc1 L_done")
    vX = vK
    vY = vK + max(NW, NSPLIT) * 4
    vZ = vY + max(NW, NSPLIT) * 2
    e("    v_lshlrev_b32 v%d, 4, v%d" % (vT, vLANE))
    e("    v_mov_b32 v%d, 0" % (vT + 1))
    for w in range(NW):
        e("    ds_read_b64 v[%d:%d], v%d offset:%d" % (vY + 2 * w, vY + 2 * w + 1, vT + 1, w * PSTR + 768))
    for w in range(NW):
        e("    ds_read_b128 v[%d:%d], v%d offset:%d" % (vX + 4 * w, vX + 4 * w + 3, vT, w * PSTR))

    def combine(n, waitfirst, waitsecond):
        e(waitfirst)
        e("    v_mov_b32 v%d, v%d" % (vZ + 4, vY))
        rest = list(range(1, n))
        while rest:
            if len(rest) >= 2:
                a, c = rest.pop(0), rest.pop(0)
                e("    v_max3_f32 v%d, v%d, v%d, v%d" % (vZ + 4, vZ + 4, vY + 2 * a, vY + 2 * c))
            else:
                a = rest.pop(0)
                e("    v_max_f32 v%d, v%d, v%d" % (vZ + 4, vZ + 4, vY + 2 * a))
        for w in range(n):
            e("    v_sub_f32 v%d, v%d, v%d" % (vY + 2 * w, vY + 2 * w, vZ + 4))
        for w in range(n):
            e("    v_exp_f32 v%d, v%d" % (vY + 2 * w, vY + 2 * w))
        e("    s_nop 0")
        e("    v_mul_f32 v%d, v%d, v%d" % (vZ + 5, vY, vY + 1))
        for w in range(1, n):
            e("    v_fma_f32 v%d, v%d, v%d, v%d" % (vZ + 5, vY + 2 * w, vY + 2 * w + 1, vZ + 5))
        e(waitsecond)
        for h in range(2):
            e("    v_pk_mul_f32 v[%d:%d], v[%d:%d], v[%d:%d] op_sel_hi:[1,0]" %
              (vZ + 2 * h, vZ + 2 * h + 1, vX + 2 * h, vX + 2 * h + 1, vY, vY + 1))
        for w in range(1, n):
            for h in range(2):
                e("    v_pk_fma_f32 v[%d:%d], v[%d:%d], v[%d:%d], v[%d:%d] op_sel_hi:[1,0,1]" %
                  (vZ + 2 * h, vZ + 2 * h + 1, vX + 4 * w + 2 * h, vX + 4 * w + 2 * h + 1, vY + 2 * w, vY + 2 * w + 1, vZ + 2 * h, vZ + 2 * h + 1))

    combine(NW, "    s_waitcnt lgkmcnt(%d)" % min(NW, 15), "    s_waitcnt lgkmcnt(0)")
    e("    v_cmp_eq_u32 vcc, 48, v%d" % vLANE)
    e("    s_lshl_b32 s%d, s%d, 10" % (sTMP, sLIN))
    e("    v_add_u32 v%d, s%d, v%d" % (vT + 2, sTMP, vT))
    e("    v_cndmask_b32 v%d, v%d, v%d, vcc" % (vZ, vZ, vZ + 4))
    e("    v_cndmask_b32 v%d, v%d, v%d, vcc" % (vZ + 1, vZ + 1, vZ + 5))
    e("    v_cmp_gt_u32 vcc, 49, v%d" % vLANE)
    e("    s_mul_i32 s%d, s%d, %d" % (sTMP, sHEAD, CSTRIDE))
    e("    v_mov_b32 v%d, s%d" % (vT + 3, sTMP))
    e("    v_mov_b32 v%d, %d" % (vT + 4, 0x100 if DYN == 2 else 1))
    e("    s_mov_b64 exec, vcc")
    e("    global_store_dwordx4 v%d, v[%d:%d], s[14:15] sc0 sc1" % (vT + 2, vZ, vZ + 3))
    if STAMP:
        e("    s_waitcnt lgkmcnt(0)")
        e("    s_memrealtime s[%d:%d]" % (sT0 + 4, sT0 + 5))
    e("    s_mov_b64 exec, 1")
    e("    s_waitcnt vmcnt(0)")
    e("    global_atomic_add v%d, v%d, v%d, s[12:13] offset:%d sc0 sc1" % (vT + 5, vT + 3, vT + 4, 4 if (CSTRIDE >= 8 and DYN != 2) else 0))
    e("    s_waitcnt vmcnt(0)")
    e("    v_readfirstlane_b32 s%d, v%d" % (sTMP, vT + 5))
    e("    s_mov_b64 exec, -1")
    if STAMP:
        e("    s_memrealtime s[%d:%d]" % (sT0 + 6, sT0 + 7))
        e("    s_getreg_b32 s%d, hwreg(HW_REG_XCC_ID)" % (sT0 + 8))
        e("    s_getreg_b32 s%d, hwreg(HW_REG_HW_ID)" % (sT0 + 9))
        e("    s_waitcnt lgkmcnt(0)")
        for i in range(10):
            e("    v_mov_b32 v%d, s%d" % (vX + i, sT0 + i))
        e("    s_lshl_b32 s%d, s2, 6" % (sT0))
        e("    s_add_u32 s%d, s%d, 0x100000" % (sT0, sT0))
        e("    v_mov_b32 v%d, s%d" % (vT + 6, sT0))
        e("    s_mov_b64 exec, 1")
        e("    global_store_dwordx4 v%d, v[%d:%d], s[14:15]" % (vT + 6, vX, vX + 3))
        e("    global_store_dwordx4 v%d, v[%d:%d], s[14:15] offset:16" % (vT + 6, vX + 4, vX + 7))
        e("    global_store_dwordx2 v%d, v[%d:%d], s[14:15] offset:32" % (vT + 6, vX + 8, vX + 9))
        e("    s_waitcnt vmcnt(0)")
        e("    s_mov_b64 exec, -1")
    if DYN == 2: e("    s_lshr_b32 s%d, s%d, 8" % (sTMP, sTMP))
    e("    s_cmp_lg_u32 s%d, %d" % (sTMP, NSPLIT - 1))
    e("    s_cbranch_scc1 L_done")
    e("    s_lshl_b32 s%d, s%d, %d" % (sTMP, sHEAD, 10 + LOGS))
    e("    v_add_u32 v%d, s%d, v%d" % (vT + 2, sTMP, vT))
    e("    v_mov_b32 v%d, s%d" % (vT + 3, sTMP))
    for j in range(NSPLIT):
        if j and j % 4 == 0:
            e("    v_add_u32 v%d, 4096, v%d" % (vT + 3, vT + 3))
        e("    global_load_dwordx2 v[%d:%d], v%d, s[14:15] offset:%d sc0 sc1" % (vY + 2 * j, vY + 2 * j + 1, vT + 3, (j % 4) * 1024 + 768))
    for j in range(NSPLIT):
        if j and j % 4 == 0:
            e("    v_add_u32 v%d, 4096, v%d" % (vT + 2, vT + 2))
        e("    global_load_dwordx4 v[%d:%d], v%d, s[14:15] offset:%d sc0 sc1" % (vX + 4 * j, vX + 4 * j + 3, vT + 2, (j % 4) * 1024))
    combine(NSPLIT, "    s_waitcnt vmcnt(%d)" % NSPLIT, "    s_waitcnt vmcnt(0)")
    e("    v_rcp_f32 v%d, v%d" % (vZ + 4, vZ + 5))
    e("    s_mul_i32 s%d, s%d, %d" % (sTMP, sHEAD, ROWB))
    e("    v_lshlrev_b32 v%d, 3, v%d" % (vT, vLANE))
    e("    v_add_u32 v%d, s%d, v%d" % (vT, sTMP, vT))
    for h in range(2):
        e("    v_pk_mul_f32 v[%d:%d], v[%d:%d], v[%d:%d] op_sel_hi:[1,0]" %
          (vZ + 2 * h, vZ + 2 * h + 1, vZ + 2 * h, vZ + 2 * h + 1, vZ + 4, vZ + 5))
    e("    v_cmp_gt_u32 vcc, 48, v%d" % vLANE)
    e("    v_cvt_pk_bf16_f32 v%d, v%d, v%d" % (vZ, vZ, vZ + 1))
    e("    v_cvt_pk_bf16_f32 v%d, v%d, v%d" % (vZ + 1, vZ + 2, vZ + 3))
    e("    s_mov_b64 exec, vcc")
    e("    global_store_dwordx2 v%d, v[%d:%d], s[10:11]" % (vT, vZ, vZ + 1))
    e("L_done:")
    e("    s_endpgm")
    e('.section .rodata,"a"')
    e(".p2align 6")
    e(".amdhsa_kernel %s" % KNAME)
    e("  .amdhsa_next_free_vgpr %d" % NVGPR)
    e("  .amdhsa_next_free_sgpr 56")
    e("  .amdhsa_accum_offset %d" % ((NVGPR + 3) // 4 * 4))
    e("  .amdhsa_group_segment_fixed_size 0")
    e("  .amdhsa_kernarg_size 48")
    e("  .amdhsa_user_sgpr_count 2")
    e("  .amdhsa_user_sgpr_kernarg_segment_ptr 1")
    e("  .amdhsa_system_sgpr_workgroup_id_x 1")
    e("  .amdhsa_float_denorm_mode_32 3")
    e(".end_amdhsa_kernel")
    return "\n".join(o) + "\n"

if __name__ == "__main__":
    ap = argparse.ArgumentParser()
    ap.add_argument("-o", default="standalone__mha_softmax__decode.s")
    for k, d in dict(NW=8, R=4, NBUF=2, NSPLIT=8, ILV=0, STAMP=0, CSTRIDE=8, DYN=0, NS=8, SP=0, TRACE=0, DUMMY=0, CWS=8, SHARD=0).items():
        ap.add_argument("--" + k, type=int, default=d)
    ap.add_argument("--POL", default="nt")
    ap.add_argument("--MAP", default="A")
    a = vars(ap.parse_args())
    out = a.pop("o")
    open(out, "w").write(gen(**a))
    print("wrote", out)
```

```python
import math, struct, sys, argparse
H = 32; SK = 32768; D = 192
ROWB = D * 2
HEADB = SK * ROWB
NWG = 256
TB = 8 * ROWB
TPH = SK // 8

def f32hex(x):
    return "0x%08x" % struct.unpack("<I", struct.pack("<f", x))[0]

HEADER = """; Kernarg layout for this problem (48 bytes, ptrs only, base s[0:1]):
"""

def gen(W=4, NW=5, SS=94, S=4, POL="nt", STAMP=0, TRACE=0, KNAME="standalone__mha_softmax__decode_kernel"):
    o = []
    e = o.append
    PER = NWG // W; RND = H // W
    LOGP = int(math.log2(PER))
    CT = RND * TPH
    COLB = RND * HEADB
    SST = PER * NW
    LA = 3
    DYN0 = SS * SST
    assert DYN0 <= CT and (SS - LA - 1) * SST >= (RND - 1) * TPH, "static loop must cross the last head boundary"
    NWC = 4; RPW = PER // NWC
    assert NW >= NWC and RPW <= 32 and PER <= 64 and W <= 4
    pol = (" " + POL) if POL else ""
    C = (D ** -0.5) * math.log2(math.e)
    QB = (RND * ROWB + 1023) // 1024 * 1024
    SLOTB = NW * 7168
    RECO = QB + 2 * SLOTB
    MBO = RECO + RND * 1024
    LDS = MBO + 64
    CTR_OFF = 0x800000

    vLANE = 0; vOFF = 1; vM = 2; vA = 3; vS = 4
    vT = 6; vQ = 14; vO = 28; vMC = 52; vL = 53
    vDA = 54; vQA = 55; vTR = 56; vMB = 57; vMBA = 58
    vK = 60; vV = 72
    vX = 60
    NVGPR = max(84, vX + 26 * NW + 2, vX + QB // 256, vX + 4 * RND, vX + 4 * RPW)
    assert NVGPR <= 256
    sCOL = 24; sIDX = 25; sWAVE = 26; sMASK = 27; sC = 28; sCNT = 29; sRND = 30; sTMP = 31
    sKO = 32; sVO = 33; sG = 34; sBND = 35; sBIAS = 36; sNB = 37; sHEAD = 38; sT2 = 39
    sT0 = 40
    sSH = 53; sM0 = 54; sM1 = 55
    sW = 56

    e(HEADER + "; @launch grid=(%d,1,1) block=(%d,1,1) lds=%d" % (NWG, (NW + 1) * 64, LDS))
    if TRACE: e("; UNITBYTES=%d" % (2 * TB))
    e('.amdgcn_target "amdgcn-amd-amdhsa--gfx950"')
    e(".text")
    e(".globl %s" % KNAME)
    e(".p2align 8")
    e(".type %s,@function" % KNAME)
    e("%s:" % KNAME)
    e("    s_cmp_ge_u32 s2, %d" % NWG)
    e("    s_cbranch_scc1 L_done")
    e("    s_load_dwordx4 s[4:7], s[0:1], 0")
    e("    s_load_dwordx4 s[8:11], s[0:1], 16")
    e("    s_load_dwordx4 s[12:15], s[0:1], 32")
    if STAMP:
        e("    s_memrealtime s[%d:%d]" % (sT0, sT0 + 1))
    e("    v_lshrrev_b32 v%d, 6, v0" % vA)
    e("    v_and_b32 v%d, 63, v0" % vLANE)
    e("    v_readfirstlane_b32 s%d, v%d" % (sWAVE, vA))
    e("    s_lshr_b32 s%d, s2, %d" % (sCOL, LOGP))
    e("    s_and_b32 s%d, s2, %d" % (sIDX, PER - 1))
    e("    s_mul_i32 s%d, s%d, %d" % (sHEAD, sCOL, RND))
    e("    s_cmp_eq_u32 s%d, %d" % (sWAVE, NW))
    e("    s_cbranch_scc1 L_service")
    e("    v_lshrrev_b32 v%d, 3, v%d" % (vT, vLANE))
    e("    v_and_b32 v%d, 7, v%d" % (vQA, vLANE))
    e("    v_lshlrev_b32 v%d, 4, v%d" % (vQA, vQA))
    e("    v_mul_u32_u24 v%d, %d, v%d" % (vT, ROWB, vT))
    e("    v_add_u32 v%d, v%d, v%d" % (vOFF, vT, vQA))
    e("    s_mul_i32 s%d, s%d, %d" % (sTMP, sCOL, COLB))
    e("    s_mov_b32 s18, %d" % COLB)
    e("    s_mov_b32 s22, %d" % COLB)
    e("    s_mov_b32 s19, 0x00020000")
    e("    s_mov_b32 s23, 0x00020000")
    e("    s_mul_i32 s%d, s%d, %d" % (sG, sIDX, NW))
    e("    s_add_u32 s%d, s%d, s%d" % (sG, sG, sWAVE))
    e("    s_mul_i32 s%d, s%d, %d" % (sKO, sG, TB))
    e("    s_mul_i32 s%d, s%d, %d" % (sCNT, sHEAD, ROWB))
    e("    v_add_u32 v%d, s%d, v%d" % (vT + 1, sCNT, vQA))
    e("    s_waitcnt lgkmcnt(0)")
    e("    s_add_u32 s16, s6, s%d" % sTMP)
    e("    s_addc_u32 s17, s7, 0")
    e("    s_add_u32 s20, s8, s%d" % sTMP)
    e("    s_addc_u32 s21, s9, 0")
    e("    s_and_b32 s17, s17, 0xffff")
    e("    s_and_b32 s21, s21, 0xffff")
    def loadK(j, so=sKO):
        e("    buffer_load_dwordx4 v[%d:%d], v%d, s[16:19], s%d offen offset:%d%s" % (vK + 4 * j, vK + 4 * j + 3, vOFF, so, j * 128, pol))
    def loadV(j, so=sVO):
        e("    buffer_load_dwordx4 v[%d:%d], v%d, s[20:23], s%d offen offset:%d%s" % (vV + 4 * j, vV + 4 * j + 3, vOFF, so, j * 128, pol))
    for j in range(3): loadK(j)
    for j in range(3): loadV(j, sKO)
    for j in range(3):
        e("    global_load_dwordx4 v[%d:%d], v%d, s[4:5] offset:%d" % (vQ + 4 * j, vQ + 4 * j + 3, vT + 1, j * 128))
    e("    s_add_u32 s%d, s%d, %d" % (sKO, sKO, SST * TB))
    e("    s_mov_b32 s%d, s%d" % (sVO, sKO))
    if TRACE:
        e("    s_mul_i32 s52, s2, %d" % (NW + 1))
        e("    s_add_u32 s52, s52, s%d" % sWAVE)
        e("    s_lshl_b32 s52, s52, 10")
        e("    s_add_u32 s52, s52, 0x1100000")
        e("    v_mov_b32 v%d, s52" % vTR)
    e("    s_mov_b32 s%d, 0xffff0000" % sMASK)
    e("    s_mov_b32 s%d, %s" % (sC, f32hex(C)))
    e("    s_mov_b32 s%d, %d" % (sBND, TPH))
    e("    s_mov_b32 s%d, %d" % (sCNT, SS - LA))
    e("    s_mul_i32 s%d, s%d, 7168" % (sTMP, sWAVE))
    e("    s_add_u32 s%d, s%d, %d" % (sTMP, sTMP, QB))
    e("    v_lshlrev_b32 v%d, 4, v%d" % (vDA, vLANE))
    e("    v_add_u32 v%d, s%d, v%d" % (vDA, sTMP, vDA))
    e("    s_mov_b32 s%d, %d" % (sT2, SLOTB))
    e("    v_mov_b32 v%d, %d" % (vMBA, MBO))
    def init_state():
        e("    v_mov_b32 v%d, 0xff800000" % vM)
        e("    v_mov_b32 v%d, 0xff800000" % vMC)
        e("    v_mov_b32 v%d, 0" % vL)
        for i in range(24): e("    v_mov_b32 v%d, 0" % (vO + i))
    init_state()
    e("    s_waitcnt vmcnt(0)")
    def dump():
        for c in range(6):
            e("    ds_write_b128 v%d, v[%d:%d] offset:%d" % (vDA, vO + 4 * c, vO + 4 * c + 3, c * 1024))
        e("    ds_write_b64 v%d, v[%d:%d] offset:6144" % (vDA, vMC, vL))

    def tile(ls):
        e("    s_waitcnt vmcnt(3)")
        items = [(j, i) for j in range(3) for i in range(4)]
        for n_, (j, i) in enumerate(items):
            acc = vS if n_ % 2 == 0 else vT
            if n_ < 2:
                e("    v_dot2_f32_bf16 v%d, v%d, v%d, 0" % (acc, vK + 4 * j + i, vQ + 4 * j + i))
            else:
                e("    v_dot2_f32_bf16 v%d, v%d, v%d, v%d" % (acc, vK + 4 * j + i, vQ + 4 * j + i, acc))
        if ls:
            e("    s_waitcnt lgkmcnt(0)")
            e("    v_readfirstlane_b32 s%d, v%d" % (sNB, vMB))
            e("    v_xor_b32 v%d, 4, v%d" % (vMBA, vMBA))
            e("    s_add_u32 s%d, s%d, s%d" % (sG, sNB, sWAVE))
            e("    s_min_u32 s%d, s%d, %d" % (sKO, sG, CT))
            e("    s_mul_i32 s%d, s%d, %d" % (sKO, sKO, TB))
            e("    s_mov_b32 s%d, s%d" % (sVO, sKO))
        for j in range(3): loadK(j)
        if not ls:
            e("    s_add_u32 s%d, s%d, %d" % (sKO, sKO, SST * TB))
        e("    v_add_f32 v%d, v%d, v%d" % (vS, vS, vT))
        e("    s_nop 1")
        for pat in ("quad_perm:[1,0,3,2]", "quad_perm:[2,3,0,1]", "row_half_mirror"):
            e("    v_add_f32_dpp v%d, v%d, v%d %s row_mask:0xf bank_mask:0xf" % (vS, vS, vS, pat))
            if pat != "row_half_mirror": e("    s_nop 1")
        if ls:
            e("    v_add_f32 v%d, s%d, v%d" % (vS, sBIAS, vS))
        e("    v_max_f32 v%d, v%d, v%d" % (vM, vM, vS))
        e("    v_mov_b32 v%d, v%d" % (vA, vMC))
        e("    v_mul_f32 v%d, s%d, v%d" % (vMC, sC, vM))
        e("    v_sub_f32 v%d, v%d, v%d" % (vA, vA, vMC))
        e("    v_fma_f32 v%d, v%d, s%d, -v%d" % (vS, vS, sC, vMC))
        e("    v_exp_f32 v%d, v%d" % (vA, vA))
        e("    v_exp_f32 v%d, v%d" % (vS, vS))
        for i in range(12):
            e("    v_pk_mul_f32 v[%d:%d], v[%d:%d], v[%d:%d] op_sel:[0,1] op_sel_hi:[1,1]" %
              (vO + 2 * i, vO + 2 * i + 1, vO + 2 * i, vO + 2 * i + 1, vA - 1, vA))
        e("    v_fma_f32 v%d, v%d, v%d, v%d" % (vL, vL, vA, vS))
        for j in range(3):
            e("    s_waitcnt vmcnt(5)")
            for i in range(4):
                e("    v_lshlrev_b32 v%d, 16, v%d" % (vT + 2 * i, vV + 4 * j + i))
                e("    v_and_b32 v%d, s%d, v%d" % (vT + 2 * i + 1, sMASK, vV + 4 * j + i))
            loadV(j)
            for i in range(4):
                oo = vO + j * 8 + 2 * i
                e("    v_pk_fma_f32 v[%d:%d], v[%d:%d], v[%d:%d], v[%d:%d] op_sel_hi:[1,0,1]" %
                  (oo, oo + 1, vT + 2 * i, vT + 2 * i + 1, vS, vS + 1, oo, oo + 1))
        if not ls:
            e("    s_add_u32 s%d, s%d, %d" % (sVO, sVO, SST * TB))
            e("    s_add_u32 s%d, s%d, %d" % (sG, sG, SST))
        if TRACE:
            e("    s_memrealtime s[50:51]")
            e("    s_waitcnt lgkmcnt(0)")
            e("    v_mov_b32 v%d, s50" % vT)
            e("    s_mov_b64 exec, 1")
            e("    global_store_dword v%d, v%d, s[14:15]" % (vTR, vT))
            e("    s_mov_b64 exec, -1")
            e("    v_add_u32 v%d, 4, v%d" % (vTR, vTR))

    e("L_static:")
    e("    s_cmp_ge_u32 s%d, s%d" % (sG, sBND))
    e("    s_cbranch_scc1 L_bound")
    e("L_back:")
    tile(False)
    e("    s_sub_u32 s%d, s%d, 1" % (sCNT, sCNT))
    e("    s_cmp_lg_u32 s%d, 0" % sCNT)
    e("    s_cbranch_scc1 L_static")
    e("L_ls:")
    e("    s_barrier")
    e("    ds_read_b32 v%d, v%d" % (vMB, vMBA))
    e("    s_cmp_lt_u32 s%d, %d" % (sG, CT))
    e("    s_cselect_b32 s%d, 0, 0xff800000" % sBIAS)
    tile(True)
    e("    s_cmp_lt_u32 s%d, %d" % (sNB, CT))
    e("    s_cbranch_scc1 L_ls")
    dump()
    e("    s_waitcnt lgkmcnt(0)")
    e("    s_barrier")
    e("    s_cmp_ge_u32 s%d, %d" % (sIDX, RND))
    e("    s_cbranch_scc1 L_done")
    e("    s_cmp_ge_u32 s%d, %d" % (sWAVE, NWC))
    e("    s_cbranch_scc1 L_done")
    cA = vT; cB = vT + 1; cT = vT + 2; cT1 = vT + 3; cMX = vT + 4; cLX = vT + 5; cOW = vT + 6; cW = vT + 7
    cM = vQ; cACC = vQ + 2; cX = vX; cO = vQ + 6; cLB = vQ + 7
    e("    s_add_u32 s%d, s%d, s%d" % (sHEAD, sHEAD, sIDX))
    e("    s_lshl_b32 s%d, s%d, %d" % (sTMP, sHEAD, LOGP + 10))
    e("    v_min_u32 v%d, %d, v%d" % (cA, PER - 1, vLANE))
    e("    v_lshlrev_b32 v%d, 10, v%d" % (cA, cA))
    e("    v_add_u32 v%d, s%d, v%d" % (cA, sTMP, cA))
    e("    s_mul_i32 s%d, s%d, %d" % (sCNT, sWAVE, RPW * 1024))
    e("    s_add_u32 s%d, s%d, s%d" % (sCNT, sCNT, sTMP))
    e("    v_lshlrev_b32 v%d, 4, v%d" % (cLB, vLANE))
    e("    v_add_u32 v%d, s%d, v%d" % (cB, sCNT, cLB))
    e("    v_min_u32 v%d, %d, v%d" % (cT, RPW - 1, vLANE))
    e("    v_lshlrev_b32 v%d, 10, v%d" % (cT, cT))
    e("    v_add_u32 v%d, s%d, v%d" % (cT, sCNT, cT))
    e("    v_and_b32 v%d, 7, v%d" % (cO, vLANE))
    e("    v_lshlrev_b32 v%d, 4, v%d" % (cO, cO))
    e("    v_lshrrev_b32 v%d, 3, v%d" % (cT1, vLANE))
    e("    v_lshl_add_u32 v%d, v%d, 1, v%d" % (cO, cT1, cO))
    e("    s_mul_i32 s%d, s%d, %d" % (sTMP, sHEAD, ROWB))
    e("    v_add_u32 v%d, s%d, v%d" % (cO, sTMP, cO))
    e("    s_lshl_b32 s%d, s%d, 10" % (sTMP, sWAVE))
    e("    v_add_u32 v%d, s%d, v%d" % (cW, sTMP, cLB))
    e("    s_waitcnt vmcnt(0)")
    e("    s_barrier")
    if STAMP: e("    s_memrealtime s[42:43]")
    e("    global_load_dword v%d, v%d, s[14:15] offset:12 sc1" % (cM, cA))
    e("    global_load_dword v%d, v%d, s[14:15] offset:28 sc1" % (cM + 1, cA))
    e("    global_load_dword v%d, v%d, s[14:15] offset:12 sc1" % (cOW, cT))
    for j in range(RPW):
        e("    global_load_dwordx4 v[%d:%d], v%d, s[14:15] offset:%d sc1" % (cX + 4 * j, cX + 4 * j + 3, cB, (j % 4) * 1024))
        if j % 4 == 3 and j + 1 < RPW:
            e("    v_add_u32 v%d, 4096, v%d" % (cB, cB))
    e("    s_waitcnt vmcnt(%d)" % RPW)
    if STAMP: e("    s_memrealtime s[44:45]")
    e("    v_mov_b32 v%d, v%d" % (cMX, cM))
    def allreduce(op, r, t):
        e("    s_nop 1")
        for pat in ("quad_perm:[1,0,3,2]", "quad_perm:[2,3,0,1]", "row_half_mirror", "row_ror:8"):
            e("    %s_dpp v%d, v%d, v%d %s row_mask:0xf bank_mask:0xf" % (op, r, r, r, pat))
            e("    s_nop 1")
        for sw in ("v_permlane16_swap_b32", "v_permlane32_swap_b32"):
            e("    v_mov_b32 v%d, v%d" % (t, r))
            e("    s_nop 1")
            e("    %s v%d, v%d" % (sw, r, t))
            e("    s_nop 0")
            e("    %s v%d, v%d, v%d" % (op, r, r, t))
    allreduce("v_max_f32", cMX, cT)
    e("    v_sub_f32 v%d, v%d, v%d" % (cM, cM, cMX))
    e("    v_sub_f32 v%d, v%d, v%d" % (cOW, cOW, cMX))
    e("    v_exp_f32 v%d, v%d" % (cM, cM))
    e("    v_exp_f32 v%d, v%d" % (cOW, cOW))
    if PER < 64:
        e("    v_cmp_gt_u32 vcc, %d, v%d" % (PER, vLANE))
    e("    v_mul_f32 v%d, v%d, v%d" % (cLX, cM, cM + 1))
    if PER < 64:
        e("    s_nop 0")
        e("    v_cndmask_b32 v%d, 0, v%d, vcc" % (cLX, cLX))
    allreduce("v_add_f32", cLX, cT)
    e("    v_rcp_f32 v%d, v%d" % (cLX, cLX))
    e("    v_mov_b32 v%d, 0" % cACC)
    e("    v_mov_b32 v%d, 0" % (cACC + 1))
    e("    v_mul_f32 v%d, v%d, v%d" % (cOW, cOW, cLX))
    e("    v_mov_b32 v%d, 0" % (cACC + 2))
    for j in range(RPW):
        e("    v_readlane_b32 s%d, v%d, %d" % (sW + j, cOW, j))
    e("    s_nop 0")
    if STAMP: e("    s_memrealtime s[46:47]")
    for j in range(RPW):
        if j % 4 == 0:
            e("    s_waitcnt vmcnt(%d)" % (RPW - 4 - j))
        sp = (sW + j) & ~1; hi = (sW + j) & 1
        e("    v_pk_fma_f32 v[%d:%d], v[%d:%d], s[%d:%d], v[%d:%d] op_sel:[0,%d,0] op_sel_hi:[1,%d,1]" %
          (cACC, cACC + 1, cX + 4 * j, cX + 4 * j + 1, sp, sp + 1, cACC, cACC + 1, hi, hi))
        e("    v_fma_f32 v%d, v%d, s%d, v%d" % (cACC + 2, cX + 4 * j + 2, sW + j, cACC + 2))
    if STAMP: e("    s_memrealtime s[48:49]")
    e("    ds_write_b128 v%d, v[%d:%d]" % (cW, cACC, cACC + 3))
    e("    s_waitcnt lgkmcnt(0)")
    e("    s_barrier")
    e("    s_cmp_lg_u32 s%d, 0" % sWAVE)
    e("    s_cbranch_scc1 L_done")
    for w in range(1, NWC):
        e("    ds_read_b128 v[%d:%d], v%d offset:%d" % (cX + 4 * w, cX + 4 * w + 3, cLB, w * 1024))
    for w in range(1, NWC):
        e("    s_waitcnt lgkmcnt(%d)" % (NWC - 1 - w))
        e("    v_pk_add_f32 v[%d:%d], v[%d:%d], v[%d:%d]" % (cACC, cACC + 1, cACC, cACC + 1, cX + 4 * w, cX + 4 * w + 1))
        e("    v_add_f32 v%d, v%d, v%d" % (cACC + 2, cACC + 2, cX + 4 * w + 2))
    e("    v_cvt_pk_bf16_f32 v%d, v%d, v%d" % (cACC, cACC, cACC + 1))
    e("    v_cvt_pk_bf16_f32 v%d, v%d, v%d" % (cACC + 2, cACC + 2, cACC + 2))
    e("    global_store_short v%d, v%d, s[10:11]" % (cO, cACC))
    e("    global_store_short_d16_hi v%d, v%d, s[10:11] offset:128" % (cO, cACC))
    e("    global_store_short v%d, v%d, s[10:11] offset:256" % (cO, cACC + 2))
    if STAMP:
        e("    s_waitcnt vmcnt(0)")
        e("    s_memrealtime s[50:51]")
        e("    s_lshl_b32 s%d, s2, 6" % sTMP)
        e("    s_add_u32 s%d, s%d, 0x1000000" % (sTMP, sTMP))
        e("    v_mov_b32 v%d, s%d" % (cT, sTMP))
        e("    s_waitcnt lgkmcnt(0)")
        e("    v_mov_b32 v%d, s50" % cACC)
        e("    v_mov_b32 v%d, s51" % (cACC + 1))
        e("    s_mov_b64 exec, 1")
        e("    global_store_dwordx2 v%d, v[%d:%d], s[14:15] offset:48" % (cT, cACC, cACC + 1))
        for i in range(4): e("    v_mov_b32 v%d, s%d" % (cX + i, 42 + 2 * i))
        e("    v_add_u32 v%d, 0x8000, v%d" % (cT, cT))
        e("    global_store_dwordx4 v%d, v[%d:%d], s[14:15]" % (cT, cX, cX + 3))
    e("    s_endpgm")
    e("L_bound:")
    dump()
    e("    v_add_u32 v%d, s%d, v%d" % (vDA, sT2, vDA))
    e("    s_sub_u32 s%d, 0, s%d" % (sT2, sT2))
    e("    v_add_u32 v%d, %d, v%d" % (vQA, ROWB, vQA))
    e("    s_add_u32 s%d, s%d, %d" % (sBND, sBND, TPH))
    e("    s_waitcnt lgkmcnt(0)")
    e("    s_barrier")
    for j in range(3):
        e("    ds_read_b128 v[%d:%d], v%d offset:%d" % (vQ + 4 * j, vQ + 4 * j + 3, vQA, j * 128))
    init_state()
    e("    s_waitcnt lgkmcnt(0)")
    e("    s_branch L_back")

    e("L_service:")
    vAD = vT; vRA = vT + 1; vCA = vT + 2; vONE = vT + 3; vMX = vT + 4; vLX = vT + 5; t0 = vT + 6; t1 = vT + 7
    vR0 = vQ; vR1 = vQ + 1; vZERO = vQ + 2; vRL = vQ + 3; vCW = vQ + 4; vZ = vQ + 6
    e("    v_lshlrev_b32 v%d, 4, v%d" % (vAD, vLANE))
    e("    s_mul_i32 s%d, s%d, %d" % (sTMP, sHEAD, ROWB))
    e("    v_add_u32 v%d, s%d, v%d" % (vRA, sTMP, vAD))
    e("    v_mov_b32 v%d, 1" % vONE)
    e("    v_mov_b32 v%d, 0" % vZERO)
    e("    s_waitcnt lgkmcnt(0)")
    e("    s_mov_b32 s16, s4")
    e("    s_and_b32 s17, s5, 0xffff")
    e("    s_mov_b32 s18, %d" % (H * ROWB))
    e("    s_mov_b32 s19, 0x00020000")
    for k in range(QB // 1024):
        if k and k % 4 == 0: e("    v_add_u32 v%d, 4096, v%d" % (vRA, vRA))
        e("    buffer_load_dwordx4 v[%d:%d], v%d, s[16:19], 0 offen offset:%d" % (vX + 4 * k, vX + 4 * k + 3, vRA, (k % 4) * 1024))
    e("    s_lshl_b32 s%d, s%d, %d" % (sTMP, sHEAD, LOGP))
    e("    s_add_u32 s%d, s%d, s%d" % (sTMP, sTMP, sIDX))
    e("    s_lshl_b32 s%d, s%d, 10" % (sTMP, sTMP))
    e("    v_add_u32 v%d, s%d, v%d" % (vRA, sTMP, vAD))
    e("    s_lshl_b32 s%d, s%d, 6" % (sTMP, sCOL))
    e("    v_mov_b32 v%d, s%d" % (vCA, sTMP))
    e("    s_lshr_b32 s%d, s%d, 3" % (sSH, sIDX))
    e("    s_and_b32 s%d, s%d, %d" % (sSH, sSH, S - 1))
    e("    s_mul_i32 s%d, s%d, %d" % (sTMP, sCOL, S))
    e("    s_add_u32 s%d, s%d, s%d" % (sTMP, sTMP, sSH))
    e("    s_lshl_b32 s%d, s%d, 8" % (sTMP, sTMP))
    e("    s_add_u32 s%d, s%d, 0x%x" % (sTMP, sTMP, CTR_OFF))
    e("    v_mov_b32 v%d, s%d" % (vCW, sTMP))
    e("    s_mov_b32 s%d, %d" % (sRND, RND - 1))
    e("    s_mov_b32 s%d, %d" % (sT2, SLOTB))
    e("    v_add_u32 v%d, %d, v%d" % (vDA, QB, vAD))
    e("    v_add_u32 v%d, %d, v%d" % (vRL, RECO, vAD))
    e("    v_mov_b32 v%d, %d" % (vMBA, MBO))
    e("    s_waitcnt vmcnt(0)")
    for k in range(QB // 1024):
        e("    ds_write_b128 v%d, v[%d:%d] offset:%d" % (vAD, vX + 4 * k, vX + 4 * k + 3, k * 1024))
    def elect(tag):
        e("    s_mov_b64 exec, 1")
        e("    global_atomic_add v%d, v%d, v%d, s[12:13] offset:16 sc0" % (t0, vZERO, vONE))
        e("    s_waitcnt vmcnt(0)")
        e("    v_readfirstlane_b32 s%d, v%d" % (sTMP, t0))
        e("    s_mov_b64 exec, -1")
        e("    s_cmp_lg_u32 s%d, 0" % sTMP)
        e("    s_cbranch_scc1 L_lost%s" % tag)
        e("    v_lshlrev_b32 v%d, 8, v%d" % (t0, vLANE))
        e("    v_add_u32 v%d, 0x%x, v%d" % (t0, CTR_OFF, t0))
        e("    global_store_dword v%d, v%d, s[14:15] sc1" % (t0, vZERO))
        e("    s_waitcnt vmcnt(0)")
        e("    global_store_dword v%d, v%d, s[12:13] offset:20 sc1" % (vZERO, vONE))
        e("L_lost%s:" % tag)
    assert W * S <= 64
    e("    s_cmp_lg_u32 s%d, 0" % sIDX)
    e("    s_cbranch_scc1 L_lostA")
    elect("A")

    vY = vX + 24 * NW
    def reduce_wg():
        for w in range(NW):
            e("    ds_read_b64 v[%d:%d], v%d offset:%d" % (vY + 2 * w, vY + 2 * w + 1, vDA, w * 7168 + 6144))
        for w in range(NW):
            for c in range(6):
                e("    ds_read_b128 v[%d:%d], v%d offset:%d" % (vX + 24 * w + 4 * c, vX + 24 * w + 4 * c + 3, vDA, w * 7168 + c * 1024))
        e("    v_add_u32 v%d, s%d, v%d" % (vDA, sT2, vDA))
        e("    s_sub_u32 s%d, 0, s%d" % (sT2, sT2))
        e("    s_waitcnt lgkmcnt(%d)" % (0 if STAMP else min(15, 6 * NW)))
        e("    v_mov_b32 v%d, v%d" % (vMX, vY))
        for w in range(1, NW):
            e("    v_max_f32 v%d, v%d, v%d" % (vMX, vMX, vY + 2 * w))
        e("    s_nop 1")
        e("    v_max_f32_dpp v%d, v%d, v%d row_ror:8 row_mask:0xf bank_mask:0xf" % (vMX, vMX, vMX))
        for sw in ("v_permlane16_swap_b32", "v_permlane32_swap_b32"):
            e("    s_nop 0")
            e("    v_mov_b32 v%d, v%d" % (t0, vMX))
            e("    s_nop 1")
            e("    %s v%d, v%d" % (sw, vMX, t0))
            e("    s_nop 0")
            e("    v_max_f32 v%d, v%d, v%d" % (vMX, vMX, t0))
        for w in range(NW):
            e("    v_sub_f32 v%d, v%d, v%d" % (vY + 2 * w, vY + 2 * w, vMX))
        for w in range(NW):
            e("    v_exp_f32 v%d, v%d" % (vY + 2 * w, vY + 2 * w))
        e("    s_nop 0")
        e("    v_mul_f32 v%d, v%d, v%d" % (vL, vY, vY + 1))
        for w in range(1, NW):
            e("    v_fma_f32 v%d, v%d, v%d, v%d" % (vL, vY + 2 * w, vY + 2 * w + 1, vL))
        e("    s_waitcnt lgkmcnt(0)")
        for i in range(12):
            e("    v_pk_mul_f32 v[%d:%d], v[%d:%d], v[%d:%d] op_sel_hi:[1,0]" %
              (vO + 2 * i, vO + 2 * i + 1, vX + 2 * i, vX + 2 * i + 1, vY, vY + 1))
        e("    v_add_f32_dpp v%d, v%d, v%d row_ror:8 row_mask:0xf bank_mask:0xf" % (vLX, vL, vL))
        for w in range(1, NW):
            for i in range(12):
                e("    v_pk_fma_f32 v[%d:%d], v[%d:%d], v[%d:%d], v[%d:%d] op_sel_hi:[1,0,1]" %
                  (vO + 2 * i, vO + 2 * i + 1, vX + 24 * w + 2 * i, vX + 24 * w + 2 * i + 1, vY + 2 * w, vY + 2 * w + 1, vO + 2 * i, vO + 2 * i + 1))
        e("    v_mov_b32 v%d, v%d" % (t0, vLX))
        e("    s_nop 1")
        for j in range(3):
            for ee in range(4):
                a = vO + j * 8 + ee
                e("    v_permlane32_swap_b32 v%d, v%d" % (a, a + 4))
        e("    v_permlane16_swap_b32 v%d, v%d" % (vLX, t0))
        for j in range(3):
            for ee in range(4):
                a = vO + j * 8 + ee
                e("    v_add_f32 v%d, v%d, v%d" % (a, a, a + 4))
        e("    v_add_f32 v%d, v%d, v%d" % (vLX, vLX, t0))
        e("    s_nop 0")
        for j in range(3):
            for ee in range(2):
                a = vO + j * 8 + ee
                e("    v_permlane16_swap_b32 v%d, v%d" % (a, a + 2))
        e("    v_mov_b32 v%d, v%d" % (t0, vLX))
        for j in range(3):
            for ee in range(2):
                a = vO + j * 8 + ee
                e("    v_add_f32 v%d, v%d, v%d" % (a, a, a + 2))
        e("    v_permlane32_swap_b32 v%d, v%d" % (vLX, t0))
        e("    v_cmp_eq_u32 vcc, 1, v%d" % vLANE)
        for j in range(3):
            a = vO + j * 8
            e("    v_add_f32_dpp v%d, v%d, v%d row_ror:8 row_mask:0xf bank_mask:0x3" % (vZ + j, a, a))
        e("    v_add_f32 v%d, v%d, v%d" % (vLX, vLX, t0))
        for j in range(3):
            a = vO + j * 8
            e("    v_add_f32_dpp v%d, v%d, v%d row_ror:8 row_mask:0xf bank_mask:0xc" % (vZ + j, a + 1, a + 1))
        e("    v_cndmask_b32 v%d, v%d, v%d, vcc" % (vZ + 3, vMX, vLX))

    e("L_sround:")
    e("    s_waitcnt lgkmcnt(0)")
    e("    s_barrier")
    if STAMP:
        e("    s_memrealtime s[%d:%d]" % (sT0 + 2, sT0 + 3))
    reduce_wg()
    e("    s_cmp_eq_u32 s%d, 0" % sRND)
    e("    s_cbranch_scc1 L_final")
    e("    ds_write_b128 v%d, v[%d:%d]" % (vRL, vZ, vZ + 3))
    e("    v_add_u32 v%d, 1024, v%d" % (vRL, vRL))
    e("    s_sub_u32 s%d, s%d, 1" % (sRND, sRND))
    e("    s_cmp_lg_u32 s%d, 0" % sRND)
    e("    s_cbranch_scc1 L_sround")
    e("    global_load_dword v%d, v%d, s[12:13] offset:20 sc1" % (t0, vZERO))
    e("    s_waitcnt vmcnt(0)")
    e("    v_readfirstlane_b32 s%d, v%d" % (sTMP, t0))
    e("    s_cmp_lg_u32 s%d, 0" % sTMP)
    e("    s_cbranch_scc1 L_ready")
    elect("B")
    e("L_spinf:")
    e("    global_load_dword v%d, v%d, s[12:13] offset:20 sc1" % (t0, vZERO))
    e("    s_waitcnt vmcnt(0)")
    e("    v_readfirstlane_b32 s%d, v%d" % (sTMP, t0))
    e("    s_cmp_eq_u32 s%d, 0" % sTMP)
    e("    s_cbranch_scc1 L_spinf")
    e("L_ready:")
    e("    s_mul_i32 s%d, s%d, %d" % (sM0, sIDX, NW))
    e("    s_add_u32 s%d, s%d, %d" % (sM0, sM0, (SS - 2) * SST))
    e("    s_add_u32 s%d, s%d, %d" % (sM1, sM0, SST))
    e("    s_mul_i32 s%d, s%d, %d" % (sSH, sSH, NW))
    e("    s_add_u32 s%d, s%d, %d" % (sSH, sSH, DYN0))
    e("    s_mov_b64 exec, 1")
    e("    v_mov_b32 v%d, s%d" % (t0, sM0))
    e("    ds_write_b32 v%d, v%d" % (vMBA, t0))
    e("    s_waitcnt lgkmcnt(0)")
    e("    s_barrier")
    e("    global_atomic_add v%d, v%d, v%d, s[14:15] sc0" % (vR0, vCW, vONE))
    e("    v_mov_b32 v%d, s%d" % (t0, sM1))
    e("    ds_write_b32 v%d, v%d offset:4" % (vMBA, t0))
    e("L_sls:")
    for h, (rn, ro) in enumerate(((vR1, vR0), (vR0, vR1))):
        e("    s_waitcnt lgkmcnt(0)")
        e("    s_barrier")
        e("    s_cmp_ge_u32 s%d, %d" % (sM1, CT))
        e("    s_cbranch_scc1 L_slsend")
        e("    global_atomic_add v%d, v%d, v%d, s[14:15] sc0" % (rn, vCW, vONE))
        e("    s_waitcnt vmcnt(1)")
        e("    v_readfirstlane_b32 s%d, v%d" % (sM1, ro))
        e("    s_min_u32 s%d, s%d, %d" % (sM1, sM1, CT))
        e("    s_mul_i32 s%d, s%d, %d" % (sM1, sM1, S * NW))
        e("    s_add_u32 s%d, s%d, s%d" % (sM1, sM1, sSH))
        e("    v_mov_b32 v%d, s%d" % (t0, sM1))
        e("    ds_write_b32 v%d, v%d offset:%d" % (vMBA, t0, 4 * h))
    e("    s_branch L_sls")
    e("L_slsend:")
    e("    s_mov_b64 exec, -1")
    e("    s_branch L_sround")
    e("L_final:")
    e("    v_add_u32 v%d, %d, v%d" % (vRL, RECO, vAD))
    for r in range(RND - 1):
        e("    ds_read_b128 v[%d:%d], v%d offset:%d" % (vX + 4 * r, vX + 4 * r + 3, vRL, r * 1024))
    e("    v_add_u32 v%d, %d, v%d" % (t0, (RND - 1) * PER * 1024, vRA))
    e("    global_store_dwordx4 v%d, v[%d:%d], s[14:15] sc1" % (t0, vZ, vZ + 3))
    for r in range(RND - 1):
        e("    s_waitcnt lgkmcnt(%d)" % (RND - 2 - r))
        e("    global_store_dwordx4 v%d, v[%d:%d], s[14:15] sc1" % (vRA, vX + 4 * r, vX + 4 * r + 3))
        if r + 2 < RND:
            e("    v_add_u32 v%d, %d, v%d" % (vRA, PER * 1024, vRA))
    if STAMP:
        e("    s_memrealtime s[%d:%d]" % (sT0 + 4, sT0 + 5))
    e("    s_mov_b64 exec, 1")
    e("    s_waitcnt vmcnt(0)")
    e("    global_atomic_add v%d, v%d, s[12:13]" % (vCA, vONE))
    if STAMP:
        e("    s_memrealtime s[%d:%d]" % (sT0 + 6, sT0 + 7))
        e("    s_getreg_b32 s%d, hwreg(HW_REG_XCC_ID)" % (sT0 + 8))
        e("    s_getreg_b32 s%d, hwreg(HW_REG_HW_ID)" % (sT0 + 9))
        e("    s_waitcnt lgkmcnt(0)")
        for i in range(10):
            e("    v_mov_b32 v%d, s%d" % (vX + i, sT0 + i))
        e("    v_mov_b32 v%d, s%d" % (vX + 10, sT0 + 6))
        e("    v_mov_b32 v%d, s%d" % (vX + 11, sT0 + 7))
        e("    s_lshl_b32 s%d, s2, 6" % (sT0))
        e("    s_add_u32 s%d, s%d, 0x1000000" % (sT0, sT0))
        e("    v_mov_b32 v%d, s%d" % (t1, sT0))
        e("    global_store_dwordx4 v%d, v[%d:%d], s[14:15]" % (t1, vX, vX + 3))
        e("    global_store_dwordx4 v%d, v[%d:%d], s[14:15] offset:16" % (t1, vX + 4, vX + 7))
        e("    global_store_dwordx4 v%d, v[%d:%d], s[14:15] offset:32" % (t1, vX + 8, vX + 11))
    e("    s_cmp_ge_u32 s%d, %d" % (sIDX, RND))
    e("    s_cbranch_scc1 L_done")
    e("L_spin:")
    e("    global_load_dword v%d, v%d, s[12:13] sc1" % (t0, vCA))
    e("    s_waitcnt vmcnt(0)")
    e("    v_readfirstlane_b32 s%d, v%d" % (sTMP, t0))
    e("    s_cmp_lt_u32 s%d, %d" % (sTMP, PER))
    e("    s_cbranch_scc1 L_spin")
    e("    s_barrier")
    e("L_done:")
    e("    s_endpgm")
    e('.section .rodata,"a"')
    e(".p2align 6")
    e(".amdhsa_kernel %s" % KNAME)
    e("  .amdhsa_next_free_vgpr %d" % NVGPR)
    e("  .amdhsa_next_free_sgpr 96")
    e("  .amdhsa_accum_offset %d" % ((NVGPR + 3) // 4 * 4))
    e("  .amdhsa_group_segment_fixed_size 0")
    e("  .amdhsa_kernarg_size 48")
    e("  .amdhsa_user_sgpr_count 2")
    e("  .amdhsa_user_sgpr_kernarg_segment_ptr 1")
    e("  .amdhsa_system_sgpr_workgroup_id_x 1")
    e("  .amdhsa_float_denorm_mode_32 3")
    e(".end_amdhsa_kernel")
    return "\n".join(o) + "\n"

if __name__ == "__main__":
    ap = argparse.ArgumentParser()
    ap.add_argument("-o", default="standalone__mha_softmax__decode.s")
    for k, d in dict(W=4, NW=5, SS=94, S=4, STAMP=0, TRACE=0).items():
        ap.add_argument("--" + k, type=int, default=d)
    ap.add_argument("--POL", default="nt")
    a = vars(ap.parse_args())
    out = a.pop("o")
    open(out, "w").write(gen(**a))
    print("wrote", out)
```

```python
import math, struct, sys, argparse
H = 32; SK = 32768; D = 192
ROWB = D * 2
HEADB = SK * ROWB
NWG = 256
TB = 8 * ROWB
TPH = SK // 8

def f32hex(x):
    return "0x%08x" % struct.unpack("<I", struct.pack("<f", x))[0]

HEADER = """; Kernarg layout for this problem (48 bytes, ptrs only, base s[0:1]):
"""

def gen(W=4, NW=5, SS=94, S=4, POL="nt", STAMP=0, TRACE=0, DBG=0, KNAME="standalone__mha_softmax__decode_kernel"):
    o = []
    e = o.append
    PER = NWG // W; RND = H // W
    LOGP = int(math.log2(PER))
    CT = RND * TPH
    COLB = RND * HEADB
    SST = PER * NW
    LA = 3
    DYN0 = SS * SST
    assert DYN0 <= CT and (SS - LA - 1) * SST >= (RND - 1) * TPH, "static loop must cross the last head boundary"
    NWC = 4; RPW = PER // NWC
    assert NW >= NWC and RPW <= 32 and PER <= 64 and W <= 4
    pol = (" " + POL) if POL else ""
    C = (D ** -0.5) * math.log2(math.e)
    QB = (RND * ROWB + 1023) // 1024 * 1024
    SLOTB = NW * 7168
    RECO = QB + 2 * SLOTB
    MBO = RECO + RND * 1024
    LDS = MBO + 64
    CTR_OFF = 0x800000

    vLANE = 0; vOFF = 1; vM = 2; vA = 3; vS = 4
    vT = 6; vQ = 14; vO = 28; vMC = 52; vL = 53
    vDA = 54; vQA = 55; vTR = 56; vMB = 57; vMBA = 58
    vK = 60; vV = 72
    vX = 60
    NVGPR = max(84, vX + 26 * NW + 2, vX + QB // 256, vX + 4 * RND, vX + 4 * RPW)
    assert NVGPR <= 256
    sCOL = 24; sIDX = 25; sWAVE = 26; sMASK = 27; sC = 28; sCNT = 29; sRND = 30; sTMP = 31
    sKO = 32; sVO = 33; sG = 34; sBND = 35; sBIAS = 36; sNB = 37; sHEAD = 38; sT2 = 39
    sT0 = 40
    sSH = 53; sM0 = 54; sM1 = 55
    sW = 56

    e(HEADER + "; @launch grid=(%d,1,1) block=(%d,1,1) lds=%d" % (NWG, (NW + 1) * 64, LDS))
    if TRACE: e("; UNITBYTES=%d" % (2 * TB))
    e('.amdgcn_target "amdgcn-amd-amdhsa--gfx950"')
    e(".text")
    e(".globl %s" % KNAME)
    e(".p2align 8")
    e(".type %s,@function" % KNAME)
    e("%s:" % KNAME)
    e("    s_cmp_ge_u32 s2, %d" % NWG)
    e("    s_cbranch_scc1 L_done")
    e("    s_load_dwordx4 s[4:7], s[0:1], 0")
    e("    s_load_dwordx4 s[8:11], s[0:1], 16")
    e("    s_load_dwordx4 s[12:15], s[0:1], 32")
    if STAMP or DBG:
        e("    s_memrealtime s[%d:%d]" % (sT0, sT0 + 1))
    e("    v_lshrrev_b32 v%d, 6, v0" % vA)
    e("    v_and_b32 v%d, 63, v0" % vLANE)
    e("    v_readfirstlane_b32 s%d, v%d" % (sWAVE, vA))
    e("    s_lshr_b32 s%d, s2, %d" % (sCOL, LOGP))
    e("    s_and_b32 s%d, s2, %d" % (sIDX, PER - 1))
    e("    s_mul_i32 s%d, s%d, %d" % (sHEAD, sCOL, RND))
    e("    s_cmp_eq_u32 s%d, %d" % (sWAVE, NW))
    e("    s_cbranch_scc1 L_service")
    e("    v_lshrrev_b32 v%d, 3, v%d" % (vT, vLANE))
    e("    v_and_b32 v%d, 7, v%d" % (vQA, vLANE))
    e("    v_lshlrev_b32 v%d, 4, v%d" % (vQA, vQA))
    e("    v_mul_u32_u24 v%d, %d, v%d" % (vT, ROWB, vT))
    e("    v_add_u32 v%d, v%d, v%d" % (vOFF, vT, vQA))
    e("    s_mul_i32 s%d, s%d, %d" % (sTMP, sCOL, COLB))
    e("    s_mov_b32 s18, %d" % COLB)
    e("    s_mov_b32 s22, %d" % COLB)
    e("    s_mov_b32 s19, 0x00020000")
    e("    s_mov_b32 s23, 0x00020000")
    e("    s_mul_i32 s%d, s%d, %d" % (sG, sIDX, NW))
    e("    s_add_u32 s%d, s%d, s%d" % (sG, sG, sWAVE))
    e("    s_mul_i32 s%d, s%d, %d" % (sKO, sG, TB))
    e("    s_mul_i32 s%d, s%d, %d" % (sCNT, sHEAD, ROWB))
    e("    v_add_u32 v%d, s%d, v%d" % (vT + 1, sCNT, vQA))
    e("    s_waitcnt lgkmcnt(0)")
    e("    s_add_u32 s16, s6, s%d" % sTMP)
    e("    s_addc_u32 s17, s7, 0")
    e("    s_add_u32 s20, s8, s%d" % sTMP)
    e("    s_addc_u32 s21, s9, 0")
    e("    s_and_b32 s17, s17, 0xffff")
    e("    s_and_b32 s21, s21, 0xffff")
    def loadK(j, so=sKO):
        e("    buffer_load_dwordx4 v[%d:%d], v%d, s[16:19], s%d offen offset:%d%s" % (vK + 4 * j, vK + 4 * j + 3, vOFF, so, j * 128, pol))
    def loadV(j, so=sVO):
        e("    buffer_load_dwordx4 v[%d:%d], v%d, s[20:23], s%d offen offset:%d%s" % (vV + 4 * j, vV + 4 * j + 3, vOFF, so, j * 128, pol))
    for j in range(3): loadK(j)
    for j in range(3): loadV(j, sKO)
    for j in range(3):
        e("    global_load_dwordx4 v[%d:%d], v%d, s[4:5] offset:%d" % (vQ + 4 * j, vQ + 4 * j + 3, vT + 1, j * 128))
    e("    s_add_u32 s%d, s%d, %d" % (sKO, sKO, SST * TB))
    e("    s_mov_b32 s%d, s%d" % (sVO, sKO))
    if TRACE:
        e("    s_mul_i32 s52, s2, %d" % (NW + 1))
        e("    s_add_u32 s52, s52, s%d" % sWAVE)
        e("    s_lshl_b32 s52, s52, 10")
        e("    s_add_u32 s52, s52, 0x1100000")
        e("    v_mov_b32 v%d, s52" % vTR)
    e("    s_mov_b32 s%d, 0xffff0000" % sMASK)
    e("    s_mov_b32 s%d, %s" % (sC, f32hex(C)))
    e("    s_mov_b32 s%d, %d" % (sBND, TPH))
    e("    s_mov_b32 s%d, %d" % (sCNT, SS - LA))
    e("    s_mul_i32 s%d, s%d, 7168" % (sTMP, sWAVE))
    e("    s_add_u32 s%d, s%d, %d" % (sTMP, sTMP, QB))
    e("    v_lshlrev_b32 v%d, 4, v%d" % (vDA, vLANE))
    e("    v_add_u32 v%d, s%d, v%d" % (vDA, sTMP, vDA))
    e("    s_mov_b32 s%d, %d" % (sT2, SLOTB))
    e("    v_mov_b32 v%d, %d" % (vMBA, MBO))
    def init_state():
        e("    v_mov_b32 v%d, 0xff800000" % vM)
        e("    v_mov_b32 v%d, 0xff800000" % vMC)
        e("    v_mov_b32 v%d, 0" % vL)
        for i in range(24): e("    v_mov_b32 v%d, 0" % (vO + i))
    init_state()
    e("    s_waitcnt vmcnt(0)")
    def dump():
        for c in range(6):
            e("    ds_write_b128 v%d, v[%d:%d] offset:%d" % (vDA, vO + 4 * c, vO + 4 * c + 3, c * 1024))
        e("    ds_write_b64 v%d, v[%d:%d] offset:6144" % (vDA, vMC, vL))

    def tile(ls):
        e("    s_waitcnt vmcnt(3)")
        items = [(j, i) for j in range(3) for i in range(4)]
        for n_, (j, i) in enumerate(items):
            acc = vS if n_ % 2 == 0 else vT
            if n_ < 2:
                e("    v_dot2_f32_bf16 v%d, v%d, v%d, 0" % (acc, vK + 4 * j + i, vQ + 4 * j + i))
            else:
                e("    v_dot2_f32_bf16 v%d, v%d, v%d, v%d" % (acc, vK + 4 * j + i, vQ + 4 * j + i, acc))
        if ls:
            e("    s_waitcnt lgkmcnt(0)")
            e("    v_readfirstlane_b32 s%d, v%d" % (sNB, vMB))
            e("    v_xor_b32 v%d, 4, v%d" % (vMBA, vMBA))
            e("    s_add_u32 s%d, s%d, s%d" % (sG, sNB, sWAVE))
            e("    s_min_u32 s%d, s%d, %d" % (sKO, sG, CT))
            e("    s_mul_i32 s%d, s%d, %d" % (sKO, sKO, TB))
            e("    s_mov_b32 s%d, s%d" % (sVO, sKO))
        for j in range(3): loadK(j)
        if not ls:
            e("    s_add_u32 s%d, s%d, %d" % (sKO, sKO, SST * TB))
        e("    v_add_f32 v%d, v%d, v%d" % (vS, vS, vT))
        e("    s_nop 1")
        for pat in ("quad_perm:[1,0,3,2]", "quad_perm:[2,3,0,1]", "row_half_mirror"):
            e("    v_add_f32_dpp v%d, v%d, v%d %s row_mask:0xf bank_mask:0xf" % (vS, vS, vS, pat))
            if pat != "row_half_mirror": e("    s_nop 1")
        if ls:
            e("    v_add_f32 v%d, s%d, v%d" % (vS, sBIAS, vS))
        e("    v_max_f32 v%d, v%d, v%d" % (vM, vM, vS))
        e("    v_mov_b32 v%d, v%d" % (vA, vMC))
        e("    v_mul_f32 v%d, s%d, v%d" % (vMC, sC, vM))
        e("    v_sub_f32 v%d, v%d, v%d" % (vA, vA, vMC))
        e("    v_fma_f32 v%d, v%d, s%d, -v%d" % (vS, vS, sC, vMC))
        e("    v_exp_f32 v%d, v%d" % (vA, vA))
        e("    v_exp_f32 v%d, v%d" % (vS, vS))
        for i in range(12):
            e("    v_pk_mul_f32 v[%d:%d], v[%d:%d], v[%d:%d] op_sel:[0,1] op_sel_hi:[1,1]" %
              (vO + 2 * i, vO + 2 * i + 1, vO + 2 * i, vO + 2 * i + 1, vA - 1, vA))
        e("    v_fma_f32 v%d, v%d, v%d, v%d" % (vL, vL, vA, vS))
        for j in range(3):
            e("    s_waitcnt vmcnt(5)")
            for i in range(4):
                e("    v_lshlrev_b32 v%d, 16, v%d" % (vT + 2 * i, vV + 4 * j + i))
                e("    v_and_b32 v%d, s%d, v%d" % (vT + 2 * i + 1, sMASK, vV + 4 * j + i))
            loadV(j)
            for i in range(4):
                oo = vO + j * 8 + 2 * i
                e("    v_pk_fma_f32 v[%d:%d], v[%d:%d], v[%d:%d], v[%d:%d] op_sel_hi:[1,0,1]" %
                  (oo, oo + 1, vT + 2 * i, vT + 2 * i + 1, vS, vS + 1, oo, oo + 1))
        if not ls:
            e("    s_add_u32 s%d, s%d, %d" % (sVO, sVO, SST * TB))
            e("    s_add_u32 s%d, s%d, %d" % (sG, sG, SST))
        if TRACE:
            e("    s_memrealtime s[50:51]")
            e("    s_waitcnt lgkmcnt(0)")
            e("    v_mov_b32 v%d, s50" % vT)
            e("    s_mov_b64 exec, 1")
            e("    global_store_dword v%d, v%d, s[14:15]" % (vTR, vT))
            e("    s_mov_b64 exec, -1")
            e("    v_add_u32 v%d, 4, v%d" % (vTR, vTR))

    e("L_static:")
    e("    s_cmp_ge_u32 s%d, s%d" % (sG, sBND))
    e("    s_cbranch_scc1 L_bound")
    e("L_back:")
    tile(False)
    e("    s_sub_u32 s%d, s%d, 1" % (sCNT, sCNT))
    e("    s_cmp_lg_u32 s%d, 0" % sCNT)
    e("    s_cbranch_scc1 L_static")
    e("L_ls:")
    e("    s_barrier")
    e("    ds_read_b32 v%d, v%d" % (vMB, vMBA))
    e("    s_cmp_lt_u32 s%d, %d" % (sG, CT))
    e("    s_cselect_b32 s%d, 0, 0xff800000" % sBIAS)
    tile(True)
    e("    s_cmp_lt_u32 s%d, %d" % (sNB, CT))
    e("    s_cbranch_scc1 L_ls")
    dump()
    e("    s_waitcnt lgkmcnt(0)")
    e("    s_barrier")
    e("    s_cmp_ge_u32 s%d, %d" % (sIDX, RND))
    e("    s_cbranch_scc1 L_done")
    e("    s_cmp_ge_u32 s%d, %d" % (sWAVE, NWC))
    e("    s_cbranch_scc1 L_done")
    cA = vT; cB = vT + 1; cT = vT + 2; cT1 = vT + 3; cMX = vT + 4; cLX = vT + 5; cOW = vT + 6; cW = vT + 7
    cM = vQ; cACC = vQ + 2; cX = vX; cO = vQ + 6; cLB = vQ + 7
    e("    s_add_u32 s%d, s%d, s%d" % (sHEAD, sHEAD, sIDX))
    e("    s_lshl_b32 s%d, s%d, %d" % (sTMP, sHEAD, LOGP + 10))
    e("    v_min_u32 v%d, %d, v%d" % (cA, PER - 1, vLANE))
    e("    v_lshlrev_b32 v%d, 10, v%d" % (cA, cA))
    e("    v_add_u32 v%d, s%d, v%d" % (cA, sTMP, cA))
    e("    s_mul_i32 s%d, s%d, %d" % (sCNT, sWAVE, RPW * 1024))
    e("    s_add_u32 s%d, s%d, s%d" % (sCNT, sCNT, sTMP))
    e("    v_lshlrev_b32 v%d, 4, v%d" % (cLB, vLANE))
    e("    v_add_u32 v%d, s%d, v%d" % (cB, sCNT, cLB))
    e("    v_min_u32 v%d, %d, v%d" % (cT, RPW - 1, vLANE))
    e("    v_lshlrev_b32 v%d, 10, v%d" % (cT, cT))
    e("    v_add_u32 v%d, s%d, v%d" % (cT, sCNT, cT))
    e("    v_and_b32 v%d, 7, v%d" % (cO, vLANE))
    e("    v_lshlrev_b32 v%d, 4, v%d" % (cO, cO))
    e("    v_lshrrev_b32 v%d, 3, v%d" % (cT1, vLANE))
    e("    v_lshl_add_u32 v%d, v%d, 1, v%d" % (cO, cT1, cO))
    e("    s_mul_i32 s%d, s%d, %d" % (sTMP, sHEAD, ROWB))
    e("    v_add_u32 v%d, s%d, v%d" % (cO, sTMP, cO))
    e("    s_lshl_b32 s%d, s%d, 10" % (sTMP, sWAVE))
    e("    v_add_u32 v%d, s%d, v%d" % (cW, sTMP, cLB))
    e("    s_waitcnt vmcnt(0)")
    e("    s_barrier")
    if STAMP: e("    s_memrealtime s[42:43]")
    e("    global_load_dword v%d, v%d, s[14:15] offset:12 sc1" % (cM, cA))
    e("    global_load_dword v%d, v%d, s[14:15] offset:28 sc1" % (cM + 1, cA))
    e("    global_load_dword v%d, v%d, s[14:15] offset:12 sc1" % (cOW, cT))
    for j in range(RPW):
        e("    global_load_dwordx4 v[%d:%d], v%d, s[14:15] offset:%d sc1" % (cX + 4 * j, cX + 4 * j + 3, cB, (j % 4) * 1024))
        if j % 4 == 3 and j + 1 < RPW:
            e("    v_add_u32 v%d, 4096, v%d" % (cB, cB))
    e("    s_waitcnt vmcnt(%d)" % RPW)
    if STAMP: e("    s_memrealtime s[44:45]")
    e("    v_mov_b32 v%d, v%d" % (cMX, cM))
    def allreduce(op, r, t):
        e("    s_nop 1")
        for pat in ("quad_perm:[1,0,3,2]", "quad_perm:[2,3,0,1]", "row_half_mirror", "row_ror:8"):
            e("    %s_dpp v%d, v%d, v%d %s row_mask:0xf bank_mask:0xf" % (op, r, r, r, pat))
            e("    s_nop 1")
        for sw in ("v_permlane16_swap_b32", "v_permlane32_swap_b32"):
            e("    v_mov_b32 v%d, v%d" % (t, r))
            e("    s_nop 1")
            e("    %s v%d, v%d" % (sw, r, t))
            e("    s_nop 0")
            e("    %s v%d, v%d, v%d" % (op, r, r, t))
    allreduce("v_max_f32", cMX, cT)
    e("    v_sub_f32 v%d, v%d, v%d" % (cM, cM, cMX))
    e("    v_sub_f32 v%d, v%d, v%d" % (cOW, cOW, cMX))
    e("    v_exp_f32 v%d, v%d" % (cM, cM))
    e("    v_exp_f32 v%d, v%d" % (cOW, cOW))
    if PER < 64:
        e("    v_cmp_gt_u32 vcc, %d, v%d" % (PER, vLANE))
    e("    v_mul_f32 v%d, v%d, v%d" % (cLX, cM, cM + 1))
    if PER < 64:
        e("    s_nop 0")
        e("    v_cndmask_b32 v%d, 0, v%d, vcc" % (cLX, cLX))
    allreduce("v_add_f32", cLX, cT)
    e("    v_rcp_f32 v%d, v%d" % (cLX, cLX))
    e("    v_mov_b32 v%d, 0" % cACC)
    e("    v_mov_b32 v%d, 0" % (cACC + 1))
    e("    v_mul_f32 v%d, v%d, v%d" % (cOW, cOW, cLX))
    e("    v_mov_b32 v%d, 0" % (cACC + 2))
    for j in range(RPW):
        e("    v_readlane_b32 s%d, v%d, %d" % (sW + j, cOW, j))
    e("    s_nop 0")
    if STAMP: e("    s_memrealtime s[46:47]")
    for j in range(RPW):
        if j % 4 == 0:
            e("    s_waitcnt vmcnt(%d)" % (RPW - 4 - j))
        sp = (sW + j) & ~1; hi = (sW + j) & 1
        e("    v_pk_fma_f32 v[%d:%d], v[%d:%d], s[%d:%d], v[%d:%d] op_sel:[0,%d,0] op_sel_hi:[1,%d,1]" %
          (cACC, cACC + 1, cX + 4 * j, cX + 4 * j + 1, sp, sp + 1, cACC, cACC + 1, hi, hi))
        e("    v_fma_f32 v%d, v%d, s%d, v%d" % (cACC + 2, cX + 4 * j + 2, sW + j, cACC + 2))
    if STAMP: e("    s_memrealtime s[48:49]")
    e("    ds_write_b128 v%d, v[%d:%d]" % (cW, cACC, cACC + 3))
    e("    s_waitcnt lgkmcnt(0)")
    e("    s_barrier")
    e("    s_cmp_lg_u32 s%d, 0" % sWAVE)
    e("    s_cbranch_scc1 L_done")
    for w in range(1, NWC):
        e("    ds_read_b128 v[%d:%d], v%d offset:%d" % (cX + 4 * w, cX + 4 * w + 3, cLB, w * 1024))
    for w in range(1, NWC):
        e("    s_waitcnt lgkmcnt(%d)" % (NWC - 1 - w))
        e("    v_pk_add_f32 v[%d:%d], v[%d:%d], v[%d:%d]" % (cACC, cACC + 1, cACC, cACC + 1, cX + 4 * w, cX + 4 * w + 1))
        e("    v_add_f32 v%d, v%d, v%d" % (cACC + 2, cACC + 2, cX + 4 * w + 2))
    e("    v_cvt_pk_bf16_f32 v%d, v%d, v%d" % (cACC, cACC, cACC + 1))
    e("    v_cvt_pk_bf16_f32 v%d, v%d, v%d" % (cACC + 2, cACC + 2, cACC + 2))
    e("    global_store_short v%d, v%d, s[10:11]" % (cO, cACC))
    e("    global_store_short_d16_hi v%d, v%d, s[10:11] offset:128" % (cO, cACC))
    e("    global_store_short v%d, v%d, s[10:11] offset:256" % (cO, cACC + 2))
    if DBG:
        e("    s_waitcnt vmcnt(0)")
        e("    s_memrealtime s[50:51]")
        e("    v_mov_b32 v%d, 0" % cT)
        e("    s_waitcnt lgkmcnt(0)")
        e("    v_mov_b32 v%d, s50" % cACC)
        e("    s_mov_b64 exec, 1")
        e("    global_atomic_umax v%d, v%d, s[12:13] offset:44" % (cT, cACC))
    if STAMP:
        e("    s_waitcnt vmcnt(0)")
        e("    s_memrealtime s[50:51]")
        e("    s_lshl_b32 s%d, s2, 6" % sTMP)
        e("    s_add_u32 s%d, s%d, 0x1000000" % (sTMP, sTMP))
        e("    v_mov_b32 v%d, s%d" % (cT, sTMP))
        e("    s_waitcnt lgkmcnt(0)")
        e("    v_mov_b32 v%d, s50" % cACC)
        e("    v_mov_b32 v%d, s51" % (cACC + 1))
        e("    s_mov_b64 exec, 1")
        e("    global_store_dwordx2 v%d, v[%d:%d], s[14:15] offset:48" % (cT, cACC, cACC + 1))
        for i in range(4): e("    v_mov_b32 v%d, s%d" % (cX + i, 42 + 2 * i))
        e("    v_add_u32 v%d, 0x8000, v%d" % (cT, cT))
        e("    global_store_dwordx4 v%d, v[%d:%d], s[14:15]" % (cT, cX, cX + 3))
    e("    s_endpgm")
    e("L_bound:")
    dump()
    e("    v_add_u32 v%d, s%d, v%d" % (vDA, sT2, vDA))
    e("    s_sub_u32 s%d, 0, s%d" % (sT2, sT2))
    e("    v_add_u32 v%d, %d, v%d" % (vQA, ROWB, vQA))
    e("    s_add_u32 s%d, s%d, %d" % (sBND, sBND, TPH))
    e("    s_waitcnt lgkmcnt(0)")
    e("    s_barrier")
    for j in range(3):
        e("    ds_read_b128 v[%d:%d], v%d offset:%d" % (vQ + 4 * j, vQ + 4 * j + 3, vQA, j * 128))
    init_state()
    e("    s_waitcnt lgkmcnt(0)")
    e("    s_branch L_back")

    e("L_service:")
    vAD = vT; vRA = vT + 1; vCA = vT + 2; vONE = vT + 3; vMX = vT + 4; vLX = vT + 5; t0 = vT + 6; t1 = vT + 7
    vR0 = vQ; vR1 = vQ + 1; vZERO = vQ + 2; vRL = vQ + 3; vCW = vQ + 4; vZ = vQ + 6
    e("    v_lshlrev_b32 v%d, 4, v%d" % (vAD, vLANE))
    e("    s_mul_i32 s%d, s%d, %d" % (sTMP, sHEAD, ROWB))
    e("    v_add_u32 v%d, s%d, v%d" % (vRA, sTMP, vAD))
    e("    v_mov_b32 v%d, 1" % vONE)
    e("    v_mov_b32 v%d, 0" % vZERO)
    e("    s_waitcnt lgkmcnt(0)")
    e("    s_mov_b32 s16, s4")
    e("    s_and_b32 s17, s5, 0xffff")
    e("    s_mov_b32 s18, %d" % (H * ROWB))
    e("    s_mov_b32 s19, 0x00020000")
    for k in range(QB // 1024):
        if k and k % 4 == 0: e("    v_add_u32 v%d, 4096, v%d" % (vRA, vRA))
        e("    buffer_load_dwordx4 v[%d:%d], v%d, s[16:19], 0 offen offset:%d" % (vX + 4 * k, vX + 4 * k + 3, vRA, (k % 4) * 1024))
    e("    s_lshl_b32 s%d, s%d, %d" % (sTMP, sHEAD, LOGP))
    e("    s_add_u32 s%d, s%d, s%d" % (sTMP, sTMP, sIDX))
    e("    s_lshl_b32 s%d, s%d, 10" % (sTMP, sTMP))
    e("    v_add_u32 v%d, s%d, v%d" % (vRA, sTMP, vAD))
    e("    s_lshl_b32 s%d, s%d, 6" % (sTMP, sCOL))
    e("    v_mov_b32 v%d, s%d" % (vCA, sTMP))
    e("    s_lshr_b32 s%d, s%d, 3" % (sSH, sIDX))
    e("    s_and_b32 s%d, s%d, %d" % (sSH, sSH, S - 1))
    e("    s_mul_i32 s%d, s%d, %d" % (sTMP, sCOL, S))
    e("    s_add_u32 s%d, s%d, s%d" % (sTMP, sTMP, sSH))
    e("    s_lshl_b32 s%d, s%d, 8" % (sTMP, sTMP))
    e("    s_add_u32 s%d, s%d, 0x%x" % (sTMP, sTMP, CTR_OFF))
    e("    v_mov_b32 v%d, s%d" % (vCW, sTMP))
    e("    s_mov_b32 s%d, %d" % (sRND, RND - 1))
    e("    s_mov_b32 s%d, %d" % (sT2, SLOTB))
    e("    v_add_u32 v%d, %d, v%d" % (vDA, QB, vAD))
    e("    v_add_u32 v%d, %d, v%d" % (vRL, RECO, vAD))
    e("    v_mov_b32 v%d, %d" % (vMBA, MBO))
    e("    s_waitcnt vmcnt(0)")
    for k in range(QB // 1024):
        e("    ds_write_b128 v%d, v[%d:%d] offset:%d" % (vAD, vX + 4 * k, vX + 4 * k + 3, k * 1024))
    def elect(tag):
        e("    s_mov_b64 exec, 1")
        e("    global_atomic_add v%d, v%d, v%d, s[12:13] offset:16 sc0" % (t0, vZERO, vONE))
        e("    s_waitcnt vmcnt(0)")
        e("    v_readfirstlane_b32 s%d, v%d" % (sTMP, t0))
        e("    s_mov_b64 exec, -1")
        e("    s_cmp_lg_u32 s%d, 0" % sTMP)
        e("    s_cbranch_scc1 L_lost%s" % tag)
        e("    v_lshlrev_b32 v%d, 8, v%d" % (t0, vLANE))
        e("    v_add_u32 v%d, 0x%x, v%d" % (t0, CTR_OFF, t0))
        e("    global_store_dword v%d, v%d, s[14:15] sc1" % (t0, vZERO))
        e("    s_waitcnt vmcnt(0)")
        e("    global_store_dword v%d, v%d, s[12:13] offset:20 sc1" % (vZERO, vONE))
        e("L_lost%s:" % tag)
    assert W * S <= 64
    e("    s_cmp_lg_u32 s%d, 0" % sIDX)
    e("    s_cbranch_scc1 L_lostA")
    elect("A")

    vY = vX + 24 * NW
    def reduce_wg():
        for w in range(NW):
            e("    ds_read_b64 v[%d:%d], v%d offset:%d" % (vY + 2 * w, vY + 2 * w + 1, vDA, w * 7168 + 6144))
        for w in range(NW):
            for c in range(6):
                e("    ds_read_b128 v[%d:%d], v%d offset:%d" % (vX + 24 * w + 4 * c, vX + 24 * w + 4 * c + 3, vDA, w * 7168 + c * 1024))
        e("    v_add_u32 v%d, s%d, v%d" % (vDA, sT2, vDA))
        e("    s_sub_u32 s%d, 0, s%d" % (sT2, sT2))
        e("    s_waitcnt lgkmcnt(%d)" % (0 if (STAMP or DBG) else min(15, 6 * NW)))
        e("    v_mov_b32 v%d, v%d" % (vMX, vY))
        for w in range(1, NW):
            e("    v_max_f32 v%d, v%d, v%d" % (vMX, vMX, vY + 2 * w))
        e("    s_nop 1")
        e("    v_max_f32_dpp v%d, v%d, v%d row_ror:8 row_mask:0xf bank_mask:0xf" % (vMX, vMX, vMX))
        for sw in ("v_permlane16_swap_b32", "v_permlane32_swap_b32"):
            e("    s_nop 0")
            e("    v_mov_b32 v%d, v%d" % (t0, vMX))
            e("    s_nop 1")
            e("    %s v%d, v%d" % (sw, vMX, t0))
            e("    s_nop 0")
            e("    v_max_f32 v%d, v%d, v%d" % (vMX, vMX, t0))
        for w in range(NW):
            e("    v_sub_f32 v%d, v%d, v%d" % (vY + 2 * w, vY + 2 * w, vMX))
        for w in range(NW):
            e("    v_exp_f32 v%d, v%d" % (vY + 2 * w, vY + 2 * w))
        e("    s_nop 0")
        e("    v_mul_f32 v%d, v%d, v%d" % (vL, vY, vY + 1))
        for w in range(1, NW):
            e("    v_fma_f32 v%d, v%d, v%d, v%d" % (vL, vY + 2 * w, vY + 2 * w + 1, vL))
        e("    s_waitcnt lgkmcnt(0)")
        for i in range(12):
            e("    v_pk_mul_f32 v[%d:%d], v[%d:%d], v[%d:%d] op_sel_hi:[1,0]" %
              (vO + 2 * i, vO + 2 * i + 1, vX + 2 * i, vX + 2 * i + 1, vY, vY + 1))
        e("    v_add_f32_dpp v%d, v%d, v%d row_ror:8 row_mask:0xf bank_mask:0xf" % (vLX, vL, vL))
        for w in range(1, NW):
            for i in range(12):
                e("    v_pk_fma_f32 v[%d:%d], v[%d:%d], v[%d:%d], v[%d:%d] op_sel_hi:[1,0,1]" %
                  (vO + 2 * i, vO + 2 * i + 1, vX + 24 * w + 2 * i, vX + 24 * w + 2 * i + 1, vY + 2 * w, vY + 2 * w + 1, vO + 2 * i, vO + 2 * i + 1))
        e("    v_mov_b32 v%d, v%d" % (t0, vLX))
        e("    s_nop 1")
        for j in range(3):
            for ee in range(4):
                a = vO + j * 8 + ee
                e("    v_permlane32_swap_b32 v%d, v%d" % (a, a + 4))
        e("    v_permlane16_swap_b32 v%d, v%d" % (vLX, t0))
        for j in range(3):
            for ee in range(4):
                a = vO + j * 8 + ee
                e("    v_add_f32 v%d, v%d, v%d" % (a, a, a + 4))
        e("    v_add_f32 v%d, v%d, v%d" % (vLX, vLX, t0))
        e("    s_nop 0")
        for j in range(3):
            for ee in range(2):
                a = vO + j * 8 + ee
                e("    v_permlane16_swap_b32 v%d, v%d" % (a, a + 2))
        e("    v_mov_b32 v%d, v%d" % (t0, vLX))
        for j in range(3):
            for ee in range(2):
                a = vO + j * 8 + ee
                e("    v_add_f32 v%d, v%d, v%d" % (a, a, a + 2))
        e("    v_permlane32_swap_b32 v%d, v%d" % (vLX, t0))
        e("    v_cmp_eq_u32 vcc, 1, v%d" % vLANE)
        for j in range(3):
            a = vO + j * 8
            e("    v_add_f32_dpp v%d, v%d, v%d row_ror:8 row_mask:0xf bank_mask:0x3" % (vZ + j, a, a))
        e("    v_add_f32 v%d, v%d, v%d" % (vLX, vLX, t0))
        for j in range(3):
            a = vO + j * 8
            e("    v_add_f32_dpp v%d, v%d, v%d row_ror:8 row_mask:0xf bank_mask:0xc" % (vZ + j, a + 1, a + 1))
        e("    v_cndmask_b32 v%d, v%d, v%d, vcc" % (vZ + 3, vMX, vLX))

    e("L_sround:")
    e("    s_waitcnt lgkmcnt(0)")
    e("    s_barrier")
    if STAMP or DBG:
        e("    s_memrealtime s[%d:%d]" % (sT0 + 2, sT0 + 3))
    reduce_wg()
    e("    s_cmp_eq_u32 s%d, 0" % sRND)
    e("    s_cbranch_scc1 L_final")
    e("    ds_write_b128 v%d, v[%d:%d]" % (vRL, vZ, vZ + 3))
    e("    v_add_u32 v%d, 1024, v%d" % (vRL, vRL))
    e("    s_sub_u32 s%d, s%d, 1" % (sRND, sRND))
    e("    s_cmp_lg_u32 s%d, 0" % sRND)
    e("    s_cbranch_scc1 L_sround")
    e("    global_load_dword v%d, v%d, s[12:13] offset:20 sc1" % (t0, vZERO))
    e("    s_waitcnt vmcnt(0)")
    e("    v_readfirstlane_b32 s%d, v%d" % (sTMP, t0))
    e("    s_cmp_lg_u32 s%d, 0" % sTMP)
    e("    s_cbranch_scc1 L_ready")
    elect("B")
    e("L_spinf:")
    e("    global_load_dword v%d, v%d, s[12:13] offset:20 sc1" % (t0, vZERO))
    e("    s_waitcnt vmcnt(0)")
    e("    v_readfirstlane_b32 s%d, v%d" % (sTMP, t0))
    e("    s_cmp_eq_u32 s%d, 0" % sTMP)
    e("    s_cbranch_scc1 L_spinf")
    e("L_ready:")
    e("    s_mul_i32 s%d, s%d, %d" % (sM0, sIDX, NW))
    e("    s_add_u32 s%d, s%d, %d" % (sM0, sM0, (SS - 2) * SST))
    e("    s_add_u32 s%d, s%d, %d" % (sM1, sM0, SST))
    e("    s_mul_i32 s%d, s%d, %d" % (sSH, sSH, NW))
    e("    s_add_u32 s%d, s%d, %d" % (sSH, sSH, DYN0))
    e("    s_mov_b64 exec, 1")
    e("    v_mov_b32 v%d, s%d" % (t0, sM0))
    e("    ds_write_b32 v%d, v%d" % (vMBA, t0))
    e("    s_waitcnt lgkmcnt(0)")
    e("    s_barrier")
    if DBG:
        e("    s_memrealtime s[%d:%d]" % (sT0 + 4, sT0 + 5))
    e("    global_atomic_add v%d, v%d, v%d, s[14:15] sc0" % (vR0, vCW, vONE))
    e("    v_mov_b32 v%d, s%d" % (t0, sM1))
    e("    ds_write_b32 v%d, v%d offset:4" % (vMBA, t0))
    e("L_sls:")
    for h, (rn, ro) in enumerate(((vR1, vR0), (vR0, vR1))):
        e("    s_waitcnt lgkmcnt(0)")
        e("    s_barrier")
        e("    s_cmp_ge_u32 s%d, %d" % (sM1, CT))
        e("    s_cbranch_scc1 L_slsend")
        e("    global_atomic_add v%d, v%d, v%d, s[14:15] sc0" % (rn, vCW, vONE))
        e("    s_waitcnt vmcnt(1)")
        e("    v_readfirstlane_b32 s%d, v%d" % (sM1, ro))
        e("    s_min_u32 s%d, s%d, %d" % (sM1, sM1, CT))
        e("    s_mul_i32 s%d, s%d, %d" % (sM1, sM1, S * NW))
        e("    s_add_u32 s%d, s%d, s%d" % (sM1, sM1, sSH))
        e("    v_mov_b32 v%d, s%d" % (t0, sM1))
        e("    ds_write_b32 v%d, v%d offset:%d" % (vMBA, t0, 4 * h))
    e("    s_branch L_sls")
    e("L_slsend:")
    e("    s_mov_b64 exec, -1")
    e("    s_branch L_sround")
    e("L_final:")
    e("    v_add_u32 v%d, %d, v%d" % (vRL, RECO, vAD))
    for r in range(RND - 1):
        e("    ds_read_b128 v[%d:%d], v%d offset:%d" % (vX + 4 * r, vX + 4 * r + 3, vRL, r * 1024))
    e("    v_add_u32 v%d, %d, v%d" % (t0, (RND - 1) * PER * 1024, vRA))
    e("    global_store_dwordx4 v%d, v[%d:%d], s[14:15] sc1" % (t0, vZ, vZ + 3))
    for r in range(RND - 1):
        e("    s_waitcnt lgkmcnt(%d)" % (RND - 2 - r))
        e("    global_store_dwordx4 v%d, v[%d:%d], s[14:15] sc1" % (vRA, vX + 4 * r, vX + 4 * r + 3))
        if r + 2 < RND:
            e("    v_add_u32 v%d, %d, v%d" % (vRA, PER * 1024, vRA))
    if STAMP:
        e("    s_memrealtime s[%d:%d]" % (sT0 + 4, sT0 + 5))
    e("    s_mov_b64 exec, 1")
    e("    s_waitcnt vmcnt(0)")
    e("    global_atomic_add v%d, v%d, s[12:13]" % (vCA, vONE))
    if DBG:
        for (sr, inv, off) in ((sT0, 1, 32), (sT0 + 2, 0, 36), (sT0 + 2, 1, 40), (sT0 + 4, 0, 48), (sT0 + 4, 1, 52)):
            e("    v_mov_b32 v%d, s%d" % (t1, sr))
            if inv: e("    v_not_b32 v%d, v%d" % (t1, t1))
            e("    global_atomic_umax v%d, v%d, s[12:13] offset:%d" % (vZERO, t1, off))
            e("    s_nop 1")
    if STAMP:
        e("    s_memrealtime s[%d:%d]" % (sT0 + 6, sT0 + 7))
        e("    s_getreg_b32 s%d, hwreg(HW_REG_XCC_ID)" % (sT0 + 8))
        e("    s_getreg_b32 s%d, hwreg(HW_REG_HW_ID)" % (sT0 + 9))
        e("    s_waitcnt lgkmcnt(0)")
        for i in range(10):
            e("    v_mov_b32 v%d, s%d" % (vX + i, sT0 + i))
        e("    v_mov_b32 v%d, s%d" % (vX + 10, sT0 + 6))
        e("    v_mov_b32 v%d, s%d" % (vX + 11, sT0 + 7))
        e("    s_lshl_b32 s%d, s2, 6" % (sT0))
        e("    s_add_u32 s%d, s%d, 0x1000000" % (sT0, sT0))
        e("    v_mov_b32 v%d, s%d" % (t1, sT0))
        e("    global_store_dwordx4 v%d, v[%d:%d], s[14:15]" % (t1, vX, vX + 3))
        e("    global_store_dwordx4 v%d, v[%d:%d], s[14:15] offset:16" % (t1, vX + 4, vX + 7))
        e("    global_store_dwordx4 v%d, v[%d:%d], s[14:15] offset:32" % (t1, vX + 8, vX + 11))
    e("    s_cmp_ge_u32 s%d, %d" % (sIDX, RND))
    e("    s_cbranch_scc1 L_done")
    e("L_spin:")
    e("    global_load_dword v%d, v%d, s[12:13] sc1" % (t0, vCA))
    e("    s_waitcnt vmcnt(0)")
    e("    v_readfirstlane_b32 s%d, v%d" % (sTMP, t0))
    e("    s_cmp_lt_u32 s%d, %d" % (sTMP, PER))
    e("    s_cbranch_scc1 L_spin")
    e("    s_barrier")
    e("L_done:")
    e("    s_endpgm")
    e('.section .rodata,"a"')
    e(".p2align 6")
    e(".amdhsa_kernel %s" % KNAME)
    e("  .amdhsa_next_free_vgpr %d" % NVGPR)
    e("  .amdhsa_next_free_sgpr 96")
    e("  .amdhsa_accum_offset %d" % ((NVGPR + 3) // 4 * 4))
    e("  .amdhsa_group_segment_fixed_size 0")
    e("  .amdhsa_kernarg_size 48")
    e("  .amdhsa_user_sgpr_count 2")
    e("  .amdhsa_user_sgpr_kernarg_segment_ptr 1")
    e("  .amdhsa_system_sgpr_workgroup_id_x 1")
    e("  .amdhsa_float_denorm_mode_32 3")
    e(".end_amdhsa_kernel")
    return "\n".join(o) + "\n"

if __name__ == "__main__":
    ap = argparse.ArgumentParser()
    ap.add_argument("-o", default="standalone__mha_softmax__decode.s")
    for k, d in dict(W=4, NW=5, SS=94, S=4, STAMP=0, TRACE=0, DBG=0).items():
        ap.add_argument("--" + k, type=int, default=d)
    ap.add_argument("--POL", default="nt")
    a = vars(ap.parse_args())
    out = a.pop("o")
    open(out, "w").write(gen(**a))
    print("wrote", out)
```

```python
import math, struct, sys, argparse
H = 32; SK = 32768; D = 192
ROWB = D * 2
HEADB = SK * ROWB
NWG = 256
TB = 8 * ROWB
TPH = SK // 8

def f32hex(x):
    return "0x%08x" % struct.unpack("<I", struct.pack("<f", x))[0]

HEADER = """; Kernarg layout for this problem (48 bytes, ptrs only, base s[0:1]):
"""

def gen(W=4, NW=5, SS=94, S=4, POL="nt", STAMP=0, TRACE=0, DBG=0, KNAME="standalone__mha_softmax__decode_kernel"):
    o = []
    e = o.append
    PER = NWG // W; RND = H // W
    LOGP = int(math.log2(PER))
    CT = RND * TPH
    COLB = RND * HEADB
    SST = PER * NW
    LA = 3
    DYN0 = SS * SST
    assert DYN0 <= CT and (SS - LA - 1) * SST >= (RND - 1) * TPH, "static loop must cross the last head boundary"
    NWC = 4; RPW = PER // NWC
    assert NW >= NWC and RPW <= 32 and PER <= 64 and W <= 4
    pol = (" " + POL) if POL else ""
    C = (D ** -0.5) * math.log2(math.e)
    QB = (RND * ROWB + 1023) // 1024 * 1024
    SLOTB = NW * 7168
    RECO = QB + 2 * SLOTB
    MBO = RECO + RND * 1024
    LDS = MBO + 64
    CTR_OFF = 0x800000

    vLANE = 0; vOFF = 1; vM = 2; vA = 3; vS = 4
    vT = 6; vQ = 14; vO = 28; vMC = 52; vL = 53
    vDA = 54; vQA = 55; vTR = 56; vMB = 57; vMBA = 58
    vK = 60; vV = 72
    vX = 60
    NVGPR = max(84, vX + 26 * NW + 2, vX + QB // 256, vX + 4 * RND, vX + 4 * RPW)
    assert NVGPR <= 256
    sCOL = 24; sIDX = 25; sWAVE = 26; sMASK = 27; sC = 28; sCNT = 29; sRND = 30; sTMP = 31
    sKO = 32; sVO = 33; sG = 34; sBND = 35; sBIAS = 36; sNB = 37; sHEAD = 38; sT2 = 39
    sT0 = 40
    sSH = 53; sM0 = 54; sM1 = 55
    sW = 56

    e(HEADER + "; @launch grid=(%d,1,1) block=(%d,1,1) lds=%d" % (NWG, (NW + 1) * 64, LDS))
    if TRACE: e("; UNITBYTES=%d" % (2 * TB))
    e('.amdgcn_target "amdgcn-amd-amdhsa--gfx950"')
    e(".text")
    e(".globl %s" % KNAME)
    e(".p2align 8")
    e(".type %s,@function" % KNAME)
    e("%s:" % KNAME)
    e("    s_cmp_ge_u32 s2, %d" % NWG)
    e("    s_cbranch_scc1 L_done")
    e("    s_load_dwordx4 s[4:7], s[0:1], 0")
    e("    s_load_dwordx4 s[8:11], s[0:1], 16")
    e("    s_load_dwordx4 s[12:15], s[0:1], 32")
    if STAMP or DBG:
        e("    s_memrealtime s[%d:%d]" % (sT0, sT0 + 1))
    e("    v_lshrrev_b32 v%d, 6, v0" % vA)
    e("    v_and_b32 v%d, 63, v0" % vLANE)
    e("    v_readfirstlane_b32 s%d, v%d" % (sWAVE, vA))
    e("    s_lshr_b32 s%d, s2, %d" % (sCOL, LOGP))
    e("    s_and_b32 s%d, s2, %d" % (sIDX, PER - 1))
    e("    s_mul_i32 s%d, s%d, %d" % (sHEAD, sCOL, RND))
    e("    s_cmp_eq_u32 s%d, %d" % (sWAVE, NW))
    e("    s_cbranch_scc1 L_service")
    e("    v_lshrrev_b32 v%d, 3, v%d" % (vT, vLANE))
    e("    v_and_b32 v%d, 7, v%d" % (vQA, vLANE))
    e("    v_lshlrev_b32 v%d, 4, v%d" % (vQA, vQA))
    e("    v_mul_u32_u24 v%d, %d, v%d" % (vT, ROWB, vT))
    e("    v_add_u32 v%d, v%d, v%d" % (vOFF, vT, vQA))
    e("    s_mul_i32 s%d, s%d, %d" % (sTMP, sCOL, COLB))
    e("    s_mov_b32 s18, %d" % COLB)
    e("    s_mov_b32 s22, %d" % COLB)
    e("    s_mov_b32 s19, 0x00020000")
    e("    s_mov_b32 s23, 0x00020000")
    e("    s_mul_i32 s%d, s%d, %d" % (sG, sIDX, NW))
    e("    s_add_u32 s%d, s%d, s%d" % (sG, sG, sWAVE))
    e("    s_mul_i32 s%d, s%d, %d" % (sKO, sG, TB))
    e("    s_mul_i32 s%d, s%d, %d" % (sCNT, sHEAD, ROWB))
    e("    v_add_u32 v%d, s%d, v%d" % (vT + 1, sCNT, vQA))
    e("    s_waitcnt lgkmcnt(0)")
    e("    s_add_u32 s16, s6, s%d" % sTMP)
    e("    s_addc_u32 s17, s7, 0")
    e("    s_add_u32 s20, s8, s%d" % sTMP)
    e("    s_addc_u32 s21, s9, 0")
    e("    s_and_b32 s17, s17, 0xffff")
    e("    s_and_b32 s21, s21, 0xffff")
    def loadK(j, so=sKO):
        e("    buffer_load_dwordx4 v[%d:%d], v%d, s[16:19], s%d offen offset:%d%s" % (vK + 4 * j, vK + 4 * j + 3, vOFF, so, j * 128, pol))
    def loadV(j, so=sVO):
        e("    buffer_load_dwordx4 v[%d:%d], v%d, s[20:23], s%d offen offset:%d%s" % (vV + 4 * j, vV + 4 * j + 3, vOFF, so, j * 128, pol))
    for j in range(3): loadK(j)
    for j in range(3): loadV(j, sKO)
    for j in range(3):
        e("    global_load_dwordx4 v[%d:%d], v%d, s[4:5] offset:%d" % (vQ + 4 * j, vQ + 4 * j + 3, vT + 1, j * 128))
    e("    s_add_u32 s%d, s%d, %d" % (sKO, sKO, SST * TB))
    e("    s_mov_b32 s%d, s%d" % (sVO, sKO))
    if TRACE:
        e("    s_mul_i32 s52, s2, %d" % (NW + 1))
        e("    s_add_u32 s52, s52, s%d" % sWAVE)
        e("    s_lshl_b32 s52, s52, 10")
        e("    s_add_u32 s52, s52, 0x1100000")
        e("    v_mov_b32 v%d, s52" % vTR)
    e("    s_mov_b32 s%d, 0xffff0000" % sMASK)
    e("    s_mov_b32 s%d, %s" % (sC, f32hex(C)))
    e("    s_mov_b32 s%d, %d" % (sBND, TPH))
    e("    s_mov_b32 s%d, %d" % (sCNT, SS - LA))
    e("    s_mul_i32 s%d, s%d, 7168" % (sTMP, sWAVE))
    e("    s_add_u32 s%d, s%d, %d" % (sTMP, sTMP, QB))
    e("    v_lshlrev_b32 v%d, 4, v%d" % (vDA, vLANE))
    e("    v_add_u32 v%d, s%d, v%d" % (vDA, sTMP, vDA))
    e("    s_mov_b32 s%d, %d" % (sT2, SLOTB))
    e("    v_mov_b32 v%d, %d" % (vMBA, MBO))
    def init_state():
        e("    v_mov_b32 v%d, 0xff800000" % vM)
        e("    v_mov_b32 v%d, 0xff800000" % vMC)
        e("    v_mov_b32 v%d, 0" % vL)
        for i in range(24): e("    v_mov_b32 v%d, 0" % (vO + i))
    init_state()
    e("    s_waitcnt vmcnt(0)")
    def dump():
        for c in range(6):
            e("    ds_write_b128 v%d, v[%d:%d] offset:%d" % (vDA, vO + 4 * c, vO + 4 * c + 3, c * 1024))
        e("    ds_write_b64 v%d, v[%d:%d] offset:6144" % (vDA, vMC, vL))

    def tile(ls):
        e("    s_waitcnt vmcnt(3)")
        items = [(j, i) for j in range(3) for i in range(4)]
        for n_, (j, i) in enumerate(items):
            acc = vS if n_ % 2 == 0 else vT
            if n_ < 2:
                e("    v_dot2_f32_bf16 v%d, v%d, v%d, 0" % (acc, vK + 4 * j + i, vQ + 4 * j + i))
            else:
                e("    v_dot2_f32_bf16 v%d, v%d, v%d, v%d" % (acc, vK + 4 * j + i, vQ + 4 * j + i, acc))
        if ls:
            e("    s_waitcnt lgkmcnt(0)")
            e("    v_readfirstlane_b32 s%d, v%d" % (sNB, vMB))
            e("    v_xor_b32 v%d, 4, v%d" % (vMBA, vMBA))
            e("    s_add_u32 s%d, s%d, s%d" % (sG, sNB, sWAVE))
            e("    s_min_u32 s%d, s%d, %d" % (sKO, sG, CT))
            e("    s_mul_i32 s%d, s%d, %d" % (sKO, sKO, TB))
            e("    s_mov_b32 s%d, s%d" % (sVO, sKO))
        for j in range(3): loadK(j)
        if not ls:
            e("    s_add_u32 s%d, s%d, %d" % (sKO, sKO, SST * TB))
        e("    v_add_f32 v%d, v%d, v%d" % (vS, vS, vT))
        e("    s_nop 1")
        for pat in ("quad_perm:[1,0,3,2]", "quad_perm:[2,3,0,1]", "row_half_mirror"):
            e("    v_add_f32_dpp v%d, v%d, v%d %s row_mask:0xf bank_mask:0xf" % (vS, vS, vS, pat))
            if pat != "row_half_mirror": e("    s_nop 1")
        if ls:
            e("    v_add_f32 v%d, s%d, v%d" % (vS, sBIAS, vS))
        e("    v_max_f32 v%d, v%d, v%d" % (vM, vM, vS))
        e("    v_mov_b32 v%d, v%d" % (vA, vMC))
        e("    v_mul_f32 v%d, s%d, v%d" % (vMC, sC, vM))
        e("    v_sub_f32 v%d, v%d, v%d" % (vA, vA, vMC))
        e("    v_fma_f32 v%d, v%d, s%d, -v%d" % (vS, vS, sC, vMC))
        e("    v_exp_f32 v%d, v%d" % (vA, vA))
        e("    v_exp_f32 v%d, v%d" % (vS, vS))
        for i in range(12):
            e("    v_pk_mul_f32 v[%d:%d], v[%d:%d], v[%d:%d] op_sel:[0,1] op_sel_hi:[1,1]" %
              (vO + 2 * i, vO + 2 * i + 1, vO + 2 * i, vO + 2 * i + 1, vA - 1, vA))
        e("    v_fma_f32 v%d, v%d, v%d, v%d" % (vL, vL, vA, vS))
        for j in range(3):
            e("    s_waitcnt vmcnt(5)")
            for i in range(4):
                e("    v_lshlrev_b32 v%d, 16, v%d" % (vT + 2 * i, vV + 4 * j + i))
                e("    v_and_b32 v%d, s%d, v%d" % (vT + 2 * i + 1, sMASK, vV + 4 * j + i))
            loadV(j)
            for i in range(4):
                oo = vO + j * 8 + 2 * i
                e("    v_pk_fma_f32 v[%d:%d], v[%d:%d], v[%d:%d], v[%d:%d] op_sel_hi:[1,0,1]" %
                  (oo, oo + 1, vT + 2 * i, vT + 2 * i + 1, vS, vS + 1, oo, oo + 1))
        if not ls:
            e("    s_add_u32 s%d, s%d, %d" % (sVO, sVO, SST * TB))
            e("    s_add_u32 s%d, s%d, %d" % (sG, sG, SST))
        if TRACE:
            e("    s_memrealtime s[50:51]")
            e("    s_waitcnt lgkmcnt(0)")
            e("    v_mov_b32 v%d, s50" % vT)
            e("    s_mov_b64 exec, 1")
            e("    global_store_dword v%d, v%d, s[14:15]" % (vTR, vT))
            e("    s_mov_b64 exec, -1")
            e("    v_add_u32 v%d, 4, v%d" % (vTR, vTR))

    e("L_static:")
    e("    s_cmp_ge_u32 s%d, s%d" % (sG, sBND))
    e("    s_cbranch_scc1 L_bound")
    e("L_back:")
    tile(False)
    e("    s_sub_u32 s%d, s%d, 1" % (sCNT, sCNT))
    e("    s_cmp_lg_u32 s%d, 0" % sCNT)
    e("    s_cbranch_scc1 L_static")
    e("L_ls:")
    e("    s_barrier")
    e("    ds_read_b32 v%d, v%d" % (vMB, vMBA))
    e("    s_cmp_lt_u32 s%d, %d" % (sG, CT))
    e("    s_cselect_b32 s%d, 0, 0xff800000" % sBIAS)
    tile(True)
    e("    s_cmp_lt_u32 s%d, %d" % (sNB, CT))
    e("    s_cbranch_scc1 L_ls")
    dump()
    e("    s_waitcnt lgkmcnt(0)")
    e("    s_barrier")
    e("    s_cmp_ge_u32 s%d, %d" % (sIDX, RND))
    e("    s_cbranch_scc1 L_done")
    e("    s_cmp_ge_u32 s%d, %d" % (sWAVE, NWC))
    e("    s_cbranch_scc1 L_done")
    cA = vT; cB = vT + 1; cT = vT + 2; cT1 = vT + 3; cMX = vT + 4; cLX = vT + 5; cOW = vT + 6; cW = vT + 7
    cM = vQ; cACC = vQ + 2; cX = vX; cO = vQ + 6; cLB = vQ + 7
    e("    s_add_u32 s%d, s%d, s%d" % (sHEAD, sHEAD, sIDX))
    e("    s_lshl_b32 s%d, s%d, %d" % (sTMP, sHEAD, LOGP + 10))
    e("    v_min_u32 v%d, %d, v%d" % (cA, PER - 1, vLANE))
    e("    v_lshlrev_b32 v%d, 10, v%d" % (cA, cA))
    e("    v_add_u32 v%d, s%d, v%d" % (cA, sTMP, cA))
    e("    s_mul_i32 s%d, s%d, %d" % (sCNT, sWAVE, RPW * 1024))
    e("    s_add_u32 s%d, s%d, s%d" % (sCNT, sCNT, sTMP))
    e("    v_lshlrev_b32 v%d, 4, v%d" % (cLB, vLANE))
    e("    v_add_u32 v%d, s%d, v%d" % (cB, sCNT, cLB))
    e("    v_min_u32 v%d, %d, v%d" % (cT, RPW - 1, vLANE))
    e("    v_lshlrev_b32 v%d, 10, v%d" % (cT, cT))
    e("    v_add_u32 v%d, s%d, v%d" % (cT, sCNT, cT))
    e("    v_and_b32 v%d, 7, v%d" % (cO, vLANE))
    e("    v_lshlrev_b32 v%d, 4, v%d" % (cO, cO))
    e("    v_lshrrev_b32 v%d, 3, v%d" % (cT1, vLANE))
    e("    v_lshl_add_u32 v%d, v%d, 1, v%d" % (cO, cT1, cO))
    e("    s_mul_i32 s%d, s%d, %d" % (sTMP, sHEAD, ROWB))
    e("    v_add_u32 v%d, s%d, v%d" % (cO, sTMP, cO))
    e("    s_lshl_b32 s%d, s%d, 10" % (sTMP, sWAVE))
    e("    v_add_u32 v%d, s%d, v%d" % (cW, sTMP, cLB))
    e("    s_waitcnt vmcnt(0)")
    e("    s_barrier")
    if STAMP: e("    s_memrealtime s[42:43]")
    e("    global_load_dword v%d, v%d, s[14:15] offset:12 sc1" % (cM, cA))
    e("    global_load_dword v%d, v%d, s[14:15] offset:28 sc1" % (cM + 1, cA))
    e("    global_load_dword v%d, v%d, s[14:15] offset:12 sc1" % (cOW, cT))
    for j in range(RPW):
        e("    global_load_dwordx4 v[%d:%d], v%d, s[14:15] offset:%d sc1" % (cX + 4 * j, cX + 4 * j + 3, cB, (j % 4) * 1024))
        if j % 4 == 3 and j + 1 < RPW:
            e("    v_add_u32 v%d, 4096, v%d" % (cB, cB))
    e("    s_waitcnt vmcnt(%d)" % RPW)
    if STAMP: e("    s_memrealtime s[44:45]")
    e("    v_mov_b32 v%d, v%d" % (cMX, cM))
    def allreduce(op, r, t):
        e("    s_nop 1")
        for pat in ("quad_perm:[1,0,3,2]", "quad_perm:[2,3,0,1]", "row_half_mirror", "row_ror:8"):
            e("    %s_dpp v%d, v%d, v%d %s row_mask:0xf bank_mask:0xf" % (op, r, r, r, pat))
            e("    s_nop 1")
        for sw in ("v_permlane16_swap_b32", "v_permlane32_swap_b32"):
            e("    v_mov_b32 v%d, v%d" % (t, r))
            e("    s_nop 1")
            e("    %s v%d, v%d" % (sw, r, t))
            e("    s_nop 0")
            e("    %s v%d, v%d, v%d" % (op, r, r, t))
    allreduce("v_max_f32", cMX, cT)
    e("    v_sub_f32 v%d, v%d, v%d" % (cM, cM, cMX))
    e("    v_sub_f32 v%d, v%d, v%d" % (cOW, cOW, cMX))
    e("    v_exp_f32 v%d, v%d" % (cM, cM))
    e("    v_exp_f32 v%d, v%d" % (cOW, cOW))
    if PER < 64:
        e("    v_cmp_gt_u32 vcc, %d, v%d" % (PER, vLANE))
    e("    v_mul_f32 v%d, v%d, v%d" % (cLX, cM, cM + 1))
    if PER < 64:
        e("    s_nop 0")
        e("    v_cndmask_b32 v%d, 0, v%d, vcc" % (cLX, cLX))
    allreduce("v_add_f32", cLX, cT)
    e("    v_rcp_f32 v%d, v%d" % (cLX, cLX))
    e("    v_mov_b32 v%d, 0" % cACC)
    e("    v_mov_b32 v%d, 0" % (cACC + 1))
    e("    v_mul_f32 v%d, v%d, v%d" % (cOW, cOW, cLX))
    e("    v_mov_b32 v%d, 0" % (cACC + 2))
    for j in range(RPW):
        e("    v_readlane_b32 s%d, v%d, %d" % (sW + j, cOW, j))
    e("    s_nop 0")
    if STAMP: e("    s_memrealtime s[46:47]")
    for j in range(RPW):
        if j % 4 == 0:
            e("    s_waitcnt vmcnt(%d)" % (RPW - 4 - j))
        sp = (sW + j) & ~1; hi = (sW + j) & 1
        e("    v_pk_fma_f32 v[%d:%d], v[%d:%d], s[%d:%d], v[%d:%d] op_sel:[0,%d,0] op_sel_hi:[1,%d,1]" %
          (cACC, cACC + 1, cX + 4 * j, cX + 4 * j + 1, sp, sp + 1, cACC, cACC + 1, hi, hi))
        e("    v_fma_f32 v%d, v%d, s%d, v%d" % (cACC + 2, cX + 4 * j + 2, sW + j, cACC + 2))
    if STAMP: e("    s_memrealtime s[48:49]")
    e("    ds_write_b128 v%d, v[%d:%d]" % (cW, cACC, cACC + 3))
    e("    s_waitcnt lgkmcnt(0)")
    e("    s_barrier")
    e("    s_cmp_lg_u32 s%d, 0" % sWAVE)
    e("    s_cbranch_scc1 L_done")
    for w in range(1, NWC):
        e("    ds_read_b128 v[%d:%d], v%d offset:%d" % (cX + 4 * w, cX + 4 * w + 3, cLB, w * 1024))
    for w in range(1, NWC):
        e("    s_waitcnt lgkmcnt(%d)" % (NWC - 1 - w))
        e("    v_pk_add_f32 v[%d:%d], v[%d:%d], v[%d:%d]" % (cACC, cACC + 1, cACC, cACC + 1, cX + 4 * w, cX + 4 * w + 1))
        e("    v_add_f32 v%d, v%d, v%d" % (cACC + 2, cACC + 2, cX + 4 * w + 2))
    e("    v_cvt_pk_bf16_f32 v%d, v%d, v%d" % (cACC, cACC, cACC + 1))
    e("    v_cvt_pk_bf16_f32 v%d, v%d, v%d" % (cACC + 2, cACC + 2, cACC + 2))
    e("    global_store_short v%d, v%d, s[10:11]" % (cO, cACC))
    e("    global_store_short_d16_hi v%d, v%d, s[10:11] offset:128" % (cO, cACC))
    e("    global_store_short v%d, v%d, s[10:11] offset:256" % (cO, cACC + 2))
    if STAMP:
        e("    s_waitcnt vmcnt(0)")
        e("    s_memrealtime s[50:51]")
        e("    s_lshl_b32 s%d, s2, 6" % sTMP)
        e("    s_add_u32 s%d, s%d, 0x1000000" % (sTMP, sTMP))
        e("    v_mov_b32 v%d, s%d" % (cT, sTMP))
        e("    s_waitcnt lgkmcnt(0)")
        e("    v_mov_b32 v%d, s50" % cACC)
        e("    v_mov_b32 v%d, s51" % (cACC + 1))
        e("    s_mov_b64 exec, 1")
        e("    global_store_dwordx2 v%d, v[%d:%d], s[14:15] offset:48" % (cT, cACC, cACC + 1))
        for i in range(4): e("    v_mov_b32 v%d, s%d" % (cX + i, 42 + 2 * i))
        e("    v_add_u32 v%d, 0x8000, v%d" % (cT, cT))
        e("    global_store_dwordx4 v%d, v[%d:%d], s[14:15]" % (cT, cX, cX + 3))
    e("    s_endpgm")
    e("L_bound:")
    dump()
    e("    v_add_u32 v%d, s%d, v%d" % (vDA, sT2, vDA))
    e("    s_sub_u32 s%d, 0, s%d" % (sT2, sT2))
    e("    v_add_u32 v%d, %d, v%d" % (vQA, ROWB, vQA))
    e("    s_add_u32 s%d, s%d, %d" % (sBND, sBND, TPH))
    e("    s_waitcnt lgkmcnt(0)")
    e("    s_barrier")
    for j in range(3):
        e("    ds_read_b128 v[%d:%d], v%d offset:%d" % (vQ + 4 * j, vQ + 4 * j + 3, vQA, j * 128))
    init_state()
    e("    s_waitcnt lgkmcnt(0)")
    e("    s_branch L_back")

    e("L_service:")
    vAD = vT; vRA = vT + 1; vCA = vT + 2; vONE = vT + 3; vMX = vT + 4; vLX = vT + 5; t0 = vT + 6; t1 = vT + 7
    vR0 = vQ; vR1 = vQ + 1; vZERO = vQ + 2; vRL = vQ + 3; vCW = vQ + 4; vZ = vQ + 6
    e("    v_lshlrev_b32 v%d, 4, v%d" % (vAD, vLANE))
    e("    s_mul_i32 s%d, s%d, %d" % (sTMP, sHEAD, ROWB))
    e("    v_add_u32 v%d, s%d, v%d" % (vRA, sTMP, vAD))
    e("    v_mov_b32 v%d, 1" % vONE)
    e("    v_mov_b32 v%d, 0" % vZERO)
    e("    s_waitcnt lgkmcnt(0)")
    e("    s_mov_b32 s16, s4")
    e("    s_and_b32 s17, s5, 0xffff")
    e("    s_mov_b32 s18, %d" % (H * ROWB))
    e("    s_mov_b32 s19, 0x00020000")
    for k in range(QB // 1024):
        if k and k % 4 == 0: e("    v_add_u32 v%d, 4096, v%d" % (vRA, vRA))
        e("    buffer_load_dwordx4 v[%d:%d], v%d, s[16:19], 0 offen offset:%d" % (vX + 4 * k, vX + 4 * k + 3, vRA, (k % 4) * 1024))
    e("    s_lshl_b32 s%d, s%d, %d" % (sTMP, sHEAD, LOGP))
    e("    s_add_u32 s%d, s%d, s%d" % (sTMP, sTMP, sIDX))
    e("    s_lshl_b32 s%d, s%d, 10" % (sTMP, sTMP))
    e("    v_add_u32 v%d, s%d, v%d" % (vRA, sTMP, vAD))
    if DBG:
        e("    s_lshl_b32 s%d, s%d, 5" % (sTMP, sCOL))
        e("    s_add_u32 s%d, s%d, 64" % (sTMP, sTMP))
    else:
        e("    s_lshl_b32 s%d, s%d, 6" % (sTMP, sCOL))
    e("    v_mov_b32 v%d, s%d" % (vCA, sTMP))
    e("    s_lshr_b32 s%d, s%d, 3" % (sSH, sIDX))
    e("    s_and_b32 s%d, s%d, %d" % (sSH, sSH, S - 1))
    e("    s_mul_i32 s%d, s%d, %d" % (sTMP, sCOL, S))
    e("    s_add_u32 s%d, s%d, s%d" % (sTMP, sTMP, sSH))
    e("    s_lshl_b32 s%d, s%d, 8" % (sTMP, sTMP))
    e("    s_add_u32 s%d, s%d, 0x%x" % (sTMP, sTMP, CTR_OFF))
    e("    v_mov_b32 v%d, s%d" % (vCW, sTMP))
    e("    s_mov_b32 s%d, %d" % (sRND, RND - 1))
    e("    s_mov_b32 s%d, %d" % (sT2, SLOTB))
    e("    v_add_u32 v%d, %d, v%d" % (vDA, QB, vAD))
    e("    v_add_u32 v%d, %d, v%d" % (vRL, RECO, vAD))
    e("    v_mov_b32 v%d, %d" % (vMBA, MBO))
    e("    s_waitcnt vmcnt(0)")
    for k in range(QB // 1024):
        e("    ds_write_b128 v%d, v[%d:%d] offset:%d" % (vAD, vX + 4 * k, vX + 4 * k + 3, k * 1024))
    def elect(tag):
        e("    s_mov_b64 exec, 1")
        e("    global_atomic_add v%d, v%d, v%d, s[12:13] offset:224 sc0" % (t0, vZERO, vONE))
        e("    s_waitcnt vmcnt(0)")
        e("    v_readfirstlane_b32 s%d, v%d" % (sTMP, t0))
        e("    s_mov_b64 exec, -1")
        e("    s_cmp_lg_u32 s%d, 0" % sTMP)
        e("    s_cbranch_scc1 L_lost%s" % tag)
        e("    v_lshlrev_b32 v%d, 8, v%d" % (t0, vLANE))
        e("    v_add_u32 v%d, 0x%x, v%d" % (t0, CTR_OFF, t0))
        e("    global_store_dword v%d, v%d, s[14:15] sc1" % (t0, vZERO))
        e("    s_waitcnt vmcnt(0)")
        e("    global_store_dword v%d, v%d, s[12:13] offset:228 sc1" % (vZERO, vONE))
        e("L_lost%s:" % tag)
    assert W * S <= 64
    e("    s_cmp_lg_u32 s%d, 0" % sIDX)
    e("    s_cbranch_scc1 L_lostA")
    elect("A")

    vY = vX + 24 * NW
    def reduce_wg():
        for w in range(NW):
            e("    ds_read_b64 v[%d:%d], v%d offset:%d" % (vY + 2 * w, vY + 2 * w + 1, vDA, w * 7168 + 6144))
        for w in range(NW):
            for c in range(6):
                e("    ds_read_b128 v[%d:%d], v%d offset:%d" % (vX + 24 * w + 4 * c, vX + 24 * w + 4 * c + 3, vDA, w * 7168 + c * 1024))
        e("    v_add_u32 v%d, s%d, v%d" % (vDA, sT2, vDA))
        e("    s_sub_u32 s%d, 0, s%d" % (sT2, sT2))
        e("    s_waitcnt lgkmcnt(%d)" % (0 if (STAMP or DBG) else min(15, 6 * NW)))
        e("    v_mov_b32 v%d, v%d" % (vMX, vY))
        for w in range(1, NW):
            e("    v_max_f32 v%d, v%d, v%d" % (vMX, vMX, vY + 2 * w))
        e("    s_nop 1")
        e("    v_max_f32_dpp v%d, v%d, v%d row_ror:8 row_mask:0xf bank_mask:0xf" % (vMX, vMX, vMX))
        for sw in ("v_permlane16_swap_b32", "v_permlane32_swap_b32"):
            e("    s_nop 0")
            e("    v_mov_b32 v%d, v%d" % (t0, vMX))
            e("    s_nop 1")
            e("    %s v%d, v%d" % (sw, vMX, t0))
            e("    s_nop 0")
            e("    v_max_f32 v%d, v%d, v%d" % (vMX, vMX, t0))
        for w in range(NW):
            e("    v_sub_f32 v%d, v%d, v%d" % (vY + 2 * w, vY + 2 * w, vMX))
        for w in range(NW):
            e("    v_exp_f32 v%d, v%d" % (vY + 2 * w, vY + 2 * w))
        e("    s_nop 0")
        e("    v_mul_f32 v%d, v%d, v%d" % (vL, vY, vY + 1))
        for w in range(1, NW):
            e("    v_fma_f32 v%d, v%d, v%d, v%d" % (vL, vY + 2 * w, vY + 2 * w + 1, vL))
        e("    s_waitcnt lgkmcnt(0)")
        for i in range(12):
            e("    v_pk_mul_f32 v[%d:%d], v[%d:%d], v[%d:%d] op_sel_hi:[1,0]" %
              (vO + 2 * i, vO + 2 * i + 1, vX + 2 * i, vX + 2 * i + 1, vY, vY + 1))
        e("    v_add_f32_dpp v%d, v%d, v%d row_ror:8 row_mask:0xf bank_mask:0xf" % (vLX, vL, vL))
        for w in range(1, NW):
            for i in range(12):
                e("    v_pk_fma_f32 v[%d:%d], v[%d:%d], v[%d:%d], v[%d:%d] op_sel_hi:[1,0,1]" %
                  (vO + 2 * i, vO + 2 * i + 1, vX + 24 * w + 2 * i, vX + 24 * w + 2 * i + 1, vY + 2 * w, vY + 2 * w + 1, vO + 2 * i, vO + 2 * i + 1))
        e("    v_mov_b32 v%d, v%d" % (t0, vLX))
        e("    s_nop 1")
        for j in range(3):
            for ee in range(4):
                a = vO + j * 8 + ee
                e("    v_permlane32_swap_b32 v%d, v%d" % (a, a + 4))
        e("    v_permlane16_swap_b32 v%d, v%d" % (vLX, t0))
        for j in range(3):
            for ee in range(4):
                a = vO + j * 8 + ee
                e("    v_add_f32 v%d, v%d, v%d" % (a, a, a + 4))
        e("    v_add_f32 v%d, v%d, v%d" % (vLX, vLX, t0))
        e("    s_nop 0")
        for j in range(3):
            for ee in range(2):
                a = vO + j * 8 + ee
                e("    v_permlane16_swap_b32 v%d, v%d" % (a, a + 2))
        e("    v_mov_b32 v%d, v%d" % (t0, vLX))
        for j in range(3):
            for ee in range(2):
                a = vO + j * 8 + ee
                e("    v_add_f32 v%d, v%d, v%d" % (a, a, a + 2))
        e("    v_permlane32_swap_b32 v%d, v%d" % (vLX, t0))
        e("    v_cmp_eq_u32 vcc, 1, v%d" % vLANE)
        for j in range(3):
            a = vO + j * 8
            e("    v_add_f32_dpp v%d, v%d, v%d row_ror:8 row_mask:0xf bank_mask:0x3" % (vZ + j, a, a))
        e("    v_add_f32 v%d, v%d, v%d" % (vLX, vLX, t0))
        for j in range(3):
            a = vO + j * 8
            e("    v_add_f32_dpp v%d, v%d, v%d row_ror:8 row_mask:0xf bank_mask:0xc" % (vZ + j, a + 1, a + 1))
        e("    v_cndmask_b32 v%d, v%d, v%d, vcc" % (vZ + 3, vMX, vLX))

    e("L_sround:")
    e("    s_waitcnt lgkmcnt(0)")
    e("    s_barrier")
    if STAMP or DBG:
        e("    s_memrealtime s[%d:%d]" % (sT0 + 2, sT0 + 3))
    reduce_wg()
    e("    s_cmp_eq_u32 s%d, 0" % sRND)
    e("    s_cbranch_scc1 L_final")
    e("    ds_write_b128 v%d, v[%d:%d]" % (vRL, vZ, vZ + 3))
    e("    v_add_u32 v%d, 1024, v%d" % (vRL, vRL))
    e("    s_sub_u32 s%d, s%d, 1" % (sRND, sRND))
    e("    s_cmp_lg_u32 s%d, 0" % sRND)
    e("    s_cbranch_scc1 L_sround")
    e("    global_load_dword v%d, v%d, s[12:13] offset:228 sc1" % (t0, vZERO))
    e("    s_waitcnt vmcnt(0)")
    e("    v_readfirstlane_b32 s%d, v%d" % (sTMP, t0))
    e("    s_cmp_lg_u32 s%d, 0" % sTMP)
    e("    s_cbranch_scc1 L_ready")
    elect("B")
    e("L_spinf:")
    e("    global_load_dword v%d, v%d, s[12:13] offset:228 sc1" % (t0, vZERO))
    e("    s_waitcnt vmcnt(0)")
    e("    v_readfirstlane_b32 s%d, v%d" % (sTMP, t0))
    e("    s_cmp_eq_u32 s%d, 0" % sTMP)
    e("    s_cbranch_scc1 L_spinf")
    e("L_ready:")
    e("    s_mul_i32 s%d, s%d, %d" % (sM0, sIDX, NW))
    e("    s_add_u32 s%d, s%d, %d" % (sM0, sM0, (SS - 2) * SST))
    e("    s_add_u32 s%d, s%d, %d" % (sM1, sM0, SST))
    e("    s_mul_i32 s%d, s%d, %d" % (sSH, sSH, NW))
    e("    s_add_u32 s%d, s%d, %d" % (sSH, sSH, DYN0))
    e("    s_mov_b64 exec, 1")
    e("    v_mov_b32 v%d, s%d" % (t0, sM0))
    e("    ds_write_b32 v%d, v%d" % (vMBA, t0))
    e("    s_waitcnt lgkmcnt(0)")
    e("    s_barrier")
    if DBG:
        e("    s_memrealtime s[%d:%d]" % (sT0 + 4, sT0 + 5))
    e("    global_atomic_add v%d, v%d, v%d, s[14:15] sc0" % (vR0, vCW, vONE))
    e("    v_mov_b32 v%d, s%d" % (t0, sM1))
    e("    ds_write_b32 v%d, v%d offset:4" % (vMBA, t0))
    e("L_sls:")
    for h, (rn, ro) in enumerate(((vR1, vR0), (vR0, vR1))):
        e("    s_waitcnt lgkmcnt(0)")
        e("    s_barrier")
        e("    s_cmp_ge_u32 s%d, %d" % (sM1, CT))
        e("    s_cbranch_scc1 L_slsend")
        e("    global_atomic_add v%d, v%d, v%d, s[14:15] sc0" % (rn, vCW, vONE))
        e("    s_waitcnt vmcnt(1)")
        e("    v_readfirstlane_b32 s%d, v%d" % (sM1, ro))
        e("    s_min_u32 s%d, s%d, %d" % (sM1, sM1, CT))
        e("    s_mul_i32 s%d, s%d, %d" % (sM1, sM1, S * NW))
        e("    s_add_u32 s%d, s%d, s%d" % (sM1, sM1, sSH))
        e("    v_mov_b32 v%d, s%d" % (t0, sM1))
        e("    ds_write_b32 v%d, v%d offset:%d" % (vMBA, t0, 4 * h))
    e("    s_branch L_sls")
    e("L_slsend:")
    e("    s_mov_b64 exec, -1")
    e("    s_branch L_sround")
    e("L_final:")
    e("    v_add_u32 v%d, %d, v%d" % (vRL, RECO, vAD))
    for r in range(RND - 1):
        e("    ds_read_b128 v[%d:%d], v%d offset:%d" % (vX + 4 * r, vX + 4 * r + 3, vRL, r * 1024))
    e("    v_add_u32 v%d, %d, v%d" % (t0, (RND - 1) * PER * 1024, vRA))
    e("    global_store_dwordx4 v%d, v[%d:%d], s[14:15] sc1" % (t0, vZ, vZ + 3))
    for r in range(RND - 1):
        e("    s_waitcnt lgkmcnt(%d)" % (RND - 2 - r))
        e("    global_store_dwordx4 v%d, v[%d:%d], s[14:15] sc1" % (vRA, vX + 4 * r, vX + 4 * r + 3))
        if r + 2 < RND:
            e("    v_add_u32 v%d, %d, v%d" % (vRA, PER * 1024, vRA))
    if STAMP:
        e("    s_memrealtime s[%d:%d]" % (sT0 + 4, sT0 + 5))
    e("    s_mov_b64 exec, 1")
    e("    s_waitcnt vmcnt(0)")
    e("    global_atomic_add v%d, v%d, s[12:13]" % (vCA, vONE))
    if DBG:
        e("    s_getreg_b32 s%d, hwreg(HW_REG_XCC_ID)" % (sT0 + 8))
        e("    v_mov_b32 v%d, s%d" % (vX, sT0))
        e("    v_mov_b32 v%d, s%d" % (vX + 1, sT0 + 4))
        e("    v_mov_b32 v%d, s%d" % (vX + 2, sT0 + 2))
        e("    v_mov_b32 v%d, s%d" % (vX + 3, sT0 + 8))
        e("    s_lshl_b32 s%d, s2, 4" % sTMP)
        e("    s_add_u32 s%d, s%d, 0x1000000" % (sTMP, sTMP))
        e("    v_mov_b32 v%d, s%d" % (t1, sTMP))
        e("    global_store_dwordx4 v%d, v[%d:%d], s[14:15] sc1" % (t1, vX, vX + 3))
        e("    s_waitcnt vmcnt(0)")
        e("    global_atomic_add v%d, v%d, v%d, s[12:13] offset:240 sc0" % (t1, vZERO, vONE))
        e("    s_waitcnt vmcnt(0)")
        e("    v_readfirstlane_b32 s%d, v%d" % (sTMP, t1))
        e("    s_cmp_lg_u32 s%d, 255" % sTMP)
        e("    s_cbranch_scc1 L_nodiag")
        e("    s_mov_b64 exec, -1")
        e("    v_add_u32 v%d, 0x1000000, v%d" % (t1, vAD))
        for c in range(4):
            e("    global_load_dwordx4 v[%d:%d], v%d, s[14:15] offset:%d sc1" % (vX + 4 * c, vX + 4 * c + 3, t1, c * 1024))
        e("    s_waitcnt vmcnt(0)")
        e("    v_readfirstlane_b32 s%d, v%d" % (sTMP, vX))
        e("    s_nop 1")
        for c in range(4):
            e("    v_subrev_u32 v%d, s%d, v%d" % (vX + 4 * c + 1, sTMP, vX + 4 * c + 1))
            e("    v_subrev_u32 v%d, s%d, v%d" % (vX + 4 * c + 2, sTMP, vX + 4 * c + 2))
            e("    v_and_b32 v%d, 15, v%d" % (vX + 4 * c + 3, vX + 4 * c + 3))
            e("    v_lshlrev_b32 v%d, 2, v%d" % (vX + 4 * c + 3, vX + 4 * c + 3))
        e("    v_lshlrev_b32 v%d, 2, v%d" % (t0, vLANE))
        e("    ds_write_b32 v%d, v%d" % (t0, vZERO))
        e("    s_waitcnt lgkmcnt(0)")
        for c in range(4):
            e("    v_sub_u32 v%d, 65535, v%d" % (t1, vX + 4 * c + 1))
            e("    ds_max_u32 v%d, v%d offset:%d" % (vZERO, vX + 4 * c + 1, 4 * c))
            e("    ds_max_u32 v%d, v%d offset:%d" % (vZERO, t1, 16 + 4 * c))
            e("    ds_max_u32 v%d, v%d offset:32" % (vX + 4 * c + 3, vX + 4 * c + 1))
            e("    ds_max_u32 v%d, v%d offset:64" % (vX + 4 * c + 3, t1))
            e("    ds_max_u32 v%d, v%d offset:%d" % (vZERO, vX + 4 * c + 2, 96 + 4 * c))
            e("    s_waitcnt lgkmcnt(0)")
        e("    ds_read_b32 v%d, v%d" % (vX, t0))
        e("    ds_read_b32 v%d, v%d offset:16" % (vX + 1, t0))
        e("    ds_read_b32 v%d, v%d offset:48" % (vX + 2, t0))
        e("    s_waitcnt lgkmcnt(0)")
        e("    v_sub_u32 v%d, 65535, v%d" % (vX + 3, vX + 1))
        e("    v_lshl_or_b32 v%d, v%d, 16, v%d" % (vX + 4, vX + 3, vX))
        e("    v_sub_u32 v%d, 65535, v%d" % (vX + 3, vX + 2))
        e("    v_lshl_or_b32 v%d, v%d, 16, v%d" % (vX + 5, vX + 3, vX + 1))
        e("    v_cmp_gt_u32 vcc, 4, v%d" % vLANE)
        e("    s_nop 1")
        e("    v_cndmask_b32 v%d, v%d, v%d, vcc" % (vX + 5, vX + 5, vX + 4))
        e("    v_cmp_lt_u32 vcc, 11, v%d" % vLANE)
        e("    s_nop 1")
        e("    v_cndmask_b32 v%d, v%d, v%d, vcc" % (vX + 5, vX + 5, vX + 2))
        e("    s_mov_b64 exec, 0xffff")
        e("    global_store_dword v%d, v%d, s[12:13] sc1" % (t0, vX + 5))
        e("    s_waitcnt vmcnt(0)")
        e("    s_mov_b64 exec, 1")
        e("L_nodiag:")
    if STAMP:
        e("    s_memrealtime s[%d:%d]" % (sT0 + 6, sT0 + 7))
        e("    s_getreg_b32 s%d, hwreg(HW_REG_XCC_ID)" % (sT0 + 8))
        e("    s_getreg_b32 s%d, hwreg(HW_REG_HW_ID)" % (sT0 + 9))
        e("    s_waitcnt lgkmcnt(0)")
        for i in range(10):
            e("    v_mov_b32 v%d, s%d" % (vX + i, sT0 + i))
        e("    v_mov_b32 v%d, s%d" % (vX + 10, sT0 + 6))
        e("    v_mov_b32 v%d, s%d" % (vX + 11, sT0 + 7))
        e("    s_lshl_b32 s%d, s2, 6" % (sT0))
        e("    s_add_u32 s%d, s%d, 0x1000000" % (sT0, sT0))
        e("    v_mov_b32 v%d, s%d" % (t1, sT0))
        e("    global_store_dwordx4 v%d, v[%d:%d], s[14:15]" % (t1, vX, vX + 3))
        e("    global_store_dwordx4 v%d, v[%d:%d], s[14:15] offset:16" % (t1, vX + 4, vX + 7))
        e("    global_store_dwordx4 v%d, v[%d:%d], s[14:15] offset:32" % (t1, vX + 8, vX + 11))
    e("    s_cmp_ge_u32 s%d, %d" % (sIDX, RND))
    e("    s_cbranch_scc1 L_done")
    e("L_spin:")
    e("    global_load_dword v%d, v%d, s[12:13] sc1" % (t0, vCA))
    e("    s_waitcnt vmcnt(0)")
    e("    v_readfirstlane_b32 s%d, v%d" % (sTMP, t0))
    e("    s_cmp_lt_u32 s%d, %d" % (sTMP, PER))
    e("    s_cbranch_scc1 L_spin")
    e("    s_barrier")
    e("L_done:")
    e("    s_endpgm")
    e('.section .rodata,"a"')
    e(".p2align 6")
    e(".amdhsa_kernel %s" % KNAME)
    e("  .amdhsa_next_free_vgpr %d" % NVGPR)
    e("  .amdhsa_next_free_sgpr 96")
    e("  .amdhsa_accum_offset %d" % ((NVGPR + 3) // 4 * 4))
    e("  .amdhsa_group_segment_fixed_size 0")
    e("  .amdhsa_kernarg_size 48")
    e("  .amdhsa_user_sgpr_count 2")
    e("  .amdhsa_user_sgpr_kernarg_segment_ptr 1")
    e("  .amdhsa_system_sgpr_workgroup_id_x 1")
    e("  .amdhsa_float_denorm_mode_32 3")
    e(".end_amdhsa_kernel")
    return "\n".join(o) + "\n"

if __name__ == "__main__":
    ap = argparse.ArgumentParser()
    ap.add_argument("-o", default="standalone__mha_softmax__decode.s")
    for k, d in dict(W=4, NW=5, SS=94, S=4, STAMP=0, TRACE=0, DBG=0).items():
        ap.add_argument("--" + k, type=int, default=d)
    ap.add_argument("--POL", default="nt")
    a = vars(ap.parse_args())
    out = a.pop("o")
    open(out, "w").write(gen(**a))
    print("wrote", out)
```

```python
import math, struct, sys, argparse
H = 32; SK = 32768; D = 192
ROWB = D * 2
HEADB = SK * ROWB
NWG = 256
TB = 8 * ROWB
TPH = SK // 8

def f32hex(x):
    return "0x%08x" % struct.unpack("<I", struct.pack("<f", x))[0]

HEADER = """; Kernarg layout for this problem (48 bytes, ptrs only, base s[0:1]):
"""

def gen(W=8, NW=4, SS=13, SSL=0, TP=256, G=4, CAP=10, S=1, POL="nt", STAMP=0, TRACE=0, DBG=0, PUB=0, KNAME="standalone__mha_softmax__decode_kernel"):
    o = []
    e = o.append
    PER = NWG // W; RND = H // W
    LOGP = int(math.log2(PER))
    TB2 = 2 * TB
    TPH2 = SK // 16
    TOTB = H * HEADB
    SST = PER * NW
    LA = 3
    if not SSL: SSL = min(SS, (TPH2 - TP) // SST)
    assert SS * SST <= TPH2 and SSL * SST <= TPH2 - TP and SSL >= LA + 1 and SS <= 64 and RND % G == 0
    WPS = PER // S
    for ss, lim in ((SS, TPH2), (SSL, TPH2 - TP)):
        assert CAP * WPS >= -(-(lim - ss * SST) // (NW * S)), "cap too small to cover the dynamic units"
    NUT = -(-(2 * TP) // (NW * S))
    MAXN = max(SS, SSL) + CAP + 2
    MAXL = MAXN + NUT + 2
    NWC = max(1, PER // 16); RPW = PER // NWC
    assert NW >= NWC and PER <= 64 and (RND + 1) * W * S <= 64
    pol = (" " + POL) if POL else ""
    C = (D ** -0.5) * math.log2(math.e)
    QB = max(4096, (RND * ROWB + 1023) // 1024 * 1024)
    SLOTB = NW * 7168
    RECO = QB + 2 * SLOTB
    LO = RECO + RND * 1024
    LSZ = (MAXL * 4 + 63) // 64 * 64
    SCO = LO + RND * LSZ
    SCW = (MAXN + 1) * 64
    LDS = SCO + NW * G * SCW
    assert LDS <= 160 * 1024
    CTR_OFF = 0x800000
    OOB = 0xF0000000

    vLANE = 0; vOFF = 1; vM = 2; vNB = 3; vS = 4; vA = 3
    vT = 6; vQ = 14; vO = 28; vMC = 52; vL = 53
    vDA = 54; vQA = 55; vTR = 56; vSA = 57; vLA = 58; vS0 = 59
    vB = 60
    vX = 60
    NVGPR = max(84, vX + 26 * NW + 2, vX + 4 * RND, vX + 4 * RPW)
    assert NVGPR <= 256
    sCOL = 24; sIDX = 25; sWAVE = 26; sMASK = 27; sC = 28; sCNT = 29; sRND = 30; sTMP = 31
    sOFF = 32; sHO = 33; sG = 34; sHON = 35; sBIAS = 36; sNB = 37; sHEAD = 38; sT2 = 39
    sT0 = 40
    sSH = 53; sM0 = 54; sM1 = 55
    sN = 88; sNT = 89; sL0 = 90; sLD = 91; sOFB = 92; sLIM = 93; sVB = 94; sBASE = 95
    sR = 30; sI = 72; sNLS = 73; sSCD = 74; sCAP = 75; sISS = 76; sHG = 77
    sW = 56

    e(HEADER + "; @launch grid=(%d,1,1) block=(%d,1,1) lds=%d" % (NWG, (NW + 1) * 64, LDS))
    if TRACE: e("; UNITBYTES=%d" % TB2)
    e('.amdgcn_target "amdgcn-amd-amdhsa--gfx950"')
    e(".text")
    e(".globl %s" % KNAME)
    e(".p2align 8")
    e(".type %s,@function" % KNAME)
    e("%s:" % KNAME)
    e("    s_cmp_ge_u32 s2, %d" % NWG)
    e("    s_cbranch_scc1 L_done")
    e("    s_load_dwordx4 s[4:7], s[0:1], 0")
    e("    s_load_dwordx4 s[8:11], s[0:1], 16")
    e("    s_load_dwordx4 s[12:15], s[0:1], 32")
    if STAMP or DBG:
        e("    s_memrealtime s[%d:%d]" % (sT0, sT0 + 1))
    e("    v_lshrrev_b32 v%d, 6, v0" % vA)
    e("    v_and_b32 v%d, 63, v0" % vLANE)
    e("    v_readfirstlane_b32 s%d, v%d" % (sWAVE, vA))
    e("    s_lshr_b32 s%d, s2, %d" % (sCOL, LOGP))
    e("    s_and_b32 s%d, s2, %d" % (sIDX, PER - 1))
    e("    s_cmp_eq_u32 s%d, %d" % (sWAVE, NW))
    e("    s_cbranch_scc1 L_service")
    e("    v_lshrrev_b32 v%d, 3, v%d" % (vS0, vLANE))
    e("    v_and_b32 v%d, 7, v%d" % (vQA, vLANE))
    e("    v_lshlrev_b32 v%d, 4, v%d" % (vQA, vQA))
    e("    v_mul_u32_u24 v%d, %d, v%d" % (vT, ROWB, vS0))
    e("    v_add_u32 v%d, v%d, v%d" % (vOFF, vT, vQA))
    e("    s_mov_b32 s18, %d" % TOTB)
    e("    s_mov_b32 s19, 0x00020000")
    e("    s_mov_b32 s22, %d" % TOTB)
    e("    s_mov_b32 s23, 0x00020000")
    e("    s_mul_i32 s%d, s%d, %d" % (sHO, sCOL, HEADB))
    e("    s_mul_i32 s%d, s%d, %d" % (sL0, sIDX, NW))
    e("    s_add_u32 s%d, s%d, s%d" % (sG, sL0, sWAVE))
    e("    s_mul_i32 s%d, s%d, %d" % (sOFF, sG, TB2))
    e("    s_add_u32 s%d, s%d, s%d" % (sOFF, sOFF, sHO))
    e("    s_add_u32 s%d, s%d, %d" % (sOFB, sOFF, TB))
    e("    s_mul_i32 s%d, s%d, %d" % (sCNT, sCOL, ROWB))
    e("    v_add_u32 v%d, s%d, v%d" % (vT + 1, sCNT, vQA))
    e("    s_waitcnt lgkmcnt(0)")
    e("    s_and_b32 s7, s7, 0xffff")
    e("    s_and_b32 s9, s9, 0xffff")
    e("    s_mov_b64 s[16:17], s[6:7]")
    e("    s_mov_b64 s[20:21], s[6:7]")
    def load(j):
        e("    buffer_load_dwordx4 v[%d:%d], v%d, s[%s], s%d offen offset:%d%s" %
          (vB + 4 * j, vB + 4 * j + 3, vOFF, "16:19" if j < 3 else "20:23", sOFF if j < 3 else sOFB, (j % 3) * 128, pol))
    for j in range(6): load(j)
    for j in range(3):
        e("    global_load_dwordx4 v[%d:%d], v%d, s[4:5] offset:%d" % (vQ + 4 * j, vQ + 4 * j + 3, vT + 1, j * 128))
    if TRACE:
        e("    s_mul_i32 s52, s2, %d" % (NW + 1))
        e("    s_add_u32 s52, s52, s%d" % sWAVE)
        e("    s_lshl_b32 s52, s52, 10")
        e("    s_add_u32 s52, s52, 0x1100000")
        e("    v_mov_b32 v%d, s52" % vTR)
    e("    s_mov_b32 s%d, 0xffff0000" % sMASK)
    e("    s_mov_b32 s%d, %s" % (sC, f32hex(C)))
    e("    s_mov_b32 s%d, 0" % sR)
    e("    s_mov_b32 s%d, %d" % (sT2, SLOTB))
    e("    s_mul_i32 s%d, s%d, 7168" % (sTMP, sWAVE))
    e("    s_add_u32 s%d, s%d, %d" % (sTMP, sTMP, QB))
    e("    v_lshlrev_b32 v%d, 4, v%d" % (vDA, vLANE))
    e("    v_add_u32 v%d, s%d, v%d" % (vDA, sTMP, vDA))
    e("    s_mul_i32 s%d, s%d, %d" % (sTMP, sWAVE, G * SCW))
    e("    s_add_u32 s%d, s%d, %d" % (sTMP, sTMP, SCO))
    e("    v_lshlrev_b32 v%d, 3, v%d" % (vS0, vS0))
    e("    v_add_u32 v%d, s%d, v%d" % (vS0, sTMP, vS0))
    def init_state():
        e("    v_mov_b32 v%d, 0" % vL)
        for i in range(24): e("    v_mov_b32 v%d, 0" % (vO + i))
    init_state()
    e("    s_barrier")
    e("    s_waitcnt vmcnt(0)")
    def dump():
        for c in range(6):
            e("    ds_write_b128 v%d, v[%d:%d] offset:%d" % (vDA, vO + 4 * c, vO + 4 * c + 3, c * 1024))
        e("    ds_write_b64 v%d, v[%d:%d] offset:6144" % (vDA, vMC, vL))
    def trace():
        if TRACE:
            e("    s_memrealtime s[50:51]")
            e("    s_waitcnt lgkmcnt(0)")
            e("    v_mov_b32 v%d, s50" % vT)
            e("    s_mov_b64 exec, 1")
            e("    global_store_dword v%d, v%d, s[14:15]" % (vTR, vT))
            e("    s_mov_b64 exec, -1")
            e("    v_add_u32 v%d, 4, v%d" % (vTR, vTR))
    def next_off16(sbase, sh):
        e("    s_add_u32 s%d, s%d, s%d" % (sG, sbase, sWAVE))
        e("    s_mul_i32 s%d, s%d, %d" % (sOFF, sG, TB2))
        e("    s_add_u32 s%d, s%d, s%d" % (sOFF, sOFF, sh))
        e("    s_cmp_lt_u32 s%d, s%d" % (sG, sLIM))
        e("    s_cselect_b32 s%d, s%d, 0x%x" % (sOFF, sOFF, OOB))
        e("    s_add_u32 s%d, s%d, %d" % (sOFB, sOFF, TB))
    def next_off8():
        e("    s_add_u32 s%d, s%d, s%d" % (sG, sNB, sWAVE))
        e("    s_mul_i32 s%d, s%d, %d" % (sOFF, sG, TB))
        e("    s_add_u32 s%d, s%d, s%d" % (sOFF, sOFF, sHO))
        e("    s_cmp_lt_u32 s%d, %d" % (sG, TPH))
        e("    s_cselect_b32 s%d, s%d, 0x%x" % (sOFF, sOFF, OOB))
        e("    s_mov_b32 s%d, s%d" % (sOFB, sOFF))
    def dots4(jj, accs, first):
        j = jj % 3
        for i in range(4):
            acc = accs[i % 2]
            if first and i < 2:
                e("    v_dot2_f32_bf16 v%d, v%d, v%d, 0" % (acc, vB + 4 * jj + i, vQ + 4 * j + i))
            else:
                e("    v_dot2_f32_bf16 v%d, v%d, v%d, v%d" % (acc, vB + 4 * jj + i, vQ + 4 * j + i, acc))
    def pv(jj, r):
        j = jj % 3
        e("    s_waitcnt vmcnt(5)")
        for i in range(4):
            e("    v_lshlrev_b32 v%d, 16, v%d" % (vT + 2 * i, vB + 4 * jj + i))
            e("    v_and_b32 v%d, s%d, v%d" % (vT + 2 * i + 1, sMASK, vB + 4 * jj + i))
        load(jj)
        for i in range(4):
            oo = vO + j * 8 + 2 * i
            e("    v_pk_fma_f32 v[%d:%d], v[%d:%d], v[%d:%d], v[%d:%d] op_sel:[0,%d,0] op_sel_hi:[1,%d,1]" %
              (oo, oo + 1, vT + 2 * i, vT + 2 * i + 1, vS, vS + 1, oo, oo + 1, r, r))

    def set_round():
        e("    s_cmp_eq_u32 s%d, %d" % (sR, RND - 1))
        e("    s_cselect_b32 s%d, %d, 0" % (sLIM, TP))
        e("    s_cselect_b32 s%d, %d, %d" % (sNLS, SSL - LA, SS - LA))
        e("    s_sub_u32 s%d, %d, s%d" % (sLIM, TPH2, sLIM))
        e("    s_mul_i32 s%d, s%d, %d" % (sLD, sR, LSZ))
        e("    s_add_u32 s%d, s%d, %d" % (sLD, sLD, LO))
        e("    v_mov_b32 v%d, s%d" % (vLA, sLD))
        e("    v_add_u32 v%d, s%d, v%d" % (vSA, sSCD, vS0))
        e("    s_mov_b32 s%d, 0" % sN)
    e("L_group:")
    e("    s_mov_b32 s%d, 0" % sI)
    e("    s_mov_b32 s%d, 0" % sSCD)
    e("    s_mov_b32 s%d, s%d" % (sHG, sHO))
    e("L_kround:")
    set_round()
    e("    v_mov_b32 v%d, 0xff7fffff" % vM)
    e("    v_add_u32 v%d, 64, v%d" % (vSA, vSA))
    e("L_k:")
    e("    s_cmp_lt_u32 s%d, s%d" % (sN, sNLS))
    e("    s_cbranch_scc1 L_knb")
    e("    s_barrier")
    e("L_knb:")
    e("    ds_read_b32 v%d, v%d offset:4" % (vNB, vLA))
    e("    s_cmp_lt_u32 s%d, s%d" % (sG, sLIM))
    e("    s_cselect_b32 s%d, 0, 0xff800000" % sBIAS)
    e("    s_add_u32 s%d, s%d, 1" % (sN, sN))
    e("    v_add_u32 v%d, 4, v%d" % (vLA, vLA))
    e("    s_waitcnt lgkmcnt(0)")
    e("    v_readfirstlane_b32 s%d, v%d" % (sNB, vNB))
    e("    s_cmp_lt_u32 s%d, s%d" % (sNB, sLIM))
    e("    s_cbranch_scc0 L_klast")
    next_off16(sNB, sHO)
    e("L_kgo:")
    for jj in range(6):
        r = jj // 3
        e("    s_waitcnt vmcnt(5)")
        dots4(jj, (vS + r, vT + r), jj % 3 == 0)
        load(jj)
    e("    v_add_f32 v%d, v%d, v%d" % (vS, vS, vT))
    e("    s_nop 0")
    e("    v_add_f32 v%d, v%d, v%d" % (vS + 1, vS + 1, vT + 1))
    e("    s_nop 0")
    for pat in ("quad_perm:[1,0,3,2]", "quad_perm:[2,3,0,1]", "row_half_mirror"):
        for r in range(2):
            e("    v_add_f32_dpp v%d, v%d, v%d %s row_mask:0xf bank_mask:0xf" % (vS + r, vS + r, vS + r, pat))
        if pat != "row_half_mirror": e("    s_nop 0")
    e("    v_add_f32 v%d, s%d, v%d" % (vS, sBIAS, vS))
    e("    v_add_f32 v%d, s%d, v%d" % (vS + 1, sBIAS, vS + 1))
    e("    v_max3_f32 v%d, v%d, v%d, v%d" % (vM, vM, vS, vS + 1))
    e("    ds_write_b64 v%d, v[%d:%d]" % (vSA, vS, vS + 1))
    e("    v_add_u32 v%d, 64, v%d" % (vSA, vSA))
    trace()
    e("    s_cmp_lt_u32 s%d, s%d" % (sNB, sLIM))
    e("    s_cbranch_scc1 L_k")
    e("    v_add_u32 v%d, s%d, v%d" % (vSA, sSCD, vS0))
    e("    ds_write_b32 v%d, v%d" % (vSA, vM))
    e("    s_mov_b32 s%d, s%d" % (sNT, sN))
    e("    v_add_u32 v%d, %d, v%d" % (vQA, ROWB, vQA))
    e("    s_add_u32 s%d, s%d, 1" % (sI, sI))
    e("    s_cmp_eq_u32 s%d, %d" % (sI, G))
    e("    s_cbranch_scc1 L_vstart")
    for j in range(3):
        e("    ds_read_b128 v[%d:%d], v%d offset:%d" % (vQ + 4 * j, vQ + 4 * j + 3, vQA, j * 128))
    e("    s_add_u32 s%d, s%d, 1" % (sR, sR))
    e("    s_add_u32 s%d, s%d, %d" % (sSCD, sSCD, SCW))
    e("    s_add_u32 s%d, s%d, %d" % (sHO, sHO, W * HEADB))
    e("    s_branch L_kround")
    e("L_vstart:")
    e("    s_mov_b32 s%d, 0" % sI)
    e("    s_mov_b32 s%d, 0" % sSCD)
    e("    s_sub_u32 s%d, s%d, %d" % (sR, sR, G - 1))
    e("    s_mov_b32 s%d, s%d" % (sHO, sHG))
    e("L_vround:")
    set_round()
    e("    ds_read_b32 v%d, v%d" % (vM, vSA))
    e("    s_sub_u32 s%d, s%d, %d" % (sVB, sNT, LA))
    e("    s_cmp_eq_u32 s%d, %d" % (sR, RND - 1))
    e("    s_cselect_b32 s%d, s%d, -1" % (sVB, sVB))
    e("    v_add_u32 v%d, 64, v%d" % (vSA, vSA))
    e("    s_waitcnt lgkmcnt(0)")
    e("    v_mul_f32 v%d, s%d, v%d" % (vMC, sC, vM))
    e("L_v:")
    e("    s_cmp_lt_u32 s%d, s%d" % (sN, sVB))
    e("    s_cbranch_scc1 L_vnb")
    e("    s_barrier")
    e("L_vnb:")
    e("    ds_read_b64 v[%d:%d], v%d" % (vS, vS + 1, vSA))
    e("    ds_read_b32 v%d, v%d offset:4" % (vNB, vLA))
    e("    s_add_u32 s%d, s%d, 1" % (sN, sN))
    e("    v_add_u32 v%d, 64, v%d" % (vSA, vSA))
    e("    v_add_u32 v%d, 4, v%d" % (vLA, vLA))
    e("    s_waitcnt lgkmcnt(0)")
    e("    v_readfirstlane_b32 s%d, v%d" % (sNB, vNB))
    e("    v_fma_f32 v%d, v%d, s%d, -v%d" % (vS, vS, sC, vMC))
    e("    v_fma_f32 v%d, v%d, s%d, -v%d" % (vS + 1, vS + 1, sC, vMC))
    e("    s_cmp_lt_u32 s%d, s%d" % (sNB, sLIM))
    e("    s_cbranch_scc0 L_vlast")
    next_off16(sNB, sHO)
    e("L_vgo:")
    e("    v_exp_f32 v%d, v%d" % (vS, vS))
    e("    v_exp_f32 v%d, v%d" % (vS + 1, vS + 1))
    e("    s_nop 0")
    e("    v_add_f32 v%d, v%d, v%d" % (vL, vL, vS))
    e("    v_add_f32 v%d, v%d, v%d" % (vL, vL, vS + 1))
    for jj in range(6): pv(jj, jj // 3)
    trace()
    e("    s_cmp_lt_u32 s%d, s%d" % (sNB, sLIM))
    e("    s_cbranch_scc1 L_v")
    e("    s_cmp_lg_u32 s%d, %d" % (sR, RND - 1))
    e("    s_cbranch_scc1 L_dump")
    e("    s_cmp_ge_u32 s%d, %d" % (sNB, TPH))
    e("    s_cbranch_scc1 L_dump")
    e("L_t:")
    e("    s_barrier")
    e("    ds_read_b32 v%d, v%d offset:4" % (vNB, vLA))
    e("    s_cmp_lt_u32 s%d, %d" % (sG, TPH))
    e("    s_cselect_b32 s%d, 0, 0xff800000" % sBIAS)
    e("    v_add_u32 v%d, 4, v%d" % (vLA, vLA))
    e("    s_waitcnt lgkmcnt(0)")
    e("    v_readfirstlane_b32 s%d, v%d" % (sNB, vNB))
    next_off8()
    for jj in range(3):
        e("    s_waitcnt vmcnt(5)")
        dots4(jj, (vS, vT), jj == 0)
        load(jj)
    e("    s_nop 1")
    e("    v_add_f32 v%d, v%d, v%d" % (vS, vS, vT))
    e("    s_nop 1")
    for pat in ("quad_perm:[1,0,3,2]", "quad_perm:[2,3,0,1]", "row_half_mirror"):
        e("    v_add_f32_dpp v%d, v%d, v%d %s row_mask:0xf bank_mask:0xf" % (vS, vS, vS, pat))
        if pat != "row_half_mirror": e("    s_nop 1")
    e("    v_add_f32 v%d, s%d, v%d" % (vS, sBIAS, vS))
    e("    v_max_f32 v%d, v%d, v%d" % (vM, vM, vS))
    e("    v_mov_b32 v%d, v%d" % (vA, vMC))
    e("    v_mul_f32 v%d, s%d, v%d" % (vMC, sC, vM))
    e("    v_sub_f32 v%d, v%d, v%d" % (vA, vA, vMC))
    e("    v_fma_f32 v%d, v%d, s%d, -v%d" % (vS, vS, sC, vMC))
    e("    v_exp_f32 v%d, v%d" % (vA, vA))
    e("    v_exp_f32 v%d, v%d" % (vS, vS))
    for i in range(12):
        e("    v_pk_mul_f32 v[%d:%d], v[%d:%d], v[%d:%d] op_sel:[0,1] op_sel_hi:[1,1]" %
          (vO + 2 * i, vO + 2 * i + 1, vO + 2 * i, vO + 2 * i + 1, vA - 1, vA))
    e("    v_fma_f32 v%d, v%d, v%d, v%d" % (vL, vL, vA, vS))
    for jj in range(3, 6): pv(jj, 0)
    trace()
    e("    s_cmp_lt_u32 s%d, %d" % (sNB, TPH))
    e("    s_cbranch_scc1 L_t")
    e("L_dump:")
    dump()
    e("    v_add_u32 v%d, s%d, v%d" % (vDA, sT2, vDA))
    e("    s_sub_u32 s%d, 0, s%d" % (sT2, sT2))
    e("    s_add_u32 s%d, s%d, 1" % (sR, sR))
    e("    s_add_u32 s%d, s%d, 1" % (sI, sI))
    e("    s_add_u32 s%d, s%d, %d" % (sSCD, sSCD, SCW))
    e("    s_add_u32 s%d, s%d, %d" % (sHO, sHO, W * HEADB))
    e("    s_waitcnt lgkmcnt(0)")
    e("    s_barrier")
    e("    s_cmp_eq_u32 s%d, %d" % (sR, RND))
    e("    s_cbranch_scc1 L_fin")
    init_state()
    e("    s_cmp_lg_u32 s%d, %d" % (sI, G))
    e("    s_cbranch_scc1 L_vround")
    for j in range(3):
        e("    ds_read_b128 v[%d:%d], v%d offset:%d" % (vQ + 4 * j, vQ + 4 * j + 3, vQA, j * 128))
    e("    s_branch L_group")
    e("L_klast:")
    e("    s_add_u32 s%d, s%d, %d" % (sTMP, sHO, W * HEADB))
    e("    s_cmp_eq_u32 s%d, %d" % (sI, G - 1))
    e("    s_cselect_b32 s%d, s%d, s%d" % (sTMP, sHG, sTMP))
    e("    s_cselect_b64 s[16:17], s[8:9], s[6:7]")
    e("    s_cselect_b64 s[20:21], s[8:9], s[6:7]")
    next_off16(sL0, sTMP)
    e("    s_branch L_kgo")
    e("L_vlast:")
    e("    s_cmp_eq_u32 s%d, %d" % (sR, RND - 1))
    e("    s_cbranch_scc1 L_vlast2")
    e("    s_add_u32 s%d, s%d, %d" % (sTMP, sHO, W * HEADB))
    e("    s_cmp_eq_u32 s%d, %d" % (sI, G - 1))
    e("    s_cselect_b64 s[16:17], s[6:7], s[8:9]")
    e("    s_cselect_b64 s[20:21], s[6:7], s[8:9]")
    next_off16(sL0, sTMP)
    e("    s_branch L_vgo")
    e("L_vlast2:")
    e("    s_mov_b64 s[16:17], s[6:7]")
    next_off8()
    e("    s_branch L_vgo")
    e("L_fin:")
    e("    s_cmp_ge_u32 s%d, %d" % (sIDX, RND))
    e("    s_cbranch_scc1 L_done")
    e("    s_cmp_ge_u32 s%d, %d" % (sWAVE, NWC))
    e("    s_cbranch_scc1 L_done")
    cA = vT; cB = vT + 1; cT = vT + 2; cT1 = vT + 3; cMX = vT + 4; cLX = vT + 5; cOW = vT + 6; cW = vT + 7
    cM = vQ; cACC = vQ + 2; cX = vX; cO = vQ + 6; cLB = vQ + 7
    e("    s_mul_i32 s%d, s%d, %d" % (sHEAD, sIDX, W))
    e("    s_add_u32 s%d, s%d, s%d" % (sHEAD, sHEAD, sCOL))
    e("    s_lshl_b32 s%d, s%d, %d" % (sTMP, sHEAD, LOGP + 10))
    e("    v_min_u32 v%d, %d, v%d" % (cA, PER - 1, vLANE))
    e("    v_lshlrev_b32 v%d, 10, v%d" % (cA, cA))
    e("    v_add_u32 v%d, s%d, v%d" % (cA, sTMP, cA))
    e("    s_mul_i32 s%d, s%d, %d" % (sCNT, sWAVE, RPW * 1024))
    e("    s_add_u32 s%d, s%d, s%d" % (sCNT, sCNT, sTMP))
    e("    v_lshlrev_b32 v%d, 4, v%d" % (cLB, vLANE))
    e("    v_add_u32 v%d, s%d, v%d" % (cB, sCNT, cLB))
    e("    v_min_u32 v%d, %d, v%d" % (cT, RPW - 1, vLANE))
    e("    v_lshlrev_b32 v%d, 10, v%d" % (cT, cT))
    e("    v_add_u32 v%d, s%d, v%d" % (cT, sCNT, cT))
    e("    v_and_b32 v%d, 7, v%d" % (cO, vLANE))
    e("    v_lshlrev_b32 v%d, 4, v%d" % (cO, cO))
    e("    v_lshrrev_b32 v%d, 3, v%d" % (cT1, vLANE))
    e("    v_lshl_add_u32 v%d, v%d, 1, v%d" % (cO, cT1, cO))
    e("    s_mul_i32 s%d, s%d, %d" % (sTMP, sHEAD, ROWB))
    e("    v_add_u32 v%d, s%d, v%d" % (cO, sTMP, cO))
    e("    s_lshl_b32 s%d, s%d, 10" % (sTMP, sWAVE))
    e("    v_add_u32 v%d, s%d, v%d" % (cW, sTMP, cLB))
    e("    s_waitcnt vmcnt(0)")
    e("    s_barrier")
    if STAMP: e("    s_memrealtime s[42:43]")
    e("    global_load_dword v%d, v%d, s[14:15] offset:12 sc1" % (cM, cA))
    e("    global_load_dword v%d, v%d, s[14:15] offset:28 sc1" % (cM + 1, cA))
    e("    global_load_dword v%d, v%d, s[14:15] offset:12 sc1" % (cOW, cT))
    for j in range(RPW):
        e("    global_load_dwordx4 v[%d:%d], v%d, s[14:15] offset:%d sc1" % (cX + 4 * j, cX + 4 * j + 3, cB, (j % 4) * 1024))
        if j % 4 == 3 and j + 1 < RPW:
            e("    v_add_u32 v%d, 4096, v%d" % (cB, cB))
    e("    s_waitcnt vmcnt(%d)" % RPW)
    if STAMP: e("    s_memrealtime s[44:45]")
    e("    v_mov_b32 v%d, v%d" % (cMX, cM))
    def allreduce(op, r, t):
        e("    s_nop 1")
        for pat in ("quad_perm:[1,0,3,2]", "quad_perm:[2,3,0,1]", "row_half_mirror", "row_ror:8"):
            e("    %s_dpp v%d, v%d, v%d %s row_mask:0xf bank_mask:0xf" % (op, r, r, r, pat))
            e("    s_nop 1")
        for sw in ("v_permlane16_swap_b32", "v_permlane32_swap_b32"):
            e("    v_mov_b32 v%d, v%d" % (t, r))
            e("    s_nop 1")
            e("    %s v%d, v%d" % (sw, r, t))
            e("    s_nop 0")
            e("    %s v%d, v%d, v%d" % (op, r, r, t))
    allreduce("v_max_f32", cMX, cT)
    e("    v_sub_f32 v%d, v%d, v%d" % (cM, cM, cMX))
    e("    v_sub_f32 v%d, v%d, v%d" % (cOW, cOW, cMX))
    e("    v_exp_f32 v%d, v%d" % (cM, cM))
    e("    v_exp_f32 v%d, v%d" % (cOW, cOW))
    if PER < 64:
        e("    v_cmp_gt_u32 vcc, %d, v%d" % (PER, vLANE))
    e("    v_mul_f32 v%d, v%d, v%d" % (cLX, cM, cM + 1))
    if PER < 64:
        e("    s_nop 0")
        e("    v_cndmask_b32 v%d, 0, v%d, vcc" % (cLX, cLX))
    allreduce("v_add_f32", cLX, cT)
    e("    v_rcp_f32 v%d, v%d" % (cLX, cLX))
    e("    v_mov_b32 v%d, 0" % cACC)
    e("    v_mov_b32 v%d, 0" % (cACC + 1))
    e("    v_mul_f32 v%d, v%d, v%d" % (cOW, cOW, cLX))
    e("    v_mov_b32 v%d, 0" % (cACC + 2))
    for j in range(RPW):
        e("    v_readlane_b32 s%d, v%d, %d" % (sW + j, cOW, j))
    e("    s_nop 0")
    if STAMP: e("    s_memrealtime s[46:47]")
    for j in range(RPW):
        if j % 4 == 0:
            e("    s_waitcnt vmcnt(%d)" % (RPW - 4 - j))
        sp = (sW + j) & ~1; hi = (sW + j) & 1
        e("    v_pk_fma_f32 v[%d:%d], v[%d:%d], s[%d:%d], v[%d:%d] op_sel:[0,%d,0] op_sel_hi:[1,%d,1]" %
          (cACC, cACC + 1, cX + 4 * j, cX + 4 * j + 1, sp, sp + 1, cACC, cACC + 1, hi, hi))
        e("    v_fma_f32 v%d, v%d, s%d, v%d" % (cACC + 2, cX + 4 * j + 2, sW + j, cACC + 2))
    if STAMP: e("    s_memrealtime s[48:49]")
    if NWC > 1:
        e("    ds_write_b128 v%d, v[%d:%d]" % (cW, cACC, cACC + 3))
        e("    s_waitcnt lgkmcnt(0)")
        e("    s_barrier")
        e("    s_cmp_lg_u32 s%d, 0" % sWAVE)
        e("    s_cbranch_scc1 L_done")
        for w in range(1, NWC):
            e("    ds_read_b128 v[%d:%d], v%d offset:%d" % (cX + 4 * w, cX + 4 * w + 3, cLB, w * 1024))
        for w in range(1, NWC):
            e("    s_waitcnt lgkmcnt(%d)" % (NWC - 1 - w))
            e("    v_pk_add_f32 v[%d:%d], v[%d:%d], v[%d:%d]" % (cACC, cACC + 1, cACC, cACC + 1, cX + 4 * w, cX + 4 * w + 1))
            e("    v_add_f32 v%d, v%d, v%d" % (cACC + 2, cACC + 2, cX + 4 * w + 2))
    e("    v_cvt_pk_bf16_f32 v%d, v%d, v%d" % (cACC, cACC, cACC + 1))
    e("    v_cvt_pk_bf16_f32 v%d, v%d, v%d" % (cACC + 2, cACC + 2, cACC + 2))
    e("    global_store_short v%d, v%d, s[10:11]" % (cO, cACC))
    e("    global_store_short_d16_hi v%d, v%d, s[10:11] offset:128" % (cO, cACC))
    e("    global_store_short v%d, v%d, s[10:11] offset:256" % (cO, cACC + 2))
    if STAMP:
        e("    s_waitcnt vmcnt(0)")
        e("    s_memrealtime s[50:51]")
        e("    s_lshl_b32 s%d, s2, 6" % sTMP)
        e("    s_add_u32 s%d, s%d, 0x1000000" % (sTMP, sTMP))
        e("    v_mov_b32 v%d, s%d" % (cT, sTMP))
        e("    s_waitcnt lgkmcnt(0)")
        e("    v_mov_b32 v%d, s50" % cACC)
        e("    v_mov_b32 v%d, s51" % (cACC + 1))
        e("    s_mov_b64 exec, 1")
        e("    global_store_dwordx2 v%d, v[%d:%d], s[14:15] offset:48" % (cT, cACC, cACC + 1))
        for i in range(4): e("    v_mov_b32 v%d, s%d" % (cX + i, 42 + 2 * i))
        e("    v_add_u32 v%d, 0x8000, v%d" % (cT, cT))
        e("    global_store_dwordx4 v%d, v[%d:%d], s[14:15]" % (cT, cX, cX + 3))
    e("    s_endpgm")
    e("L_service:")
    vAD = vT; vRA = vT + 1; vCA = vT + 2; vONE = vT + 3; vMX = vT + 4; vLX = vT + 5; t0 = vT + 6; t1 = vT + 7
    vR0 = vQ; vR1 = vQ + 1; vZERO = vQ + 2; vRL = vQ + 3; vCW = vQ + 4; vST = vQ + 5; vZ = vQ + 6; vL4 = vQ + 10
    e("    v_lshlrev_b32 v%d, 4, v%d" % (vAD, vLANE))
    e("    v_mul_u32_u24 v%d, %d, v%d" % (vST, SST, vLANE))
    e("    s_mul_i32 s%d, s%d, %d" % (sL0, sIDX, NW))
    e("    v_add_u32 v%d, s%d, v%d" % (vST, sL0, vST))
    e("    v_lshlrev_b32 v%d, 2, v%d" % (vL4, vLANE))
    e("    v_add_u32 v%d, %d, v%d" % (t0, LO, vL4))
    e("    s_mov_b32 exec_lo, 0x%x" % (((1 << max(SS, SSL)) - 1) & 0xffffffff))
    e("    s_mov_b32 exec_hi, 0x%x" % (((1 << max(SS, SSL)) - 1) >> 32))
    for r in range(RND):
        e("    ds_write_b32 v%d, v%d offset:%d" % (t0, vST, r * LSZ))
    e("    s_mov_b64 exec, -1")
    e("    s_mul_i32 s%d, s%d, %d" % (sTMP, sCOL, ROWB))
    e("    v_add_u32 v%d, s%d, v%d" % (vRA, sTMP, vAD))
    e("    v_mov_b32 v%d, 1" % vONE)
    e("    v_mov_b32 v%d, 0" % vZERO)
    e("    s_waitcnt lgkmcnt(0)")
    e("    s_barrier")
    e("    s_mov_b64 exec, 0xffffff")
    for r in range(1, RND):
        e("    v_add_u32 v%d, %d, v%d" % (vRA, W * ROWB, vRA))
        e("    global_load_dwordx4 v[%d:%d], v%d, s[4:5]" % (vX + 4 * r, vX + 4 * r + 3, vRA))
    e("    s_waitcnt vmcnt(0)")
    for r in range(1, RND):
        e("    ds_write_b128 v%d, v[%d:%d] offset:%d" % (vAD, vX + 4 * r, vX + 4 * r + 3, r * ROWB))
    e("    s_mov_b64 exec, -1")
    e("    s_lshl_b32 s%d, s%d, %d" % (sTMP, sCOL, LOGP))
    e("    s_add_u32 s%d, s%d, s%d" % (sTMP, sTMP, sIDX))
    e("    s_lshl_b32 s%d, s%d, 10" % (sTMP, sTMP))
    e("    v_add_u32 v%d, s%d, v%d" % (vRA, sTMP, vAD))
    e("    s_and_b32 s%d, s%d, 3" % (sTMP, sCOL))
    e("    s_lshl_b32 s%d, s%d, 6" % (sTMP, sTMP))
    e("    s_and_b32 s%d, s%d, 0xfc" % (sCNT, sCOL))
    e("    s_add_u32 s%d, s%d, s%d" % (sTMP, sTMP, sCNT))
    e("    v_mov_b32 v%d, s%d" % (vCA, sTMP))
    e("    s_lshr_b32 s%d, s%d, 3" % (sSH, sIDX))
    e("    s_and_b32 s%d, s%d, %d" % (sSH, sSH, S - 1))
    e("    s_mul_i32 s%d, s%d, %d" % (sTMP, sCOL, S))
    e("    s_add_u32 s%d, s%d, s%d" % (sTMP, sTMP, sSH))
    e("    s_lshl_b32 s%d, s%d, 8" % (sTMP, sTMP))
    e("    s_add_u32 s%d, s%d, 0x%x" % (sTMP, sTMP, CTR_OFF))
    e("    v_mov_b32 v%d, s%d" % (vCW, sTMP))
    e("    s_mul_i32 s%d, s%d, %d" % (sSH, sSH, NW))
    e("    s_mov_b32 s%d, 0" % sR)
    e("    s_mov_b32 s%d, 0" % sI)
    e("    s_mov_b32 s%d, %d" % (sT2, SLOTB))
    e("    v_add_u32 v%d, %d, v%d" % (vDA, QB, vAD))
    e("    v_add_u32 v%d, %d, v%d" % (vRL, RECO, vAD))
    def elect(tag):
        e("    s_mov_b64 exec, 1")
        e("    global_atomic_add v%d, v%d, v%d, s[12:13] offset:224 sc0" % (t0, vZERO, vONE))
        e("    s_waitcnt vmcnt(0)")
        e("    v_readfirstlane_b32 s%d, v%d" % (sTMP, t0))
        e("    s_mov_b64 exec, -1")
        e("    s_cmp_lg_u32 s%d, 0" % sTMP)
        e("    s_cbranch_scc1 L_lost%s" % tag)
        e("    v_lshlrev_b32 v%d, 8, v%d" % (t0, vLANE))
        e("    v_add_u32 v%d, 0x%x, v%d" % (t0, CTR_OFF, t0))
        e("    global_store_dword v%d, v%d, s[14:15] sc1" % (t0, vZERO))
        e("    s_waitcnt vmcnt(0)")
        e("    global_store_dword v%d, v%d, s[12:13] offset:228 sc1" % (vZERO, vONE))
        e("L_lost%s:" % tag)
    e("    s_cmp_lg_u32 s2, 0")
    e("    s_cbranch_scc1 L_lostA")
    elect("A")

    vY = vX + 24 * NW
    def reduce_wg():
        for w in range(NW):
            e("    ds_read_b64 v[%d:%d], v%d offset:%d" % (vY + 2 * w, vY + 2 * w + 1, vDA, w * 7168 + 6144))
        for w in range(NW):
            for c in range(6):
                e("    ds_read_b128 v[%d:%d], v%d offset:%d" % (vX + 24 * w + 4 * c, vX + 24 * w + 4 * c + 3, vDA, w * 7168 + c * 1024))
        e("    v_add_u32 v%d, s%d, v%d" % (vDA, sT2, vDA))
        e("    s_sub_u32 s%d, 0, s%d" % (sT2, sT2))
        e("    s_waitcnt lgkmcnt(%d)" % (0 if (STAMP or DBG) else min(15, 6 * NW)))
        e("    v_mov_b32 v%d, v%d" % (vMX, vY))
        for w in range(1, NW):
            e("    v_max_f32 v%d, v%d, v%d" % (vMX, vMX, vY + 2 * w))
        e("    s_nop 1")
        e("    v_max_f32_dpp v%d, v%d, v%d row_ror:8 row_mask:0xf bank_mask:0xf" % (vMX, vMX, vMX))
        for sw in ("v_permlane16_swap_b32", "v_permlane32_swap_b32"):
            e("    s_nop 0")
            e("    v_mov_b32 v%d, v%d" % (t0, vMX))
            e("    s_nop 1")
            e("    %s v%d, v%d" % (sw, vMX, t0))
            e("    s_nop 0")
            e("    v_max_f32 v%d, v%d, v%d" % (vMX, vMX, t0))
        for w in range(NW):
            e("    v_sub_f32 v%d, v%d, v%d" % (vY + 2 * w, vY + 2 * w, vMX))
        for w in range(NW):
            e("    v_exp_f32 v%d, v%d" % (vY + 2 * w, vY + 2 * w))
        e("    s_nop 0")
        e("    v_mul_f32 v%d, v%d, v%d" % (vL, vY, vY + 1))
        for w in range(1, NW):
            e("    v_fma_f32 v%d, v%d, v%d, v%d" % (vL, vY + 2 * w, vY + 2 * w + 1, vL))
        e("    s_waitcnt lgkmcnt(0)")
        for i in range(12):
            e("    v_pk_mul_f32 v[%d:%d], v[%d:%d], v[%d:%d] op_sel_hi:[1,0]" %
              (vO + 2 * i, vO + 2 * i + 1, vX + 2 * i, vX + 2 * i + 1, vY, vY + 1))
        e("    v_add_f32_dpp v%d, v%d, v%d row_ror:8 row_mask:0xf bank_mask:0xf" % (vLX, vL, vL))
        for w in range(1, NW):
            for i in range(12):
                e("    v_pk_fma_f32 v[%d:%d], v[%d:%d], v[%d:%d], v[%d:%d] op_sel_hi:[1,0,1]" %
                  (vO + 2 * i, vO + 2 * i + 1, vX + 24 * w + 2 * i, vX + 24 * w + 2 * i + 1, vY + 2 * w, vY + 2 * w + 1, vO + 2 * i, vO + 2 * i + 1))
        e("    v_mov_b32 v%d, v%d" % (t0, vLX))
        e("    s_nop 1")
        for j in range(3):
            for ee in range(4):
                a = vO + j * 8 + ee
                e("    v_permlane32_swap_b32 v%d, v%d" % (a, a + 4))
        e("    v_permlane16_swap_b32 v%d, v%d" % (vLX, t0))
        for j in range(3):
            for ee in range(4):
                a = vO + j * 8 + ee
                e("    v_add_f32 v%d, v%d, v%d" % (a, a, a + 4))
        e("    v_add_f32 v%d, v%d, v%d" % (vLX, vLX, t0))
        e("    s_nop 0")
        for j in range(3):
            for ee in range(2):
                a = vO + j * 8 + ee
                e("    v_permlane16_swap_b32 v%d, v%d" % (a, a + 2))
        e("    v_mov_b32 v%d, v%d" % (t0, vLX))
        for j in range(3):
            for ee in range(2):
                a = vO + j * 8 + ee
                e("    v_add_f32 v%d, v%d, v%d" % (a, a, a + 2))
        e("    v_permlane32_swap_b32 v%d, v%d" % (vLX, t0))
        e("    v_cmp_eq_u32 vcc, 1, v%d" % vLANE)
        for j in range(3):
            a = vO + j * 8
            e("    v_add_f32_dpp v%d, v%d, v%d row_ror:8 row_mask:0xf bank_mask:0x3" % (vZ + j, a, a))
        e("    v_add_f32 v%d, v%d, v%d" % (vLX, vLX, t0))
        for j in range(3):
            a = vO + j * 8
            e("    v_add_f32_dpp v%d, v%d, v%d row_ror:8 row_mask:0xf bank_mask:0xc" % (vZ + j, a + 1, a + 1))
        e("    v_cndmask_b32 v%d, v%d, v%d, vcc" % (vZ + 3, vMX, vLX))

    e("L_sround:")
    e("    s_cmp_eq_u32 s%d, %d" % (sR, RND - 1))
    e("    s_cselect_b32 s%d, %d, 0" % (sLIM, TP))
    e("    s_cselect_b32 s%d, %d, %d" % (sTMP, SSL, SS))
    e("    s_sub_u32 s%d, %d, s%d" % (sLIM, TPH2, sLIM))
    e("    s_mul_i32 s%d, s%d, %d" % (sBASE, sTMP, SST))
    e("    s_add_u32 s%d, s%d, s%d" % (sBASE, sBASE, sSH))
    e("    s_lshl_b32 s%d, s%d, 2" % (sTMP, sTMP))
    e("    s_mul_i32 s%d, s%d, %d" % (sLD, sR, LSZ))
    e("    s_add_u32 s%d, s%d, s%d" % (sTMP, sTMP, sLD))
    e("    s_add_u32 s%d, s%d, %d" % (sTMP, sTMP, LO))
    e("    v_mov_b32 v%d, s%d" % (vLA, sTMP))
    e("    s_mov_b32 s%d, %d" % (sCAP, CAP))
    e("L_seq:")
    e("    s_mov_b32 s%d, 0" % sM1)
    e("    s_mov_b64 exec, 1")
    e("    s_waitcnt vmcnt(0) lgkmcnt(0)")
    e("    s_barrier")
    if DBG:
        e("    s_memrealtime s[%d:%d]" % (sT0 + 4, sT0 + 5))
    e("    s_cmp_lg_u32 s%d, 0" % sR)
    e("    s_cbranch_scc1 L_ready")
    e("    global_load_dword v%d, v%d, s[12:13] offset:228 sc1" % (t0, vZERO))
    e("    s_waitcnt vmcnt(0)")
    e("    v_readfirstlane_b32 s%d, v%d" % (sTMP, t0))
    e("    s_cmp_lg_u32 s%d, 0" % sTMP)
    e("    s_cbranch_scc1 L_ready")
    elect("B")
    e("L_spinf:")
    e("    global_load_dword v%d, v%d, s[12:13] offset:228 sc1" % (t0, vZERO))
    e("    s_waitcnt vmcnt(0)")
    e("    v_readfirstlane_b32 s%d, v%d" % (sTMP, t0))
    e("    s_cmp_eq_u32 s%d, 0" % sTMP)
    e("    s_cbranch_scc1 L_spinf")
    e("    s_mov_b64 exec, 1")
    e("L_ready:")
    e("    global_atomic_add v%d, v%d, v%d, s[14:15] sc0" % (vR0, vCW, vONE))
    e("L_sls:")
    for h, (rn, ro) in enumerate(((vR1, vR0), (vR0, vR1))):
        e("    s_waitcnt lgkmcnt(0)")
        e("    s_barrier")
        e("    s_cmp_ge_u32 s%d, s%d" % (sM1, sLIM))
        e("    s_cbranch_scc1 L_slsend")
        e("    s_sub_u32 s%d, s%d, 1" % (sCAP, sCAP))
        e("    s_cmp_gt_i32 s%d, 0" % sCAP)
        e("    s_cbranch_scc1 L_grab%d" % h)
        e("    v_mov_b32 v%d, %d" % (rn, TPH))
        e("    s_waitcnt vmcnt(0)")
        e("    s_branch L_got%d" % h)
        e("L_grab%d:" % h)
        e("    global_atomic_add v%d, v%d, v%d, s[14:15] sc0" % (rn, vCW, vONE))
        e("    s_waitcnt vmcnt(1)")
        e("L_got%d:" % h)
        e("    v_readfirstlane_b32 s%d, v%d" % (sM1, ro))
        e("    s_min_u32 s%d, s%d, %d" % (sM1, sM1, TPH))
        e("    s_mul_i32 s%d, s%d, %d" % (sM1, sM1, S * NW))
        e("    s_add_u32 s%d, s%d, s%d" % (sM1, sM1, sBASE))
        e("    v_mov_b32 v%d, s%d" % (t0, sM1))
        e("    ds_write_b32 v%d, v%d" % (vLA, t0))
        e("    v_add_u32 v%d, 4, v%d" % (vLA, vLA))
    e("    s_branch L_sls")
    e("L_slsend:")
    e("    v_add_u32 v%d, %d, v%d" % (vCW, W * S * 256, vCW))
    e("    s_mov_b64 exec, -1")
    e("    s_cmp_eq_u32 s%d, %d" % (sLIM, TPH))
    e("    s_cbranch_scc1 L_sdump")
    e("    s_add_u32 s%d, s%d, 1" % (sR, sR))
    e("    s_add_u32 s%d, s%d, 1" % (sI, sI))
    e("    s_cmp_lg_u32 s%d, %d" % (sI, G))
    e("    s_cbranch_scc1 L_sround")
    e("    s_sub_u32 s%d, s%d, %d" % (sR, sR, G))
    e("L_svround:")
    e("    s_cmp_lg_u32 s%d, %d" % (sR, RND - 1))
    e("    s_cbranch_scc1 L_sdump")
    e("    s_mov_b32 s%d, %d" % (sLIM, TPH))
    e("    s_add_u32 s%d, s%d, %d" % (sBASE, sSH, 2 * (TPH2 - TP)))
    e("    s_mov_b32 s%d, %d" % (sCAP, NUT + 1))
    e("    v_add_u32 v%d, -4, v%d" % (vLA, vLA))
    e("    s_branch L_seq")
    e("L_sdump:")
    e("    s_waitcnt lgkmcnt(0)")
    e("    s_barrier")
    if STAMP or DBG:
        e("    s_memrealtime s[%d:%d]" % (sT0 + 2, sT0 + 3))
    reduce_wg()
    e("    s_add_u32 s%d, s%d, 1" % (sR, sR))
    e("    s_cmp_eq_u32 s%d, %d" % (sR, RND))
    e("    s_cbranch_scc1 L_final")
    e("    ds_write_b128 v%d, v[%d:%d]" % (vRL, vZ, vZ + 3))
    e("    v_add_u32 v%d, 1024, v%d" % (vRL, vRL))
    e("    s_sub_u32 s%d, s%d, 1" % (sI, sI))
    e("    s_cmp_lg_u32 s%d, 0" % sI)
    e("    s_cbranch_scc1 L_svround")
    e("    s_branch L_sround")
    e("L_final:")
    if PUB:
        e("    global_store_dwordx4 v%d, v[%d:%d], s[14:15] sc1" % (vRA, vZ, vZ + 3))
    else:
        e("    v_add_u32 v%d, %d, v%d" % (vRL, RECO, vAD))
        for r in range(RND - 1):
            e("    ds_read_b128 v[%d:%d], v%d offset:%d" % (vX + 4 * r, vX + 4 * r + 3, vRL, r * 1024))
        e("    v_add_u32 v%d, %d, v%d" % (t0, (RND - 1) * W * PER * 1024, vRA))
        e("    global_store_dwordx4 v%d, v[%d:%d], s[14:15] sc1" % (t0, vZ, vZ + 3))
        for r in range(RND - 1):
            e("    s_waitcnt lgkmcnt(%d)" % (RND - 2 - r))
            e("    global_store_dwordx4 v%d, v[%d:%d], s[14:15] sc1" % (vRA, vX + 4 * r, vX + 4 * r + 3))
            if r + 2 < RND:
                e("    v_add_u32 v%d, %d, v%d" % (vRA, W * PER * 1024, vRA))
    if STAMP:
        e("    s_memrealtime s[%d:%d]" % (sT0 + 4, sT0 + 5))
    e("    s_mov_b64 exec, 1")
    e("    s_waitcnt vmcnt(0)")
    e("    global_atomic_add v%d, v%d, s[12:13]" % (vCA, vONE))
    if DBG:
        e("    s_getreg_b32 s%d, hwreg(HW_REG_XCC_ID)" % (sT0 + 8))
        e("    v_mov_b32 v%d, s%d" % (vX, sT0))
        e("    v_mov_b32 v%d, s%d" % (vX + 1, sT0 + 4))
        e("    v_mov_b32 v%d, s%d" % (vX + 2, sT0 + 2))
        e("    v_mov_b32 v%d, s%d" % (vX + 3, sT0 + 8))
        e("    s_lshl_b32 s%d, s2, 4" % sTMP)
        e("    s_add_u32 s%d, s%d, 0x1000000" % (sTMP, sTMP))
        e("    v_mov_b32 v%d, s%d" % (t1, sTMP))
        e("    global_store_dwordx4 v%d, v[%d:%d], s[14:15] sc1" % (t1, vX, vX + 3))
        e("    s_waitcnt vmcnt(0)")
        e("    global_atomic_add v%d, v%d, v%d, s[12:13] offset:240 sc0" % (t1, vZERO, vONE))
        e("    s_waitcnt vmcnt(0)")
        e("    v_readfirstlane_b32 s%d, v%d" % (sTMP, t1))
        e("    s_cmp_lg_u32 s%d, 255" % sTMP)
        e("    s_cbranch_scc1 L_nodiag")
        e("    s_mov_b64 exec, -1")
        e("    v_add_u32 v%d, 0x1000000, v%d" % (t1, vAD))
        for c in range(4):
            e("    global_load_dwordx4 v[%d:%d], v%d, s[14:15] offset:%d sc1" % (vX + 4 * c, vX + 4 * c + 3, t1, c * 1024))
        e("    s_waitcnt vmcnt(0)")
        e("    v_readfirstlane_b32 s%d, v%d" % (sTMP, vX))
        e("    s_nop 1")
        for c in range(4):
            e("    v_subrev_u32 v%d, s%d, v%d" % (vX + 4 * c + 1, sTMP, vX + 4 * c + 1))
            e("    v_subrev_u32 v%d, s%d, v%d" % (vX + 4 * c + 2, sTMP, vX + 4 * c + 2))
            e("    v_and_b32 v%d, 15, v%d" % (vX + 4 * c + 3, vX + 4 * c + 3))
            e("    v_lshlrev_b32 v%d, 2, v%d" % (vX + 4 * c + 3, vX + 4 * c + 3))
        e("    v_lshlrev_b32 v%d, 2, v%d" % (t0, vLANE))
        e("    ds_write_b32 v%d, v%d" % (t0, vZERO))
        e("    s_waitcnt lgkmcnt(0)")
        for c in range(4):
            e("    v_sub_u32 v%d, 65535, v%d" % (t1, vX + 4 * c + 1))
            e("    ds_max_u32 v%d, v%d offset:%d" % (vZERO, vX + 4 * c + 1, 4 * c))
            e("    ds_max_u32 v%d, v%d offset:%d" % (vZERO, t1, 16 + 4 * c))
            e("    ds_max_u32 v%d, v%d offset:32" % (vX + 4 * c + 3, vX + 4 * c + 1))
            e("    ds_max_u32 v%d, v%d offset:64" % (vX + 4 * c + 3, t1))
            e("    ds_max_u32 v%d, v%d offset:%d" % (vZERO, vX + 4 * c + 2, 96 + 4 * c))
            e("    s_waitcnt lgkmcnt(0)")
        e("    ds_read_b32 v%d, v%d" % (vX, t0))
        e("    ds_read_b32 v%d, v%d offset:16" % (vX + 1, t0))
        e("    ds_read_b32 v%d, v%d offset:48" % (vX + 2, t0))
        e("    s_waitcnt lgkmcnt(0)")
        e("    v_sub_u32 v%d, 65535, v%d" % (vX + 3, vX + 1))
        e("    v_lshl_or_b32 v%d, v%d, 16, v%d" % (vX + 4, vX + 3, vX))
        e("    v_sub_u32 v%d, 65535, v%d" % (vX + 3, vX + 2))
        e("    v_lshl_or_b32 v%d, v%d, 16, v%d" % (vX + 5, vX + 3, vX + 1))
        e("    v_cmp_gt_u32 vcc, 4, v%d" % vLANE)
        e("    s_nop 1")
        e("    v_cndmask_b32 v%d, v%d, v%d, vcc" % (vX + 5, vX + 5, vX + 4))
        e("    v_cmp_lt_u32 vcc, 11, v%d" % vLANE)
        e("    s_nop 1")
        e("    v_cndmask_b32 v%d, v%d, v%d, vcc" % (vX + 5, vX + 5, vX + 2))
        e("    s_mov_b64 exec, 0xffff")
        e("    global_store_dword v%d, v%d, s[12:13] sc1" % (t0, vX + 5))
        e("    s_waitcnt vmcnt(0)")
        e("    s_mov_b64 exec, 1")
        e("L_nodiag:")
    if STAMP:
        e("    s_memrealtime s[%d:%d]" % (sT0 + 6, sT0 + 7))
        e("    s_getreg_b32 s%d, hwreg(HW_REG_XCC_ID)" % (sT0 + 8))
        e("    s_getreg_b32 s%d, hwreg(HW_REG_HW_ID)" % (sT0 + 9))
        e("    s_waitcnt lgkmcnt(0)")
        for i in range(10):
            e("    v_mov_b32 v%d, s%d" % (vX + i, sT0 + i))
        e("    v_mov_b32 v%d, s%d" % (vX + 10, sT0 + 6))
        e("    v_mov_b32 v%d, s%d" % (vX + 11, sT0 + 7))
        e("    s_lshl_b32 s%d, s2, 6" % (sT0))
        e("    s_add_u32 s%d, s%d, 0x1000000" % (sT0, sT0))
        e("    v_mov_b32 v%d, s%d" % (t1, sT0))
        e("    global_store_dwordx4 v%d, v[%d:%d], s[14:15]" % (t1, vX, vX + 3))
        e("    global_store_dwordx4 v%d, v[%d:%d], s[14:15] offset:16" % (t1, vX + 4, vX + 7))
        e("    global_store_dwordx4 v%d, v[%d:%d], s[14:15] offset:32" % (t1, vX + 8, vX + 11))
    e("    s_cmp_ge_u32 s%d, %d" % (sIDX, RND))
    e("    s_cbranch_scc1 L_done")
    e("L_spin:")
    e("    global_load_dword v%d, v%d, s[12:13] sc1" % (t0, vCA))
    e("    s_waitcnt vmcnt(0)")
    e("    v_readfirstlane_b32 s%d, v%d" % (sTMP, t0))
    e("    s_cmp_lt_u32 s%d, %d" % (sTMP, PER))
    e("    s_cbranch_scc1 L_spin")
    e("    s_barrier")
    e("L_done:")
    e("    s_endpgm")
    e('.section .rodata,"a"')
    e(".p2align 6")
    e(".amdhsa_kernel %s" % KNAME)
    e("  .amdhsa_next_free_vgpr %d" % NVGPR)
    e("  .amdhsa_next_free_sgpr 96")
    e("  .amdhsa_accum_offset %d" % ((NVGPR + 3) // 4 * 4))
    e("  .amdhsa_group_segment_fixed_size 0")
    e("  .amdhsa_kernarg_size 48")
    e("  .amdhsa_user_sgpr_count 2")
    e("  .amdhsa_user_sgpr_kernarg_segment_ptr 1")
    e("  .amdhsa_system_sgpr_workgroup_id_x 1")
    e("  .amdhsa_float_denorm_mode_32 3")
    e(".end_amdhsa_kernel")
    return "\n".join(o) + "\n"

if __name__ == "__main__":
    ap = argparse.ArgumentParser()
    ap.add_argument("-o", default="standalone__mha_softmax__decode.s")
    for k, d in dict(W=8, NW=4, SS=13, SSL=0, TP=256, G=4, CAP=10, S=1, STAMP=0, TRACE=0, DBG=0, PUB=0).items():
        ap.add_argument("--" + k, type=int, default=d)
    ap.add_argument("--POL", default="nt")
    a = vars(ap.parse_args())
    out = a.pop("o")
    open(out, "w").write(gen(**a))
    print("wrote", out)
```

```python
import math, struct, sys, argparse

H = 32; SK = 32768; D = 192
ROWB = D * 2
HEADB = SK * ROWB

def f32hex(x):
    return "0x%08x" % struct.unpack("<I", struct.pack("<f", x))[0]

HEADER = """; Kernarg layout for this problem (48 bytes, ptrs only, base s[0:1]):
"""

def gen(NW=8, R=4, NBUF=2, NSPLIT=8, POL="nt", MAP="A", ILV=0, STAMP=0, CSTRIDE=8, DYN=0, NS=8, SP=0, TRACE=0, DUMMY=0, CWS=8, SHARD=0, FAKEW=0, HOLD=0, KNAME="standalone__mha_softmax__decode_kernel"):
    o = []
    e = o.append
    NWG = H * NSPLIT
    TILEK = 8 * R
    TILEB = TILEK * ROWB
    WGTB = NW * TILEB
    CHUNKB = HEADB // NSPLIT
    NT = CHUNKB // WGTB
    if FAKEW: NT = -(-CHUNKB // (WGTB * NBUF)) * NBUF
    assert DYN or FAKEW or NT * WGTB == CHUNKB
    assert DYN or NT % NBUF == 0
    LOGS = int(math.log2(NSPLIT)); assert 1 << LOGS == NSPLIT
    PSTR = 1024
    LDS = NW * PSTR
    pol = (" " + POL) if POL else ""
    C = (D ** -0.5) * math.log2(math.e)

    vLANE = 0; vOFF = 1; vM = 2; vMC = 3; vL = 4; vA = 5
    vS = 6
    vT = vS + R + (R & 1)
    if vT & 1: vT += 1
    vQ = vT + 8
    vO = vQ + 12
    vRET = vO + 24; vCA = vRET + 1; vONE = vRET + 2; vCW = vRET + 3; vFLG = vRET + 4; vTR = vRET + 5
    vK = vO + 24 + 7
    vK = (vK + 3) // 4 * 4
    vV = vK + NBUF * 12 * R
    vEND = vV + NBUF * 12 * R
    need_ep = max(NW, NSPLIT) * 6 + 16
    NVGPR = max(vEND, vK + need_ep)
    sHEAD = 24; sSPL = 25; sWAVE = 26; sMASK = 27; sC = 28; sCNT = 29; sLIN = 30; sTMP = 31
    sKO = 32
    NSO = (R + 1) // 2
    sVO = sKO + NSO
    sT0 = 40
    STEP = WGTB * (NSPLIT if ILV else 1)
    if FAKEW:
        PER = NWG // FAKEW; STEP = WGTB * PER; WINB = HEADB * H // FAKEW
    UNITB = NBUF * TILEB
    NUNITS = HEADB // UNITB
    assert FAKEW or NUNITS * UNITB == HEADB
    G = NSPLIT * NW
    UMUL = UNITB
    if SHARD:
        G = NSPLIT; UMUL = UNITB * NW; NUNITS //= NW
    sIDX = 38; sFLAG = 39
    CTR_OFF = 0x200000
    if DYN: STEP = TILEB

    e(HEADER + "; @launch grid=(%d,1,1) block=(%d,1,1) lds=%d" % (NWG, NW * 64, LDS))
    if TRACE: e("; UNITBYTES=%d" % (2 * UNITB))
    e('.amdgcn_target "amdgcn-amd-amdhsa--gfx950"')
    e(".text")
    e(".globl %s" % KNAME)
    e(".p2align 8")
    e(".type %s,@function" % KNAME)
    e("%s:" % KNAME)
    e("    s_cmp_ge_u32 s2, %d" % NWG)
    e("    s_cbranch_scc1 L_done")
    e("    s_load_dwordx4 s[4:7], s[0:1], 0")
    e("    s_load_dwordx4 s[8:11], s[0:1], 16")
    e("    s_load_dwordx4 s[12:15], s[0:1], 32")
    if STAMP or HOLD:
        e("    s_memrealtime s[%d:%d]" % (sT0, sT0 + 1))
    if MAP == "A":
        e("    s_mov_b32 s%d, s2" % sLIN)
    else:
        e("    s_and_b32 s%d, s2, 7" % sLIN)
        e("    s_mul_i32 s%d, s%d, %d" % (sLIN, sLIN, NWG // 8))
        e("    s_lshr_b32 s%d, s2, 3" % sTMP)
        e("    s_add_u32 s%d, s%d, s%d" % (sLIN, sLIN, sTMP))
    e("    s_lshr_b32 s%d, s%d, %d" % (sHEAD, sLIN, LOGS))
    e("    s_and_b32 s%d, s%d, %d" % (sSPL, sLIN, NSPLIT - 1))
    e("    v_lshrrev_b32 v%d, 6, v0" % vA)
    e("    v_and_b32 v%d, 63, v0" % vLANE)
    e("    v_readfirstlane_b32 s%d, v%d" % (sWAVE, vA))
    e("    v_lshrrev_b32 v%d, 3, v%d" % (vT, vLANE))
    e("    v_and_b32 v%d, 7, v%d" % (vT + 1, vLANE))
    e("    v_lshlrev_b32 v%d, 4, v%d" % (vT + 1, vT + 1))
    e("    v_mul_u32_u24 v%d, %d, v%d" % (vT, ROWB, vT))
    e("    v_add_u32 v%d, v%d, v%d" % (vOFF, vT, vT + 1))
    if FAKEW:
        e("    s_lshr_b32 s%d, s2, %d" % (sTMP, int(math.log2(PER))))
        e("    s_mul_i32 s%d, s%d, %d" % (sTMP, sTMP, WINB if FAKEW > 1 else 0))
        e("    s_and_b32 s%d, s2, %d" % (sCNT, PER - 1))
        e("    s_mul_i32 s%d, s%d, %d" % (sCNT, sCNT, WGTB))
        e("    s_add_u32 s%d, s%d, s%d" % (sTMP, sTMP, sCNT))
        e("    s_sub_u32 s18, %d, s%d" % (WINB, sCNT))
    elif DYN and SHARD:
        e("    s_mul_i32 s%d, s%d, %d" % (sTMP, sHEAD, HEADB))
        e("    s_mul_i32 s%d, s%d, %d" % (sCNT, sWAVE, UNITB))
        e("    s_add_u32 s%d, s%d, s%d" % (sTMP, sTMP, sCNT))
        e("    s_sub_u32 s18, %d, s%d" % (HEADB, sCNT))
    elif DYN:
        e("    s_mul_i32 s%d, s%d, %d" % (sTMP, sHEAD, HEADB))
        e("    s_mov_b32 s18, %d" % HEADB)
    elif ILV:
        e("    s_mul_i32 s%d, s%d, %d" % (sTMP, sHEAD, HEADB))
        e("    s_mul_i32 s%d, s%d, %d" % (sCNT, sSPL, WGTB))
        e("    s_add_u32 s%d, s%d, s%d" % (sTMP, sTMP, sCNT))
        e("    s_sub_u32 s18, %d, s%d" % (HEADB, sCNT))
    else:
        e("    s_mul_i32 s%d, s%d, %d" % (sTMP, sLIN, CHUNKB))
        e("    s_mov_b32 s18, %d" % CHUNKB)
    e("    s_mov_b32 s22, s18")
    e("    s_mov_b32 s19, 0x00020000")
    e("    s_mov_b32 s23, 0x00020000")
    if DYN:
        if SHARD and SP == 0:
            e("    s_mov_b32 s%d, s%d" % (sIDX, sSPL))
            SSTEP = NSPLIT
        elif SHARD:
            e("    s_mul_i32 s%d, s%d, %d" % (sIDX, sSPL, NS))
            SSTEP = 1
        elif SP == 0:
            e("    s_mul_i32 s%d, s%d, %d" % (sIDX, sSPL, NW))
            e("    s_add_u32 s%d, s%d, s%d" % (sIDX, sIDX, sWAVE))
            SSTEP = G
        elif SP == 1:
            e("    s_mul_i32 s%d, s%d, %d" % (sIDX, sSPL, NW))
            e("    s_add_u32 s%d, s%d, s%d" % (sIDX, sIDX, sWAVE))
            e("    s_mul_i32 s%d, s%d, %d" % (sIDX, sIDX, NS))
            SSTEP = 1
        else:
            e("    s_mul_i32 s%d, s%d, %d" % (sIDX, sSPL, NW * NS))
            e("    s_add_u32 s%d, s%d, s%d" % (sIDX, sIDX, sWAVE))
            SSTEP = NW
        e("    s_mul_i32 s%d, s%d, %d" % (sKO, sIDX, UMUL))
        e("    s_mul_i32 s%d, s%d, %d" % (sFLAG, sHEAD, CSTRIDE))
        e("    v_mov_b32 v%d, s%d" % (vCA, sFLAG))
        e("    v_mov_b32 v%d, 1" % vONE)
        if DYN == 1: e("    s_sub_u32 s%d, s%d, %d" % (sFLAG, sIDX, G))
        else: e("    s_sub_u32 s%d, s%d, %d" % (sFLAG, sIDX, NS * G - (NS - 1) * SSTEP))
        e("    v_mov_b32 v%d, s%d" % (vRET, sFLAG))
        if DYN == 2:
            if SHARD:
                e("    s_mul_i32 s%d, s%d, %d" % (sFLAG, sHEAD, NW))
                e("    s_add_u32 s%d, s%d, s%d" % (sFLAG, sFLAG, sWAVE))
                e("    s_lshl_b32 s%d, s%d, %d" % (sFLAG, sFLAG, CWS))
            else:
                e("    s_lshl_b32 s%d, s%d, %d" % (sFLAG, sHEAD, CWS))
            e("    s_add_u32 s%d, s%d, 0x%x" % (sFLAG, sFLAG, CTR_OFF))
            e("    v_mov_b32 v%d, s%d" % (vCW, sFLAG))
            e("    v_mov_b32 v%d, 0" % vFLG)
            e("    s_mov_b32 s%d, 0" % sFLAG)
    else:
        e("    s_mul_i32 s%d, s%d, %d" % (sKO, sWAVE, TILEB))
    for i in range(1, NSO):
        e("    s_add_u32 s%d, s%d, %d" % (sKO + i, sKO, i * 2 * 8 * ROWB))
    for i in range(NSO):
        e("    s_mov_b32 s%d, s%d" % (sVO + i, sKO + i))
    e("    s_mul_i32 s%d, s%d, %d" % (sCNT, sHEAD, ROWB))
    e("    v_add_u32 v%d, s%d, v%d" % (vT + 1, sCNT, vT + 1))
    e("    s_waitcnt lgkmcnt(0)")
    e("    s_add_u32 s16, s6, s%d" % sTMP)
    e("    s_addc_u32 s17, s7, 0")
    e("    s_add_u32 s20, s8, s%d" % sTMP)
    e("    s_addc_u32 s21, s9, 0")
    e("    s_and_b32 s17, s17, 0xffff")
    e("    s_and_b32 s21, s21, 0xffff")

    def kreg(b, r, j): return vK + (b * R + r) * 12 + j * 4
    def vreg(b, r, j): return vV + (b * R + r) * 12 + j * 4
    def loadK(b, r):
        for j in range(3):
            rr = kreg(b, r, j)
            e("    buffer_load_dwordx4 v[%d:%d], v%d, s[16:19], s%d offen offset:%d%s" %
              (rr, rr + 3, vOFF, sKO + r // 2, (r & 1) * 8 * ROWB + j * 128, pol))
    def loadV(b, r):
        for j in range(3):
            rr = vreg(b, r, j)
            e("    buffer_load_dwordx4 v[%d:%d], v%d, s[20:23], s%d offen offset:%d%s" %
              (rr, rr + 3, vOFF, sVO + r // 2, (r & 1) * 8 * ROWB + j * 128, pol))
    def advK():
        for i in range(NSO): e("    s_add_u32 s%d, s%d, %d" % (sKO + i, sKO + i, STEP))
    def advV():
        for i in range(NSO): e("    s_add_u32 s%d, s%d, %d" % (sVO + i, sVO + i, STEP))

    if DYN == 2:
        e("    s_cmp_lg_u32 s%d, 0" % sWAVE)
        e("    s_cbranch_scc1 L_noelect")
        e("    s_mov_b64 exec, 1")
        e("    global_atomic_add v%d, v%d, v%d, s[12:13] sc0 sc1" % (vA, vCA, vONE))
        e("    s_mov_b64 exec, -1")
        e("L_noelect:")
    for r in range(R): loadK(0, r)
    advK()
    for j in range(3):
        e("    global_load_dwordx4 v[%d:%d], v%d, s[4:5] offset:%d" % (vQ + 4 * j, vQ + 4 * j + 3, vT + 1, j * 128))
    for r in range(R): loadV(0, r)
    advV()
    for b in range(1, NBUF):
        for r in range(R): loadK(b, r)
        advK()
        for r in range(R): loadV(b, r)
        advV()
    if TRACE:
        e("    s_mul_i32 s52, s2, %d" % NW)
        e("    s_add_u32 s52, s52, s%d" % sWAVE)
        e("    s_lshl_b32 s52, s52, 10")
        e("    s_add_u32 s52, s52, 0x1100000")
        e("    v_mov_b32 v%d, s52" % vTR)
    e("    s_mov_b32 s%d, 0xffff0000" % sMASK)
    e("    s_mov_b32 s%d, %s" % (sC, f32hex(C)))
    e("    s_mov_b32 s%d, %d" % (sCNT, NT // NBUF))
    e("    v_mov_b32 v%d, 0xff800000" % vM)
    e("    v_mov_b32 v%d, 0xff800000" % vMC)
    e("    v_mov_b32 v%d, 0" % vL)
    for i in range(24): e("    v_mov_b32 v%d, 0" % (vO + i))
    if DYN == 2:
        e("    s_cmp_lg_u32 s%d, 0" % sWAVE)
        e("    s_cbranch_scc1 L_noinit")
        e("    s_waitcnt vmcnt(%d)" % (3 + 6 * R * NBUF))
        e("    v_readfirstlane_b32 s%d, v%d" % (sTMP, vA))
        e("    s_cmp_lg_u32 s%d, 0" % sTMP)
        e("    s_cbranch_scc1 L_noinit")
        if SHARD:
            e("    v_lshlrev_b32 v%d, %d, v%d" % (vT, CWS, vLANE))
            e("    v_add_u32 v%d, v%d, v%d" % (vT, vT, vCW))
            e("    s_mov_b64 exec, %d" % ((1 << NW) - 1))
            e("    global_store_dword v%d, v%d, s[14:15] sc0 sc1" % (vT, vL))
            e("    s_mov_b64 exec, 1")
        else:
            e("    s_mov_b64 exec, 1")
            e("    global_store_dword v%d, v%d, s[14:15] sc0 sc1" % (vCW, vL))
        e("    s_waitcnt vmcnt(0)")
        e("    global_store_dword v%d, v%d, s[12:13] offset:4 sc0 sc1" % (vCA, vONE))
        e("    s_mov_b64 exec, -1")
        e("L_noinit:")
        e("    s_mov_b32 s%d, %d" % (sCNT, NS - 2))
    e("    s_waitcnt vmcnt(%d)" % (3 * R + 6 * R * (NBUF - 1)))
    def body(mode):
        for b in range(NBUF):
            for r0 in range(0, R, 2):
                rs = [r for r in (r0, r0 + 1) if r < R]
                n = 3 * (R - 1 - rs[-1]) + 3 * R + 6 * R * (NBUF - 1)
                if DYN and b > 0: n += 1
                e("    s_waitcnt vmcnt(%d)" % n)
                for j in range(3):
                    for i in range(4):
                        for r in rs:
                            if j == 0 and i == 0:
                                e("    v_dot2_f32_bf16 v%d, v%d, v%d, 0" % (vS + r, kreg(b, r, j) + i, vQ + 4 * j + i))
                            else:
                                e("    v_dot2_f32_bf16 v%d, v%d, v%d, v%d" % (vS + r, kreg(b, r, j) + i, vQ + 4 * j + i, vS + r))
            if DYN and b == 0:
                if mode == "S":
                    e("    v_readfirstlane_b32 s%d, v%d" % (sFLAG, vFLG))
                    e("    s_mov_b64 exec, 1")
                    e("    global_load_dword v%d, v%d, s[12:13] offset:4 sc0 sc1" % (vFLG, vCA))
                    if DUMMY == 1:
                        e("    global_atomic_add v%d, v%d, v%d, s[14:15] offset:64 sc0 sc1" % (vTR + 1, vCW, vONE))
                    if DUMMY == 2:
                        e("    global_load_dword v%d, v%d, s[14:15] offset:64 sc0 sc1" % (vTR + 1, vCW))
                    e("    s_mov_b64 exec, -1")
                    e("    s_add_u32 s%d, s%d, %d" % (sIDX, sIDX, SSTEP))
                else:
                    e("    v_readfirstlane_b32 s%d, v%d" % (sIDX, vRET))
                    e("    s_mov_b64 exec, 1")
                    if DYN == 1:
                        e("    global_atomic_add v%d, v%d, v%d, s[12:13] sc0 sc1" % (vRET, vCW if False else vCA, vONE))
                    else:
                        e("    global_atomic_add v%d, v%d, v%d, s[14:15] sc0 sc1" % (vRET, vCW, vONE))
                    e("    s_mov_b64 exec, -1")
                    e("    s_add_u32 s%d, s%d, %d" % (sIDX, sIDX, (2 if DYN == 1 else NS) * G))
                    e("    s_min_u32 s%d, s%d, %d" % (sIDX, sIDX, NUNITS))
                e("    s_mul_i32 s%d, s%d, %d" % (sKO, sIDX, UMUL))
                for i in range(1, NSO):
                    e("    s_add_u32 s%d, s%d, %d" % (sKO + i, sKO, i * 2 * 8 * ROWB))
                for i in range(NSO):
                    e("    s_mov_b32 s%d, s%d" % (sVO + i, sKO + i))
            for r in range(R): loadK(b, r)
            advK()
            for pat in ("quad_perm:[1,0,3,2]", "quad_perm:[2,3,0,1]", "row_half_mirror"):
                for r in range(R):
                    e("    v_add_f32_dpp v%d, v%d, v%d %s row_mask:0xf bank_mask:0xf" % (vS + r, vS + r, vS + r, pat))
                if R < 3: e("    s_nop %d" % (2 - R))
            rest = list(range(R))
            while rest:
                if len(rest) >= 2:
                    a, c = rest.pop(0), rest.pop(0)
                    e("    v_max3_f32 v%d, v%d, v%d, v%d" % (vM, vM, vS + a, vS + c))
                else:
                    a = rest.pop(0)
                    e("    v_max_f32 v%d, v%d, v%d" % (vM, vM, vS + a))
            e("    v_mov_b32 v%d, v%d" % (vA, vMC))
            e("    v_mul_f32 v%d, s%d, v%d" % (vMC, sC, vM))
            e("    v_sub_f32 v%d, v%d, v%d" % (vA, vA, vMC))
            for r in range(R):
                e("    v_fma_f32 v%d, v%d, s%d, -v%d" % (vS + r, vS + r, sC, vMC))
            e("    v_exp_f32 v%d, v%d" % (vA, vA))
            for r in range(R):
                e("    v_exp_f32 v%d, v%d" % (vS + r, vS + r))
            for i in range(12):
                e("    v_pk_mul_f32 v[%d:%d], v[%d:%d], v[%d:%d] op_sel:[0,1] op_sel_hi:[1,1]" %
                  (vO + 2 * i, vO + 2 * i + 1, vO + 2 * i, vO + 2 * i + 1, vA - 1, vA))
            e("    v_fma_f32 v%d, v%d, v%d, v%d" % (vL, vL, vA, vS))
            for r in range(1, R):
                e("    v_add_f32 v%d, v%d, v%d" % (vL, vL, vS + r))
            tix = 0
            for r in range(R):
                n = 3 * (R - 1) + 3 * R + 6 * R * (NBUF - 1)
                if DYN: n += 1
                e("    s_waitcnt vmcnt(%d)" % n)
                p = vS + r
                pb = p & ~1
                sel = "op_sel:[0,%d,0] op_sel_hi:[1,%d,1]" % (p & 1, p & 1)
                items = [(j, i) for j in range(3) for i in range(4)]
                pend = []
                for (j, i) in items:
                    t = vT + 2 * (tix % 4); tix += 1
                    src = vreg(b, r, j) + i
                    e("    v_lshlrev_b32 v%d, 16, v%d" % (t, src))
                    e("    v_and_b32 v%d, s%d, v%d" % (t + 1, sMASK, src))
                    pend.append((t, vO + j * 8 + 2 * i))
                    if len(pend) > 1:
                        tt, oo = pend.pop(0)
                        e("    v_pk_fma_f32 v[%d:%d], v[%d:%d], v[%d:%d], v[%d:%d] %s" % (oo, oo + 1, tt, tt + 1, pb, pb + 1, oo, oo + 1, sel))
                for tt, oo in pend:
                    e("    v_pk_fma_f32 v[%d:%d], v[%d:%d], v[%d:%d], v[%d:%d] %s" % (oo, oo + 1, tt, tt + 1, pb, pb + 1, oo, oo + 1, sel))
                loadV(b, r)
            advV()
        if TRACE:
            e("    s_memrealtime s[50:51]")
            e("    s_waitcnt lgkmcnt(0)")
            e("    v_mov_b32 v%d, s50" % vT)
            e("    s_mov_b64 exec, 1")
            e("    global_store_dword v%d, v%d, s[14:15]" % (vTR, vT))
            e("    s_mov_b64 exec, -1")
            e("    v_add_u32 v%d, 4, v%d" % (vTR, vTR))
    if DYN == 2:
        assert NS >= 4 and NS * G <= NUNITS
        e("L_sloop:")
        body("S")
        e("    s_sub_u32 s%d, s%d, 1" % (sCNT, sCNT))
        e("    s_cmp_lg_u32 s%d, 0" % sCNT)
        e("    s_cbranch_scc1 L_sloop")
        e("    s_cmp_lg_u32 s%d, 0" % sFLAG)
        e("    s_cbranch_scc1 L_ready")
        e("L_spin:")
        e("    s_waitcnt vmcnt(0)")
        e("    v_readfirstlane_b32 s%d, v%d" % (sFLAG, vFLG))
        e("    s_cmp_lg_u32 s%d, 0" % sFLAG)
        e("    s_cbranch_scc1 L_ready")
        e("    global_load_dword v%d, v%d, s[12:13] offset:4 sc0 sc1" % (vFLG, vCA))
        e("    s_branch L_spin")
        e("L_ready:")
    e("L_loop:")
    body("D")
    if DYN:
        e("    s_cmp_lt_u32 s%d, %d" % (sIDX, NUNITS))
    else:
        e("    s_sub_u32 s%d, s%d, 1" % (sCNT, sCNT))
        e("    s_cmp_lg_u32 s%d, 0" % sCNT)
    e("    s_cbranch_scc1 L_loop")

    if STAMP:
        e("    s_memrealtime s[%d:%d]" % (sT0 + 2, sT0 + 3))
    t0, t1 = vT, vT + 1
    vMX = vT + 2
    e("    s_nop 1")
    e("    v_max_f32_dpp v%d, v%d, v%d row_ror:8 row_mask:0xf bank_mask:0xf" % (vMX, vMC, vMC))
    e("    s_nop 0")
    e("    v_mov_b32 v%d, v%d" % (t0, vMX))
    e("    s_nop 1")
    e("    v_permlane16_swap_b32 v%d, v%d" % (vMX, t0))
    e("    s_nop 1")
    e("    v_max_f32 v%d, v%d, v%d" % (vMX, vMX, t0))
    e("    s_nop 0")
    e("    v_mov_b32 v%d, v%d" % (t0, vMX))
    e("    s_nop 1")
    e("    v_permlane32_swap_b32 v%d, v%d" % (vMX, t0))
    e("    s_nop 1")
    e("    v_max_f32 v%d, v%d, v%d" % (vMX, vMX, t0))
    e("    v_sub_f32 v%d, v%d, v%d" % (vA, vMC, vMX))
    e("    v_exp_f32 v%d, v%d" % (vA, vA))
    e("    s_nop 0")
    e("    v_mul_f32 v%d, v%d, v%d" % (vL, vL, vA))
    for i in range(12):
        e("    v_pk_mul_f32 v[%d:%d], v[%d:%d], v[%d:%d] op_sel:[0,1] op_sel_hi:[1,1]" %
          (vO + 2 * i, vO + 2 * i + 1, vO + 2 * i, vO + 2 * i + 1, vA - 1, vA))
    vLX = vMX + 1
    e("    v_add_f32_dpp v%d, v%d, v%d row_ror:8 row_mask:0xf bank_mask:0xf" % (vLX, vL, vL))
    for j in range(3):
        for ee in range(4):
            a = vO + j * 8 + ee; b_ = a + 4
            e("    v_permlane32_swap_b32 v%d, v%d" % (a, b_))
    e("    v_mov_b32 v%d, v%d" % (t0, vLX))
    for j in range(3):
        for ee in range(4):
            a = vO + j * 8 + ee; b_ = a + 4
            e("    v_add_f32 v%d, v%d, v%d" % (a, a, b_))
    e("    v_permlane16_swap_b32 v%d, v%d" % (vLX, t0))
    for j in range(3):
        for ee in range(2):
            a = vO + j * 8 + ee; b_ = a + 2
            e("    v_permlane16_swap_b32 v%d, v%d" % (a, b_))
    e("    v_add_f32 v%d, v%d, v%d" % (vLX, vLX, t0))
    for j in range(3):
        for ee in range(2):
            a = vO + j * 8 + ee; b_ = a + 2
            e("    v_add_f32 v%d, v%d, v%d" % (a, a, b_))
    e("    v_mov_b32 v%d, v%d" % (t0, vLX))
    e("    v_and_b32 v%d, 7, v%d" % (vT + 4, vLANE))
    e("    v_lshlrev_b32 v%d, 5, v%d" % (vT + 4, vT + 4))
    e("    v_lshrrev_b32 v%d, 3, v%d" % (vT + 5, vLANE))
    e("    v_lshl_add_u32 v%d, v%d, 2, v%d" % (vT + 4, vT + 5, vT + 4))
    e("    s_mul_i32 s%d, s%d, %d" % (sTMP, sWAVE, PSTR))
    e("    v_permlane32_swap_b32 v%d, v%d" % (vLX, t0))
    for j in range(3):
        a = vO + j * 8
        e("    v_add_f32_dpp v%d, v%d, v%d row_ror:8 row_mask:0xf bank_mask:0x3" % (a + 2, a, a))
    for j in range(3):
        a = vO + j * 8
        e("    v_add_f32_dpp v%d, v%d, v%d row_ror:8 row_mask:0xf bank_mask:0xc" % (a + 2, a + 1, a + 1))
    e("    v_add_f32 v%d, v%d, v%d" % (vLX, vLX, t0))
    e("    v_add_u32 v%d, s%d, v%d" % (vT + 4, sTMP, vT + 4))
    e("    v_mov_b32 v%d, s%d" % (vT + 5, sTMP))
    for j in range(3):
        e("    ds_write_b32 v%d, v%d offset:%d" % (vT + 4, vO + j * 8 + 2, j * 256))
    e("    ds_write_b64 v%d, v[%d:%d] offset:768" % (vT + 5, vMX, vLX))
    e("    s_waitcnt vmcnt(0) lgkmcnt(0)")
    e("    s_barrier")
    e("    s_cmp_lg_u32 s%d, 0" % sWAVE)
    e("    s_cbranch_scc1 L_done")
    vX = vK
    vY = vK + max(NW, NSPLIT) * 4
    vZ = vY + max(NW, NSPLIT) * 2
    e("    v_lshlrev_b32 v%d, 4, v%d" % (vT, vLANE))
    e("    v_mov_b32 v%d, 0" % (vT + 1))
    for w in range(NW):
        e("    ds_read_b64 v[%d:%d], v%d offset:%d" % (vY + 2 * w, vY + 2 * w + 1, vT + 1, w * PSTR + 768))
    for w in range(NW):
        e("    ds_read_b128 v[%d:%d], v%d offset:%d" % (vX + 4 * w, vX + 4 * w + 3, vT, w * PSTR))

    def combine(n, waitfirst, waitsecond):
        e(waitfirst)
        e("    v_mov_b32 v%d, v%d" % (vZ + 4, vY))
        rest = list(range(1, n))
        while rest:
            if len(rest) >= 2:
                a, c = rest.pop(0), rest.pop(0)
                e("    v_max3_f32 v%d, v%d, v%d, v%d" % (vZ + 4, vZ + 4, vY + 2 * a, vY + 2 * c))
            else:
                a = rest.pop(0)
                e("    v_max_f32 v%d, v%d, v%d" % (vZ + 4, vZ + 4, vY + 2 * a))
        for w in range(n):
            e("    v_sub_f32 v%d, v%d, v%d" % (vY + 2 * w, vY + 2 * w, vZ + 4))
        for w in range(n):
            e("    v_exp_f32 v%d, v%d" % (vY + 2 * w, vY + 2 * w))
        e("    s_nop 0")
        e("    v_mul_f32 v%d, v%d, v%d" % (vZ + 5, vY, vY + 1))
        for w in range(1, n):
            e("    v_fma_f32 v%d, v%d, v%d, v%d" % (vZ + 5, vY + 2 * w, vY + 2 * w + 1, vZ + 5))
        e(waitsecond)
        for h in range(2):
            e("    v_pk_mul_f32 v[%d:%d], v[%d:%d], v[%d:%d] op_sel_hi:[1,0]" %
              (vZ + 2 * h, vZ + 2 * h + 1, vX + 2 * h, vX + 2 * h + 1, vY, vY + 1))
        for w in range(1, n):
            for h in range(2):
                e("    v_pk_fma_f32 v[%d:%d], v[%d:%d], v[%d:%d], v[%d:%d] op_sel_hi:[1,0,1]" %
                  (vZ + 2 * h, vZ + 2 * h + 1, vX + 4 * w + 2 * h, vX + 4 * w + 2 * h + 1, vY + 2 * w, vY + 2 * w + 1, vZ + 2 * h, vZ + 2 * h + 1))

    combine(NW, "    s_waitcnt lgkmcnt(%d)" % min(NW, 15), "    s_waitcnt lgkmcnt(0)")
    e("    v_cmp_eq_u32 vcc, 48, v%d" % vLANE)
    e("    s_lshl_b32 s%d, s%d, 10" % (sTMP, sLIN))
    e("    v_add_u32 v%d, s%d, v%d" % (vT + 2, sTMP, vT))
    e("    v_cndmask_b32 v%d, v%d, v%d, vcc" % (vZ, vZ, vZ + 4))
    e("    v_cndmask_b32 v%d, v%d, v%d, vcc" % (vZ + 1, vZ + 1, vZ + 5))
    e("    v_cmp_gt_u32 vcc, 49, v%d" % vLANE)
    e("    s_mul_i32 s%d, s%d, %d" % (sTMP, sHEAD, CSTRIDE))
    e("    v_mov_b32 v%d, s%d" % (vT + 3, sTMP))
    e("    v_mov_b32 v%d, %d" % (vT + 4, 0x100 if DYN == 2 else 1))
    e("    s_mov_b64 exec, vcc")
    e("    global_store_dwordx4 v%d, v[%d:%d], s[14:15] sc0 sc1" % (vT + 2, vZ, vZ + 3))
    if STAMP:
        e("    s_waitcnt lgkmcnt(0)")
        e("    s_memrealtime s[%d:%d]" % (sT0 + 4, sT0 + 5))
    e("    s_mov_b64 exec, 1")
    e("    s_waitcnt vmcnt(0)")
    e("    global_atomic_add v%d, v%d, v%d, s[12:13] offset:%d sc0 sc1" % (vT + 5, vT + 3, vT + 4, 4 if (CSTRIDE >= 8 and DYN != 2) else 0))
    e("    s_waitcnt vmcnt(0)")
    e("    v_readfirstlane_b32 s%d, v%d" % (sTMP, vT + 5))
    e("    s_mov_b64 exec, -1")
    if STAMP:
        e("    s_memrealtime s[%d:%d]" % (sT0 + 6, sT0 + 7))
        e("    s_getreg_b32 s%d, hwreg(HW_REG_XCC_ID)" % (sT0 + 8))
        e("    s_getreg_b32 s%d, hwreg(HW_REG_HW_ID)" % (sT0 + 9))
        e("    s_waitcnt lgkmcnt(0)")
        for i in range(10):
            e("    v_mov_b32 v%d, s%d" % (vX + i, sT0 + i))
        e("    s_lshl_b32 s%d, s2, 6" % (sT0))
        e("    s_add_u32 s%d, s%d, 0x1000000" % (sT0, sT0))
        e("    v_mov_b32 v%d, s%d" % (vT + 6, sT0))
        e("    s_mov_b64 exec, 1")
        e("    global_store_dwordx4 v%d, v[%d:%d], s[14:15]" % (vT + 6, vX, vX + 3))
        e("    global_store_dwordx4 v%d, v[%d:%d], s[14:15] offset:16" % (vT + 6, vX + 4, vX + 7))
        e("    global_store_dwordx2 v%d, v[%d:%d], s[14:15] offset:32" % (vT + 6, vX + 8, vX + 9))
        e("    s_waitcnt vmcnt(0)")
        e("    s_mov_b64 exec, -1")
    if DYN == 2: e("    s_lshr_b32 s%d, s%d, 8" % (sTMP, sTMP))
    e("    s_cmp_lg_u32 s%d, %d" % (sTMP, NSPLIT - 1))
    e("    s_cbranch_scc1 L_done")
    e("    s_lshl_b32 s%d, s%d, %d" % (sTMP, sHEAD, 10 + LOGS))
    e("    v_add_u32 v%d, s%d, v%d" % (vT + 2, sTMP, vT))
    e("    v_mov_b32 v%d, s%d" % (vT + 3, sTMP))
    for j in range(NSPLIT):
        if j and j % 4 == 0:
            e("    v_add_u32 v%d, 4096, v%d" % (vT + 3, vT + 3))
        e("    global_load_dwordx2 v[%d:%d], v%d, s[14:15] offset:%d sc0 sc1" % (vY + 2 * j, vY + 2 * j + 1, vT + 3, (j % 4) * 1024 + 768))
    for j in range(NSPLIT):
        if j and j % 4 == 0:
            e("    v_add_u32 v%d, 4096, v%d" % (vT + 2, vT + 2))
        e("    global_load_dwordx4 v[%d:%d], v%d, s[14:15] offset:%d sc0 sc1" % (vX + 4 * j, vX + 4 * j + 3, vT + 2, (j % 4) * 1024))
    combine(NSPLIT, "    s_waitcnt vmcnt(%d)" % NSPLIT, "    s_waitcnt vmcnt(0)")
    e("    v_rcp_f32 v%d, v%d" % (vZ + 4, vZ + 5))
    e("    s_mul_i32 s%d, s%d, %d" % (sTMP, sHEAD, ROWB))
    e("    v_lshlrev_b32 v%d, 3, v%d" % (vT, vLANE))
    e("    v_add_u32 v%d, s%d, v%d" % (vT, sTMP, vT))
    for h in range(2):
        e("    v_pk_mul_f32 v[%d:%d], v[%d:%d], v[%d:%d] op_sel_hi:[1,0]" %
          (vZ + 2 * h, vZ + 2 * h + 1, vZ + 2 * h, vZ + 2 * h + 1, vZ + 4, vZ + 5))
    e("    v_cmp_gt_u32 vcc, 48, v%d" % vLANE)
    e("    v_cvt_pk_bf16_f32 v%d, v%d, v%d" % (vZ, vZ, vZ + 1))
    e("    v_cvt_pk_bf16_f32 v%d, v%d, v%d" % (vZ + 1, vZ + 2, vZ + 3))
    e("    s_mov_b64 exec, vcc")
    e("    global_store_dwordx2 v%d, v[%d:%d], s[10:11]" % (vT, vZ, vZ + 1))
    if HOLD:
        e("L_hold:")
        e("    s_memrealtime s[50:51]")
        e("    s_waitcnt lgkmcnt(0)")
        e("    s_sub_u32 s50, s50, s%d" % sT0)
        e("    s_cmp_lt_u32 s50, %d" % HOLD)
        e("    s_cbranch_scc1 L_hold")
    e("L_done:")
    e("    s_endpgm")
    e('.section .rodata,"a"')
    e(".p2align 6")
    e(".amdhsa_kernel %s" % KNAME)
    e("  .amdhsa_next_free_vgpr %d" % NVGPR)
    e("  .amdhsa_next_free_sgpr 56")
    e("  .amdhsa_accum_offset %d" % ((NVGPR + 3) // 4 * 4))
    e("  .amdhsa_group_segment_fixed_size 0")
    e("  .amdhsa_kernarg_size 48")
    e("  .amdhsa_user_sgpr_count 2")
    e("  .amdhsa_user_sgpr_kernarg_segment_ptr 1")
    e("  .amdhsa_system_sgpr_workgroup_id_x 1")
    e("  .amdhsa_float_denorm_mode_32 3")
    e(".end_amdhsa_kernel")
    return "\n".join(o) + "\n"

if __name__ == "__main__":
    ap = argparse.ArgumentParser()
    ap.add_argument("-o", default="standalone__mha_softmax__decode.s")
    for k, d in dict(NW=8, R=4, NBUF=2, NSPLIT=8, ILV=0, STAMP=0, CSTRIDE=8, DYN=0, NS=8, SP=0, TRACE=0, DUMMY=0, CWS=8, SHARD=0, FAKEW=0, HOLD=0).items():
        ap.add_argument("--" + k, type=int, default=d)
    ap.add_argument("--POL", default="nt")
    ap.add_argument("--MAP", default="A")
    a = vars(ap.parse_args())
    out = a.pop("o")
    open(out, "w").write(gen(**a))
    print("wrote", out)
```

```python
import math, struct, sys, argparse
H = 32; SK = 32768; D = 192
ROWB = D * 2
HEADB = SK * ROWB
NWG = 256
TB = 8 * ROWB
TPH = SK // 8

def f32hex(x):
    return "0x%08x" % struct.unpack("<I", struct.pack("<f", x))[0]

HEADER = """; Kernarg layout for this problem (48 bytes, ptrs only, base s[0:1]):
"""

def gen(W=8, NW=4, SSL=6, TP=384, CAP=14, THR=3, NWC=4, POL="nt", STAMP=0, TRACE=0, HOLD=0,
        KNAME="standalone__mha_softmax__decode_kernel"):
    o = []
    e = o.append
    PER = NWG // W; RND = H // W
    LOGP = int(math.log2(PER))
    TB2 = 2 * TB; TPH2 = SK // 16
    TOTB = H * HEADB
    SST = PER * NW
    SSF = TPH2 // SST
    LA = 3
    LIML = TPH2 - TP
    assert SSF * SST == TPH2 and SSF < 63 and RND >= 2
    assert SSL * SST <= LIML and SSL >= LA + 1
    assert CAP * PER >= -(-(LIML - SSL * SST) // NW), "cap too small to cover the dynamic units"
    NUT = -(-(2 * TP) // NW)
    RPW = PER // NWC
    assert NW >= NWC and PER <= 64 and RPW % 4 == 0 and 2 * W <= 64
    pol = (" " + POL) if POL else ""
    C = (D ** -0.5) * math.log2(math.e)
    QO = 0
    NONO = RND * ROWB
    MLO = (NONO + 16 + 15) // 16 * 16
    LSO = MLO + RND * 16
    LLO = LSO + (SSF + 2) * 4
    LLN = SSL + CAP + 2 + NUT + 2
    DLO = (LLO + LLN * 4 + 63) // 64 * 64
    DO = (DLO + 2 * NW * 4 + 1023) // 1024 * 1024
    SLOTB = NW * 1024
    RECO = DO + 2 * SLOTB
    SCO = RECO + (RND - 1) * 1024
    SCR = (SSF + 1) * 64
    SCW = (RND - 1) * SCR + (SSL + CAP + 1) * 64
    LDS = SCO + NW * SCW
    MRG = DO + (RND & 1) * SLOTB
    assert LDS <= 64 * 1024 and NWC * 1024 <= SLOTB
    CTR_OFF = 0x800000
    MLG = 0x400000
    OOB = 0xF0000000

    vLANE = 0; vOFF = 1; vM = 2; vNB = 3; vA = 3; vS = 4
    vT = 6; vQ = 14; vO = 28; vMC = 52; vL = 53
    vDA = 54; vQA = 55; vTR = 56; vSA = 57; vLA = 58; vS0 = 59
    vB = 60; vX = 60
    NVGPR = max(84, vX + 5 * NW, vX + 4 * RND + 4, vX + 4 * RPW)
    sCOL = 24; sIDX = 25; sWAVE = 26; sMASK = 27; sC = 28; sCNT = 29; sR = 30; sTMP = 31
    sOFF = 32; sHO = 33; sG = 34; sBIAS = 35; sNB = 36; sHEAD = 37; sT2 = 38; sNON = 39
    sT0 = 40
    sM1 = 53; sN = 54; sNT = 55; sL0 = 56; sOFB = 57; sLIM = 58; sVB = 59; sBASE = 60; sNLS = 61; sCAP = 62; sT3 = 63
    sW = 64
    sBAD = sW + RPW + (RPW & 1)
    NSGPR = sBAD + 2

    e(HEADER + "; @launch grid=(%d,1,1) block=(%d,1,1) lds=%d" % (NWG, (NW + 1) * 64, LDS))
    if TRACE: e("; UNITBYTES=%d" % TB2)
    e('.amdgcn_target "amdgcn-amd-amdhsa--gfx950"')
    e(".text")
    e(".globl %s" % KNAME)
    e(".p2align 8")
    e(".type %s,@function" % KNAME)
    e("%s:" % KNAME)
    e("    s_cmp_ge_u32 s2, %d" % NWG)
    e("    s_cbranch_scc1 L_done")
    e("    s_load_dwordx4 s[4:7], s[0:1], 0")
    e("    s_load_dwordx4 s[8:11], s[0:1], 16")
    e("    s_load_dwordx4 s[12:15], s[0:1], 32")
    if STAMP or HOLD:
        e("    s_memrealtime s[%d:%d]" % (sT0, sT0 + 1))
    e("    v_lshrrev_b32 v%d, 6, v0" % vA)
    e("    v_and_b32 v%d, 63, v0" % vLANE)
    e("    v_readfirstlane_b32 s%d, v%d" % (sWAVE, vA))
    e("    s_lshr_b32 s%d, s2, %d" % (sCOL, LOGP))
    e("    s_and_b32 s%d, s2, %d" % (sIDX, PER - 1))
    e("    s_mul_i32 s%d, s%d, %d" % (sL0, sIDX, NW))
    e("    s_cmp_eq_u32 s%d, %d" % (sWAVE, NW))
    e("    s_cbranch_scc1 L_service")
    e("    v_lshrrev_b32 v%d, 3, v%d" % (vS0, vLANE))
    e("    v_and_b32 v%d, 7, v%d" % (vQA, vLANE))
    e("    v_lshlrev_b32 v%d, 4, v%d" % (vQA, vQA))
    e("    v_mul_u32_u24 v%d, %d, v%d" % (vT, ROWB, vS0))
    e("    v_add_u32 v%d, v%d, v%d" % (vOFF, vT, vQA))
    e("    s_mov_b32 s18, %d" % TOTB)
    e("    s_mov_b32 s19, 0x00020000")
    e("    s_mov_b32 s22, %d" % TOTB)
    e("    s_mov_b32 s23, 0x00020000")
    e("    s_mul_i32 s%d, s%d, %d" % (sHO, sCOL, HEADB))
    e("    s_add_u32 s%d, s%d, s%d" % (sG, sL0, sWAVE))
    e("    s_mul_i32 s%d, s%d, %d" % (sOFF, sG, TB2))
    e("    s_add_u32 s%d, s%d, s%d" % (sOFF, sOFF, sHO))
    e("    s_add_u32 s%d, s%d, %d" % (sOFB, sOFF, TB))
    e("    s_mul_i32 s%d, s%d, %d" % (sCNT, sCOL, ROWB))
    e("    v_add_u32 v%d, s%d, v%d" % (vT + 1, sCNT, vQA))
    e("    s_waitcnt lgkmcnt(0)")
    e("    s_and_b32 s7, s7, 0xffff")
    e("    s_and_b32 s9, s9, 0xffff")
    e("    s_mov_b64 s[16:17], s[6:7]")
    e("    s_mov_b64 s[20:21], s[6:7]")
    def load(j):
        e("    buffer_load_dwordx4 v[%d:%d], v%d, s[%s], s%d offen offset:%d%s" %
          (vB + 4 * j, vB + 4 * j + 3, vOFF, "16:19" if j < 3 else "20:23", sOFF if j < 3 else sOFB, (j % 3) * 128, pol))
    for j in range(6): load(j)
    for j in range(3):
        e("    global_load_dwordx4 v[%d:%d], v%d, s[4:5] offset:%d" % (vQ + 4 * j, vQ + 4 * j + 3, vT + 1, j * 128))
    if TRACE:
        e("    s_mul_i32 s52, s2, %d" % (NW + 1))
        e("    s_add_u32 s52, s52, s%d" % sWAVE)
        e("    s_lshl_b32 s52, s52, 10")
        e("    s_add_u32 s52, s52, 0x1100000")
        e("    v_mov_b32 v%d, s52" % vTR)
    e("    s_mov_b32 s%d, 0xffff0000" % sMASK)
    e("    s_mov_b32 s%d, %s" % (sC, f32hex(C)))
    e("    s_mov_b32 s%d, 0" % sR)
    e("    s_mov_b32 s%d, %d" % (sT2, SLOTB))
    e("    s_lshl_b32 s%d, s%d, 10" % (sTMP, sWAVE))
    e("    s_add_u32 s%d, s%d, %d" % (sTMP, sTMP, DO))
    e("    v_lshlrev_b32 v%d, 4, v%d" % (vDA, vLANE))
    e("    v_add_u32 v%d, s%d, v%d" % (vDA, sTMP, vDA))
    e("    s_lshl_b32 s%d, s%d, 2" % (sT3, sWAVE))
    e("    s_add_u32 s%d, s%d, %d" % (sT3, sT3, DLO))
    e("    s_mul_i32 s%d, s%d, %d" % (sTMP, sWAVE, SCW))
    e("    s_add_u32 s%d, s%d, %d" % (sTMP, sTMP, SCO))
    e("    v_lshlrev_b32 v%d, 3, v%d" % (vS0, vS0))
    e("    v_add_u32 v%d, s%d, v%d" % (vS0, sTMP, vS0))
    def init_state():
        e("    v_mov_b32 v%d, 0" % vL)
        for i in range(24): e("    v_mov_b32 v%d, 0" % (vO + i))
    init_state()
    e("    s_barrier")
    e("    s_waitcnt vmcnt(0)")
    def trace():
        if TRACE:
            e("    s_memrealtime s[50:51]")
            e("    s_waitcnt lgkmcnt(0)")
            e("    v_mov_b32 v%d, s50" % vT)
            e("    s_mov_b64 exec, 1")
            e("    global_store_dword v%d, v%d, s[14:15]" % (vTR, vT))
            e("    s_mov_b64 exec, -1")
            e("    v_add_u32 v%d, 4, v%d" % (vTR, vTR))
    def next_off16(sbase, sh):
        e("    s_add_u32 s%d, s%d, s%d" % (sG, sbase, sWAVE))
        e("    s_mul_i32 s%d, s%d, %d" % (sOFF, sG, TB2))
        e("    s_add_u32 s%d, s%d, s%d" % (sOFF, sOFF, sh))
        e("    s_cmp_lt_u32 s%d, s%d" % (sG, sLIM))
        e("    s_cselect_b32 s%d, s%d, 0x%x" % (sOFF, sOFF, OOB))
        e("    s_add_u32 s%d, s%d, %d" % (sOFB, sOFF, TB))
    def next_off8():
        e("    s_add_u32 s%d, s%d, s%d" % (sG, sNB, sWAVE))
        e("    s_mul_i32 s%d, s%d, %d" % (sOFF, sG, TB))
        e("    s_add_u32 s%d, s%d, s%d" % (sOFF, sOFF, sHO))
        e("    s_cmp_lt_u32 s%d, %d" % (sG, TPH))
        e("    s_cselect_b32 s%d, s%d, 0x%x" % (sOFF, sOFF, OOB))
        e("    s_mov_b32 s%d, s%d" % (sOFB, sOFF))
    def dots4(jj, accs, first):
        j = jj % 3
        for i in range(4):
            acc = accs[i % 2]
            if first and i < 2:
                e("    v_dot2_f32_bf16 v%d, v%d, v%d, 0" % (acc, vB + 4 * jj + i, vQ + 4 * j + i))
            else:
                e("    v_dot2_f32_bf16 v%d, v%d, v%d, v%d" % (acc, vB + 4 * jj + i, vQ + 4 * j + i, acc))
    def pv(jj, r):
        j = jj % 3
        e("    s_waitcnt vmcnt(5)")
        for i in range(4):
            e("    v_lshlrev_b32 v%d, 16, v%d" % (vT + 2 * i, vB + 4 * jj + i))
            e("    v_and_b32 v%d, s%d, v%d" % (vT + 2 * i + 1, sMASK, vB + 4 * jj + i))
        load(jj)
        for i in range(4):
            oo = vO + j * 8 + 2 * i
            e("    v_pk_fma_f32 v[%d:%d], v[%d:%d], v[%d:%d], v[%d:%d] op_sel:[0,%d,0] op_sel_hi:[1,%d,1]" %
              (oo, oo + 1, vT + 2 * i, vT + 2 * i + 1, vS, vS + 1, oo, oo + 1, r, r))
    def set_round():
        e("    s_cmp_eq_u32 s%d, %d" % (sR, RND - 1))
        e("    s_cselect_b32 s%d, %d, 0" % (sLIM, TP))
        e("    s_cselect_b32 s%d, %d, -1" % (sNLS, SSL - LA))
        e("    s_cselect_b32 s%d, %d, 0" % (sTMP, LLO - LSO))
        e("    s_sub_u32 s%d, %d, s%d" % (sLIM, TPH2, sLIM))
        e("    s_add_u32 s%d, s%d, %d" % (sTMP, sTMP, LSO))
        e("    v_mov_b32 v%d, s%d" % (vLA, sTMP))
        e("    s_mul_i32 s%d, s%d, %d" % (sTMP, sR, SCR))
        e("    v_add_u32 v%d, s%d, v%d" % (vSA, sTMP, vS0))
        e("    s_mov_b32 s%d, 0" % sN)
    e("L_kround:")
    set_round()
    e("    v_mov_b32 v%d, 0xff7fffff" % vM)
    e("    v_mov_b32 v%d, v%d" % (vMC, vSA))
    e("    v_add_u32 v%d, 64, v%d" % (vSA, vSA))
    e("L_k:")
    e("    s_cmp_lt_u32 s%d, s%d" % (sN, sNLS))
    e("    s_cbranch_scc1 L_knb")
    e("    s_barrier")
    e("L_knb:")
    e("    ds_read_b32 v%d, v%d offset:4" % (vNB, vLA))
    e("    s_cmp_lt_u32 s%d, s%d" % (sG, sLIM))
    e("    s_cselect_b32 s%d, 0, 0xff800000" % sBIAS)
    e("    s_add_u32 s%d, s%d, 1" % (sN, sN))
    e("    v_add_u32 v%d, 4, v%d" % (vLA, vLA))
    e("    s_waitcnt lgkmcnt(0)")
    e("    v_readfirstlane_b32 s%d, v%d" % (sNB, vNB))
    e("    s_cmp_lt_u32 s%d, s%d" % (sNB, sLIM))
    e("    s_cbranch_scc0 L_klast")
    next_off16(sNB, sHO)
    e("L_kgo:")
    for jj in range(6):
        r = jj // 3
        e("    s_waitcnt vmcnt(5)")
        dots4(jj, (vS + r, vT + r), jj % 3 == 0)
        load(jj)
    e("    v_add_f32 v%d, v%d, v%d" % (vS, vS, vT))
    e("    s_nop 0")
    e("    v_add_f32 v%d, v%d, v%d" % (vS + 1, vS + 1, vT + 1))
    e("    s_nop 0")
    for pat in ("quad_perm:[1,0,3,2]", "quad_perm:[2,3,0,1]", "row_half_mirror"):
        for r in range(2):
            e("    v_add_f32_dpp v%d, v%d, v%d %s row_mask:0xf bank_mask:0xf" % (vS + r, vS + r, vS + r, pat))
        if pat != "row_half_mirror": e("    s_nop 0")
    e("    v_add_f32 v%d, s%d, v%d" % (vS, sBIAS, vS))
    e("    v_add_f32 v%d, s%d, v%d" % (vS + 1, sBIAS, vS + 1))
    e("    v_max3_f32 v%d, v%d, v%d, v%d" % (vM, vM, vS, vS + 1))
    e("    ds_write_b64 v%d, v[%d:%d]" % (vSA, vS, vS + 1))
    e("    v_add_u32 v%d, 64, v%d" % (vSA, vSA))
    trace()
    e("    s_cmp_lt_u32 s%d, s%d" % (sNB, sLIM))
    e("    s_cbranch_scc1 L_k")
    e("    ds_write_b32 v%d, v%d" % (vMC, vM))
    e("    s_cmp_eq_u32 s%d, %d" % (sR, RND - 1))
    e("    s_cbranch_scc1 L_vstart")
    e("    s_cmp_lg_u32 s%d, 0" % sR)
    e("    s_cbranch_scc1 L_qok")
    e("    s_barrier")
    e("L_qok:")
    e("    v_add_u32 v%d, %d, v%d" % (vQA, ROWB, vQA))
    e("    s_add_u32 s%d, s%d, 1" % (sR, sR))
    e("    s_add_u32 s%d, s%d, %d" % (sHO, sHO, W * HEADB))
    for j in range(3):
        e("    ds_read_b128 v[%d:%d], v%d offset:%d" % (vQ + 4 * j, vQ + 4 * j + 3, vQA, QO + j * 128))
    e("    s_branch L_kround")
    e("L_vstart:")
    e("    s_sub_u32 s%d, s%d, %d" % (sNT, sN, LA))
    e("    s_mov_b32 s%d, 0" % sR)
    e("    s_sub_u32 s%d, s%d, %d" % (sHO, sHO, (RND - 1) * W * HEADB))
    e("L_vround:")
    set_round()
    e("    ds_read_b32 v%d, v%d" % (vM, vSA))
    e("    s_cmp_eq_u32 s%d, %d" % (sR, RND - 1))
    e("    s_cselect_b32 s%d, s%d, -1" % (sVB, sNT))
    e("    v_add_u32 v%d, 64, v%d" % (vSA, vSA))
    e("    s_waitcnt lgkmcnt(0)")
    e("    v_mul_f32 v%d, s%d, v%d" % (vMC, sC, vM))
    e("L_v:")
    e("    s_cmp_lt_u32 s%d, s%d" % (sN, sVB))
    e("    s_cbranch_scc1 L_vnb")
    e("    s_barrier")
    e("L_vnb:")
    e("    ds_read_b64 v[%d:%d], v%d" % (vS, vS + 1, vSA))
    e("    ds_read_b32 v%d, v%d offset:4" % (vNB, vLA))
    e("    s_add_u32 s%d, s%d, 1" % (sN, sN))
    e("    v_add_u32 v%d, 64, v%d" % (vSA, vSA))
    e("    v_add_u32 v%d, 4, v%d" % (vLA, vLA))
    e("    s_waitcnt lgkmcnt(0)")
    e("    v_readfirstlane_b32 s%d, v%d" % (sNB, vNB))
    e("    v_fma_f32 v%d, v%d, s%d, -v%d" % (vS, vS, sC, vMC))
    e("    v_fma_f32 v%d, v%d, s%d, -v%d" % (vS + 1, vS + 1, sC, vMC))
    e("    s_cmp_lt_u32 s%d, s%d" % (sNB, sLIM))
    e("    s_cbranch_scc0 L_vlast")
    next_off16(sNB, sHO)
    e("L_vgo:")
    e("    v_exp_f32 v%d, v%d" % (vS, vS))
    e("    v_exp_f32 v%d, v%d" % (vS + 1, vS + 1))
    e("    s_nop 0")
    e("    v_add_f32 v%d, v%d, v%d" % (vL, vL, vS))
    e("    v_add_f32 v%d, v%d, v%d" % (vL, vL, vS + 1))
    for jj in range(6): pv(jj, jj // 3)
    trace()
    e("    s_cmp_lt_u32 s%d, s%d" % (sNB, sLIM))
    e("    s_cbranch_scc1 L_v")
    e("    s_cmp_lg_u32 s%d, %d" % (sR, RND - 1))
    e("    s_cbranch_scc1 L_dump")
    e("    s_cmp_ge_u32 s%d, %d" % (sNB, TPH))
    e("    s_cbranch_scc1 L_dump")
    e("L_t:")
    e("    s_barrier")
    e("    ds_read_b32 v%d, v%d offset:4" % (vNB, vLA))
    e("    s_cmp_lt_u32 s%d, %d" % (sG, TPH))
    e("    s_cselect_b32 s%d, 0, 0xff800000" % sBIAS)
    e("    v_add_u32 v%d, 4, v%d" % (vLA, vLA))
    e("    s_waitcnt lgkmcnt(0)")
    e("    v_readfirstlane_b32 s%d, v%d" % (sNB, vNB))
    next_off8()
    for jj in range(3):
        e("    s_waitcnt vmcnt(5)")
        dots4(jj, (vS, vT), jj == 0)
        load(jj)
    e("    s_nop 1")
    e("    v_add_f32 v%d, v%d, v%d" % (vS, vS, vT))
    e("    s_nop 1")
    for pat in ("quad_perm:[1,0,3,2]", "quad_perm:[2,3,0,1]", "row_half_mirror"):
        e("    v_add_f32_dpp v%d, v%d, v%d %s row_mask:0xf bank_mask:0xf" % (vS, vS, vS, pat))
        if pat != "row_half_mirror": e("    s_nop 1")
    e("    v_add_f32 v%d, s%d, v%d" % (vS, sBIAS, vS))
    e("    v_max_f32 v%d, v%d, v%d" % (vM, vM, vS))
    e("    v_mov_b32 v%d, v%d" % (vA, vMC))
    e("    v_mul_f32 v%d, s%d, v%d" % (vMC, sC, vM))
    e("    v_sub_f32 v%d, v%d, v%d" % (vA, vA, vMC))
    e("    v_fma_f32 v%d, v%d, s%d, -v%d" % (vS, vS, sC, vMC))
    e("    v_exp_f32 v%d, v%d" % (vA, vA))
    e("    v_exp_f32 v%d, v%d" % (vS, vS))
    for i in range(12):
        e("    v_pk_mul_f32 v[%d:%d], v[%d:%d], v[%d:%d] op_sel:[0,1] op_sel_hi:[1,1]" %
          (vO + 2 * i, vO + 2 * i + 1, vO + 2 * i, vO + 2 * i + 1, vA - 1, vA))
    e("    v_fma_f32 v%d, v%d, v%d, v%d" % (vL, vL, vA, vS))
    for jj in range(3, 6): pv(jj, 0)
    trace()
    e("    s_cmp_lt_u32 s%d, %d" % (sNB, TPH))
    e("    s_cbranch_scc1 L_t")
    e("L_dump:")
    vZ = vT; vMX = vT + 3; t0 = vT + 4; vLX = vT + 5; t1 = vT + 6
    e("    v_max_f32_dpp v%d, v%d, v%d row_ror:8 row_mask:0xf bank_mask:0xf" % (vMX, vMC, vMC))
    e("    v_mov_b32 v%d, s%d" % (t1, sT3))
    for sw in ("v_permlane16_swap_b32", "v_permlane32_swap_b32"):
        e("    v_mov_b32 v%d, v%d" % (t0, vMX))
        e("    s_nop 1")
        e("    %s v%d, v%d" % (sw, vMX, t0))
        e("    s_nop 0")
        e("    v_max_f32 v%d, v%d, v%d" % (vMX, vMX, t0))
    e("    v_sub_f32 v%d, v%d, v%d" % (vA, vMC, vMX))
    e("    v_exp_f32 v%d, v%d" % (vA, vA))
    e("    s_xor_b32 s%d, s%d, %d" % (sT3, sT3, DLO ^ (DLO + NW * 4)) if (DLO % (2 * NW * 4) == 0) else "    s_nop 0")
    e("    v_mul_f32 v%d, v%d, v%d" % (vL, vL, vA))
    for i in range(12):
        e("    v_pk_mul_f32 v[%d:%d], v[%d:%d], v[%d:%d] op_sel:[0,1] op_sel_hi:[1,1]" %
          (vO + 2 * i, vO + 2 * i + 1, vO + 2 * i, vO + 2 * i + 1, vA - 1, vA))
    e("    v_add_f32_dpp v%d, v%d, v%d row_ror:8 row_mask:0xf bank_mask:0xf" % (vLX, vL, vL))
    for j in range(3):
        for ee in range(4):
            a = vO + j * 8 + ee
            e("    v_permlane32_swap_b32 v%d, v%d" % (a, a + 4))
    e("    v_mov_b32 v%d, v%d" % (t0, vLX))
    for j in range(3):
        for ee in range(4):
            a = vO + j * 8 + ee
            e("    v_add_f32 v%d, v%d, v%d" % (a, a, a + 4))
    e("    v_permlane16_swap_b32 v%d, v%d" % (vLX, t0))
    for j in range(3):
        for ee in range(2):
            a = vO + j * 8 + ee
            e("    v_permlane16_swap_b32 v%d, v%d" % (a, a + 2))
    e("    v_add_f32 v%d, v%d, v%d" % (vLX, vLX, t0))
    for j in range(3):
        for ee in range(2):
            a = vO + j * 8 + ee
            e("    v_add_f32 v%d, v%d, v%d" % (a, a, a + 2))
    e("    v_mov_b32 v%d, v%d" % (t0, vLX))
    e("    s_add_u32 s%d, s%d, 1" % (sR, sR))
    for j in range(3):
        a = vO + j * 8
        e("    v_add_f32_dpp v%d, v%d, v%d row_ror:8 row_mask:0xf bank_mask:0x3" % (vZ + j, a, a))
    e("    v_permlane32_swap_b32 v%d, v%d" % (vLX, t0))
    for j in range(3):
        a = vO + j * 8
        e("    v_add_f32_dpp v%d, v%d, v%d row_ror:8 row_mask:0xf bank_mask:0xc" % (vZ + j, a + 1, a + 1))
    e("    v_add_f32 v%d, v%d, v%d" % (vLX, vLX, t0))
    e("    ds_write_b128 v%d, v[%d:%d]" % (vDA, vZ, vZ + 3))
    e("    ds_write_b32 v%d, v%d" % (t1, vLX))
    e("    v_add_u32 v%d, s%d, v%d" % (vDA, sT2, vDA))
    e("    s_sub_u32 s%d, 0, s%d" % (sT2, sT2))
    e("    s_add_u32 s%d, s%d, %d" % (sHO, sHO, W * HEADB))
    e("    s_waitcnt lgkmcnt(0)")
    e("    s_barrier")
    e("    s_cmp_eq_u32 s%d, %d" % (sR, RND))
    e("    s_cbranch_scc1 L_fin")
    init_state()
    e("    s_branch L_vround")
    assert DLO % (2 * NW * 4) == 0
    e("L_klast:")
    e("    s_add_u32 s%d, s%d, %d" % (sTMP, sHO, W * HEADB))
    e("    s_cmp_lg_u32 s%d, %d" % (sR, RND - 1))
    e("    s_cbranch_scc1 L_klast2")
    e("    s_sub_u32 s%d, s%d, %d" % (sTMP, sHO, (RND - 1) * W * HEADB))
    e("    s_mov_b64 s[16:17], s[8:9]")
    e("    s_mov_b64 s[20:21], s[8:9]")
    e("L_klast2:")
    next_off16(sL0, sTMP)
    e("    s_branch L_kgo")
    e("L_vlast:")
    e("    s_cmp_eq_u32 s%d, %d" % (sR, RND - 1))
    e("    s_cbranch_scc1 L_vlast2")
    e("    s_add_u32 s%d, s%d, %d" % (sTMP, sHO, W * HEADB))
    next_off16(sL0, sTMP)
    e("    s_branch L_vgo")
    e("L_vlast2:")
    e("    s_mov_b64 s[16:17], s[6:7]")
    next_off8()
    e("    s_branch L_vgo")

    e("L_fin:")
    e("    s_cmp_ge_u32 s%d, %d" % (sIDX, RND))
    e("    s_cbranch_scc1 L_done")
    e("    s_cmp_ge_u32 s%d, %d" % (sWAVE, NWC))
    e("    s_cbranch_scc1 L_done")
    cA = vT; cB = vT + 1; cT = vT + 2; cB0 = vT + 3; cMX = vT + 4; cLX = vT + 5; cW = vT + 6; cLB = vT + 7
    cM = vQ; cACC = vQ + 4; cO = vQ + 8; cX = vX
    e("    v_mov_b32 v%d, %d" % (cT, NONO))
    e("    ds_read_b32 v%d, v%d" % (cT, cT))
    e("    s_mul_i32 s%d, s%d, %d" % (sHEAD, sIDX, W))
    e("    s_add_u32 s%d, s%d, s%d" % (sHEAD, sHEAD, sCOL))
    e("    v_lshlrev_b32 v%d, 4, v%d" % (cLB, vLANE))
    e("    s_lshl_b32 s%d, s%d, %d" % (sTMP, sHEAD, LOGP + 4))
    e("    s_add_u32 s%d, s%d, 0x%x" % (sTMP, sTMP, MLG))
    e("    v_min_u32 v%d, %d, v%d" % (cA, (PER - 1) * 16, cLB))
    e("    v_add_u32 v%d, s%d, v%d" % (cA, sTMP, cA))
    e("    s_lshl_b32 s%d, s%d, %d" % (sTMP, sHEAD, LOGP + 10))
    e("    s_mul_i32 s%d, s%d, %d" % (sCNT, sWAVE, RPW * 1024))
    e("    s_add_u32 s%d, s%d, s%d" % (sCNT, sCNT, sTMP))
    e("    v_add_u32 v%d, s%d, v%d" % (cB0, sCNT, cLB))
    e("    v_and_b32 v%d, 7, v%d" % (cO, vLANE))
    e("    v_lshlrev_b32 v%d, 4, v%d" % (cO, cO))
    e("    v_lshrrev_b32 v%d, 3, v%d" % (cW, vLANE))
    e("    v_lshl_add_u32 v%d, v%d, 1, v%d" % (cO, cW, cO))
    e("    s_mul_i32 s%d, s%d, %d" % (sTMP, sHEAD, ROWB))
    e("    v_add_u32 v%d, s%d, v%d" % (cO, sTMP, cO))
    e("    s_lshl_b32 s%d, s%d, 10" % (sTMP, sWAVE))
    e("    s_add_u32 s%d, s%d, %d" % (sTMP, sTMP, MRG))
    e("    v_add_u32 v%d, s%d, v%d" % (cW, sTMP, cLB))
    e("    s_mul_i32 s%d, s%d, %d" % (sCNT, sWAVE, RPW))
    e("    s_waitcnt vmcnt(0) lgkmcnt(0)")
    e("    v_readfirstlane_b32 s%d, v%d" % (sNON, cT))
    e("L_poll1:")
    e("    global_load_dwordx4 v[%d:%d], v%d, s[14:15] sc1" % (cM, cM + 3, cA))
    e("    s_waitcnt vmcnt(0)")
    e("    v_cmp_eq_u32 vcc, s%d, v%d" % (sNON, cM + 3))
    if PER < 64:
        e("    s_and_b32 vcc_hi, vcc_hi, 0" if PER == 32 else "    s_and_b64 vcc, vcc, 0x%x" % ((1 << PER) - 1))
    e("    s_bcnt1_i32_b64 s%d, vcc" % sTMP)
    e("    s_cmp_lt_u32 s%d, %d" % (sTMP, PER - THR))
    e("    s_cbranch_scc1 L_poll1")
    if STAMP: e("    s_memrealtime s[42:43]")
    e("L_poll2:")
    e("    v_mov_b32 v%d, v%d" % (cB, cB0))
    e("    global_load_dwordx4 v[%d:%d], v%d, s[14:15] sc1" % (cM, cM + 3, cA))
    for j in range(RPW):
        e("    global_load_dwordx4 v[%d:%d], v%d, s[14:15] offset:%d sc1" % (cX + 4 * j, cX + 4 * j + 3, cB, (j % 4) * 1024))
        if j % 4 == 3 and j + 1 < RPW:
            e("    v_add_u32 v%d, 4096, v%d" % (cB, cB))
    e("    s_waitcnt vmcnt(%d)" % RPW)
    e("    v_cmp_ne_u32 s[%d:%d], s%d, v%d" % (sBAD, sBAD + 1, sNON, cM + 3))
    e("    v_mov_b32 v%d, v%d" % (cMX, cM))
    e("    s_cmp_lg_u64 s[%d:%d], 0" % (sBAD, sBAD + 1))
    e("    s_cbranch_scc1 L_retry")
    if STAMP: e("    s_memrealtime s[44:45]")
    def allreduce(op, r, t):
        e("    s_nop 1")
        for pat in ("quad_perm:[1,0,3,2]", "quad_perm:[2,3,0,1]", "row_half_mirror", "row_ror:8"):
            e("    %s_dpp v%d, v%d, v%d %s row_mask:0xf bank_mask:0xf" % (op, r, r, r, pat))
            e("    s_nop 1")
        for sw in ("v_permlane16_swap_b32", "v_permlane32_swap_b32"):
            e("    v_mov_b32 v%d, v%d" % (t, r))
            e("    s_nop 1")
            e("    %s v%d, v%d" % (sw, r, t))
            e("    s_nop 0")
            e("    %s v%d, v%d, v%d" % (op, r, r, t))
    allreduce("v_max_f32", cMX, cT)
    e("    v_sub_f32 v%d, v%d, v%d" % (cM, cM, cMX))
    e("    v_exp_f32 v%d, v%d" % (cM, cM))
    if PER < 64:
        e("    v_cmp_gt_u32 vcc, %d, v%d" % (PER, vLANE))
    else:
        e("    s_nop 0")
    e("    v_mul_f32 v%d, v%d, v%d" % (cLX, cM, cM + 1))
    if PER < 64:
        e("    s_nop 0")
        e("    v_cndmask_b32 v%d, 0, v%d, vcc" % (cLX, cLX))
    allreduce("v_add_f32", cLX, cT)
    e("    v_rcp_f32 v%d, v%d" % (cLX, cLX))
    e("    v_mov_b32 v%d, 0" % cACC)
    e("    v_mov_b32 v%d, 0" % (cACC + 1))
    e("    v_mul_f32 v%d, v%d, v%d" % (cM, cM, cLX))
    e("    v_mov_b32 v%d, 0" % (cACC + 2))
    for j in range(RPW):
        e("    s_add_u32 s%d, s%d, %d" % (sTMP, sCNT, j))
        e("    v_readlane_b32 s%d, v%d, s%d" % (sW + j, cM, sTMP))
    e("    s_nop 0")
    if STAMP: e("    s_memrealtime s[46:47]")
    for j in range(RPW):
        if j % 4 == 0:
            e("    s_waitcnt vmcnt(%d)" % (RPW - 4 - j))
        sp = (sW + j) & ~1; hi = (sW + j) & 1
        e("    v_cmp_ne_u32 vcc, s%d, v%d" % (sNON, cX + 4 * j + 3))
        e("    v_pk_fma_f32 v[%d:%d], v[%d:%d], s[%d:%d], v[%d:%d] op_sel:[0,%d,0] op_sel_hi:[1,%d,1]" %
          (cACC, cACC + 1, cX + 4 * j, cX + 4 * j + 1, sp, sp + 1, cACC, cACC + 1, hi, hi))
        e("    v_fma_f32 v%d, v%d, s%d, v%d" % (cACC + 2, cX + 4 * j + 2, sW + j, cACC + 2))
        e("    s_or_b64 s[%d:%d], s[%d:%d], vcc" % (sBAD, sBAD + 1, sBAD, sBAD + 1))
    e("    s_cbranch_scc1 L_poll2")
    if STAMP: e("    s_memrealtime s[48:49]")
    if NWC > 1:
        e("    ds_write_b128 v%d, v[%d:%d]" % (cW, cACC, cACC + 3))
        e("    s_waitcnt lgkmcnt(0)")
        e("    s_barrier")
        e("    s_cmp_lg_u32 s%d, 0" % sWAVE)
        e("    s_cbranch_scc1 L_done")
        for w in range(1, NWC):
            e("    ds_read_b128 v[%d:%d], v%d offset:%d" % (cX + 4 * w, cX + 4 * w + 3, cW, w * 1024))
        for w in range(1, NWC):
            e("    s_waitcnt lgkmcnt(%d)" % (NWC - 1 - w))
            e("    v_pk_add_f32 v[%d:%d], v[%d:%d], v[%d:%d]" % (cACC, cACC + 1, cACC, cACC + 1, cX + 4 * w, cX + 4 * w + 1))
            e("    v_add_f32 v%d, v%d, v%d" % (cACC + 2, cACC + 2, cX + 4 * w + 2))
    e("    v_cvt_pk_bf16_f32 v%d, v%d, v%d" % (cACC, cACC, cACC + 1))
    e("    v_cvt_pk_bf16_f32 v%d, v%d, v%d" % (cACC + 2, cACC + 2, cACC + 2))
    e("    global_store_short v%d, v%d, s[10:11]" % (cO, cACC))
    e("    global_store_short_d16_hi v%d, v%d, s[10:11] offset:128" % (cO, cACC))
    e("    global_store_short v%d, v%d, s[10:11] offset:256" % (cO, cACC + 2))
    if HOLD:
        e("L_hold:")
        e("    s_memrealtime s[50:51]")
        e("    s_waitcnt lgkmcnt(0)")
        e("    s_sub_u32 s50, s50, s%d" % sT0)
        e("    s_cmp_lt_u32 s50, %d" % HOLD)
        e("    s_cbranch_scc1 L_hold")
    if STAMP:
        e("    s_waitcnt vmcnt(0)")
        e("    s_memrealtime s[50:51]")
        e("    s_lshl_b32 s%d, s2, 6" % sTMP)
        e("    s_add_u32 s%d, s%d, 0x1000000" % (sTMP, sTMP))
        e("    v_mov_b32 v%d, s%d" % (cT, sTMP))
        e("    s_waitcnt lgkmcnt(0)")
        e("    v_mov_b32 v%d, s50" % cACC)
        e("    v_mov_b32 v%d, s51" % (cACC + 1))
        e("    s_mov_b64 exec, 1")
        e("    global_store_dwordx2 v%d, v[%d:%d], s[14:15] offset:48" % (cT, cACC, cACC + 1))
        for i in range(4): e("    v_mov_b32 v%d, s%d" % (cX + i, 42 + 2 * i))
        e("    v_add_u32 v%d, 0x8000, v%d" % (cT, cT))
        e("    global_store_dwordx4 v%d, v[%d:%d], s[14:15]" % (cT, cX, cX + 3))
    e("    s_endpgm")
    e("L_retry:")
    e("    s_waitcnt vmcnt(0)")
    e("    s_branch L_poll2")

    e("L_service:")
    vAD = vT; vRA = vT + 1; vGA = vT + 2; vONE = vT + 3; vMX = vT + 4; vLX = vT + 5; t0 = vT + 6; t1 = vT + 7
    vR0 = vQ; vR1 = vQ + 1; vZERO = vQ + 2; vRL = vQ + 3; vCW = vQ + 4; vML = vQ + 5; vZ = vQ + 6; vG = vQ + 10; vDL = vQ + 14
    e("    v_lshlrev_b32 v%d, 4, v%d" % (vAD, vLANE))
    e("    v_mul_u32_u24 v%d, %d, v%d" % (t0, SST, vLANE))
    e("    v_add_u32 v%d, s%d, v%d" % (t0, sL0, t0))
    e("    v_lshlrev_b32 v%d, 2, v%d" % (t1, vLANE))
    e("    s_mov_b32 exec_lo, 0x%x" % (((1 << (SSF + 1)) - 1) & 0xffffffff))
    e("    s_mov_b32 exec_hi, 0x%x" % (((1 << (SSF + 1)) - 1) >> 32))
    e("    ds_write_b32 v%d, v%d offset:%d" % (t1, t0, LSO))
    e("    ds_write_b32 v%d, v%d offset:%d" % (t1, t0, LLO))
    e("    s_mov_b64 exec, -1")
    e("    s_mul_i32 s%d, s%d, %d" % (sTMP, sCOL, ROWB))
    e("    v_add_u32 v%d, s%d, v%d" % (vRA, sTMP, vAD))
    e("    v_mov_b32 v%d, 1" % vONE)
    e("    v_mov_b32 v%d, 0" % vZERO)
    e("    s_waitcnt lgkmcnt(0)")
    e("    s_barrier")
    e("    s_mov_b64 exec, 0xffffff")
    for r in range(1, RND):
        e("    v_add_u32 v%d, %d, v%d" % (vRA, W * ROWB, vRA))
        e("    global_load_dwordx4 v[%d:%d], v%d, s[4:5]" % (vX + 4 * r, vX + 4 * r + 3, vRA))
    e("    s_waitcnt vmcnt(0)")
    for r in range(1, RND):
        e("    ds_write_b128 v%d, v[%d:%d] offset:%d" % (vAD, vX + 4 * r, vX + 4 * r + 3, QO + r * ROWB))
    e("    s_mov_b64 exec, -1")
    e("    s_lshl_b32 s%d, s%d, %d" % (sTMP, sCOL, LOGP))
    e("    s_add_u32 s%d, s%d, s%d" % (sTMP, sTMP, sIDX))
    e("    s_lshl_b32 s%d, s%d, 10" % (sCNT, sTMP))
    e("    v_add_u32 v%d, s%d, v%d" % (vRA, sCNT, vAD))
    e("    s_lshl_b32 s%d, s%d, 4" % (sCNT, sTMP))
    e("    s_add_u32 s%d, s%d, 0x%x" % (sCNT, sCNT, MLG))
    e("    v_mul_u32_u24 v%d, %d, v%d" % (vGA, NWG * 16, vLANE))
    e("    v_add_u32 v%d, s%d, v%d" % (vGA, sCNT, vGA))
    e("    s_lshl_b32 s%d, s%d, 8" % (sTMP, sCOL))
    e("    s_add_u32 s%d, s%d, 0x%x" % (sTMP, sTMP, CTR_OFF))
    e("    v_mov_b32 v%d, s%d" % (vCW, sTMP))
    e("    s_mov_b32 s%d, 0" % sR)
    e("    s_mov_b32 s%d, %d" % (sT2, SLOTB))
    e("    v_add_u32 v%d, %d, v%d" % (vDA, DO, vAD))
    e("    v_mov_b32 v%d, %d" % (vDL, DLO))
    e("    v_add_u32 v%d, %d, v%d" % (vRL, RECO, vAD))
    e("    v_mov_b32 v%d, %d" % (vML, MLO))
    e("    v_mov_b32 v%d, 0" % (vG + 2))
    def elect(tag):
        e("    s_mov_b64 exec, 1")
        e("    global_atomic_add v%d, v%d, v%d, s[12:13] sc0" % (t0, vZERO, vONE))
        e("    s_memrealtime s[50:51]")
        e("    s_waitcnt vmcnt(0) lgkmcnt(0)")
        e("    v_readfirstlane_b32 s%d, v%d" % (sTMP, t0))
        e("    s_mov_b64 exec, -1")
        e("    s_cmp_lg_u32 s%d, 0" % sTMP)
        e("    s_cbranch_scc1 L_lost%s" % tag)
        e("    v_lshlrev_b32 v%d, 8, v%d" % (t0, vLANE))
        e("    v_add_u32 v%d, 0x%x, v%d" % (t0, CTR_OFF, t0))
        e("    s_or_b32 s50, s50, 1")
        e("    v_mov_b32 v%d, s50" % t1)
        e("    global_store_dword v%d, v%d, s[14:15] sc1" % (t0, vZERO))
        e("    s_waitcnt vmcnt(0)")
        e("    global_store_dword v%d, v%d, s[12:13] offset:64 sc1" % (vZERO, t1))
        e("L_lost%s:" % tag)
    e("    s_cmp_lg_u32 s2, 0")
    e("    s_cbranch_scc1 L_lostA")
    elect("A")
    e("    s_waitcnt lgkmcnt(0)")
    e("    s_barrier")
    e("    global_load_dword v%d, v%d, s[12:13] offset:64 sc1" % (t0, vZERO))
    e("    s_waitcnt vmcnt(0)")
    e("    v_readfirstlane_b32 s%d, v%d" % (sNON, t0))
    e("    s_cmp_lg_u32 s%d, 0" % sNON)
    e("    s_cbranch_scc1 L_ready")
    elect("B")
    e("L_spinf:")
    e("    global_load_dword v%d, v%d, s[12:13] offset:64 sc1" % (t0, vZERO))
    e("    s_waitcnt vmcnt(0)")
    e("    v_readfirstlane_b32 s%d, v%d" % (sNON, t0))
    e("    s_cmp_eq_u32 s%d, 0" % sNON)
    e("    s_cbranch_scc1 L_spinf")
    e("L_ready:")
    e("    v_mov_b32 v%d, s%d" % (vZ + 3, sNON))
    e("    v_mov_b32 v%d, s%d" % (vG + 3, sNON))
    e("    ds_write_b32 v%d, v%d offset:%d" % (vZERO, vZ + 3, NONO))
    e("    s_mov_b32 s%d, %d" % (sLIM, LIML))
    e("    s_mov_b32 s%d, %d" % (sBASE, SSL * SST))
    e("    v_mov_b32 v%d, %d" % (vLA, LLO + 4 * SSL))
    e("    s_mov_b32 s%d, %d" % (sCAP, CAP))
    e("L_seq:")
    e("    s_mov_b32 s%d, 0" % sM1)
    e("    s_mov_b64 exec, 1")
    e("    s_waitcnt vmcnt(0) lgkmcnt(0)")
    e("    s_barrier")
    e("    global_atomic_add v%d, v%d, v%d, s[14:15] sc0" % (vR0, vCW, vONE))
    e("L_sls:")
    for h, (rn, ro) in enumerate(((vR1, vR0), (vR0, vR1))):
        e("    s_waitcnt lgkmcnt(0)")
        e("    s_barrier")
        e("    s_cmp_ge_u32 s%d, s%d" % (sM1, sLIM))
        e("    s_cbranch_scc1 L_slsend")
        e("    s_sub_u32 s%d, s%d, 1" % (sCAP, sCAP))
        e("    s_cmp_gt_i32 s%d, 0" % sCAP)
        e("    s_cbranch_scc1 L_grab%d" % h)
        e("    v_mov_b32 v%d, %d" % (rn, TPH))
        e("    s_waitcnt vmcnt(0)")
        e("    s_branch L_got%d" % h)
        e("L_grab%d:" % h)
        e("    global_atomic_add v%d, v%d, v%d, s[14:15] sc0" % (rn, vCW, vONE))
        e("    s_waitcnt vmcnt(1)")
        e("L_got%d:" % h)
        e("    v_readfirstlane_b32 s%d, v%d" % (sM1, ro))
        e("    s_min_u32 s%d, s%d, %d" % (sM1, sM1, TPH))
        e("    s_mul_i32 s%d, s%d, %d" % (sM1, sM1, NW))
        e("    s_add_u32 s%d, s%d, s%d" % (sM1, sM1, sBASE))
        e("    v_mov_b32 v%d, s%d" % (t0, sM1))
        e("    ds_write_b32 v%d, v%d" % (vLA, t0))
        e("    v_add_u32 v%d, 4, v%d" % (vLA, vLA))
    e("    s_branch L_sls")
    e("L_slsend:")
    e("    s_mov_b64 exec, -1")
    e("    s_cmp_eq_u32 s%d, %d" % (sLIM, TPH))
    e("    s_cbranch_scc1 L_sdump")
    e("L_svround:")
    e("    s_cmp_lg_u32 s%d, %d" % (sR, RND - 1))
    e("    s_cbranch_scc1 L_sdump")
    e("    s_mov_b32 s%d, %d" % (sLIM, TPH))
    e("    s_mov_b32 s%d, %d" % (sBASE, 2 * LIML))
    e("    s_mov_b32 s%d, %d" % (sCAP, NUT + 1))
    e("    v_add_u32 v%d, %d, v%d" % (vCW, W * 256, vCW))
    e("    v_add_u32 v%d, -4, v%d" % (vLA, vLA))
    e("    s_branch L_seq")
    e("L_sdump:")
    e("    s_waitcnt lgkmcnt(0)")
    e("    s_barrier")
    if STAMP:
        e("    s_memrealtime s[%d:%d]" % (sT0 + 2, sT0 + 3))
    vY = vX + 4 * NW
    for w in range(NW):
        e("    ds_read_b128 v[%d:%d], v%d offset:%d" % (vX + 4 * w, vX + 4 * w + 3, vDA, w * 1024))
    for w in range(NW):
        e("    ds_read_b32 v%d, v%d offset:%d" % (vY + w, vDL, w * 4))
    e("    v_add_u32 v%d, s%d, v%d" % (vDA, sT2, vDA))
    e("    s_sub_u32 s%d, 0, s%d" % (sT2, sT2))
    e("    v_xor_b32 v%d, %d, v%d" % (vDL, DLO ^ (DLO + NW * 4), vDL))
    e("    s_add_u32 s%d, s%d, 1" % (sR, sR))
    e("    s_waitcnt lgkmcnt(%d)" % (0 if STAMP else NW))
    e("    v_max_f32 v%d, v%d, v%d" % (vG, vX + 3, vX + 7))
    for w in range(2, NW):
        e("    v_max_f32 v%d, v%d, v%d" % (vG, vG, vX + 4 * w + 3))
    for w in range(NW):
        e("    v_sub_f32 v%d, v%d, v%d" % (vX + 4 * w + 3, vX + 4 * w + 3, vG))
    for w in range(NW):
        e("    v_exp_f32 v%d, v%d" % (vX + 4 * w + 3, vX + 4 * w + 3))
    e("    s_waitcnt lgkmcnt(0)")
    for k in range(3):
        e("    v_mul_f32 v%d, v%d, v%d" % (vZ + k, vX + k, vX + 3))
    e("    v_mul_f32 v%d, v%d, v%d" % (vG + 1, vY, vX + 3))
    for w in range(1, NW):
        for k in range(3):
            e("    v_fma_f32 v%d, v%d, v%d, v%d" % (vZ + k, vX + 4 * w + k, vX + 4 * w + 3, vZ + k))
        e("    v_fma_f32 v%d, v%d, v%d, v%d" % (vG + 1, vY + w, vX + 4 * w + 3, vG + 1))
    e("    s_cmp_eq_u32 s%d, %d" % (sR, RND))
    e("    s_cbranch_scc1 L_final")
    e("    ds_write_b128 v%d, v[%d:%d]" % (vRL, vZ, vZ + 3))
    e("    ds_write_b128 v%d, v[%d:%d]" % (vML, vG, vG + 3))
    e("    v_add_u32 v%d, 1024, v%d" % (vRL, vRL))
    e("    v_add_u32 v%d, 16, v%d" % (vML, vML))
    e("    s_branch L_svround")
    e("L_final:")
    e("    v_add_u32 v%d, %d, v%d" % (t0, (RND - 1) * NWG * 1024, vRA))
    e("    global_store_dwordx4 v%d, v[%d:%d], s[14:15] sc1" % (t0, vZ, vZ + 3))
    e("    ds_write_b128 v%d, v[%d:%d]" % (vML, vG, vG + 3))
    e("    v_min_u32 v%d, %d, v%d" % (t1, (RND - 1) * 16, vAD))
    e("    ds_read_b128 v[%d:%d], v%d offset:%d" % (vX, vX + 3, t1, MLO))
    for r in range(RND - 1):
        e("    ds_read_b128 v[%d:%d], v%d offset:%d" % (vX + 4 + 4 * r, vX + 4 + 4 * r + 3, vAD, RECO + r * 1024))
    e("    s_mov_b64 exec, %d" % ((1 << RND) - 1))
    e("    s_waitcnt lgkmcnt(%d)" % (RND - 1))
    e("    global_store_dwordx4 v%d, v[%d:%d], s[14:15] sc1" % (vGA, vX, vX + 3))
    e("    s_mov_b64 exec, -1")
    for r in range(RND - 1):
        e("    s_waitcnt lgkmcnt(%d)" % (RND - 2 - r))
        e("    global_store_dwordx4 v%d, v[%d:%d], s[14:15] sc1" % (vRA, vX + 4 + 4 * r, vX + 4 + 4 * r + 3))
        if r + 2 < RND:
            e("    v_add_u32 v%d, %d, v%d" % (vRA, NWG * 1024, vRA))
    if STAMP:
        e("    s_memrealtime s[%d:%d]" % (sT0 + 4, sT0 + 5))
        e("    s_waitcnt vmcnt(0)")
        e("    s_memrealtime s[%d:%d]" % (sT0 + 6, sT0 + 7))
        e("    s_getreg_b32 s%d, hwreg(HW_REG_XCC_ID)" % (sT0 + 8))
        e("    s_getreg_b32 s%d, hwreg(HW_REG_HW_ID)" % (sT0 + 9))
        e("    s_waitcnt lgkmcnt(0)")
        for i in range(10):
            e("    v_mov_b32 v%d, s%d" % (vX + i, sT0 + i))
        e("    v_mov_b32 v%d, s%d" % (vX + 10, sT0 + 6))
        e("    v_mov_b32 v%d, s%d" % (vX + 11, sT0 + 7))
        e("    s_lshl_b32 s%d, s2, 6" % (sT0))
        e("    s_add_u32 s%d, s%d, 0x1000000" % (sT0, sT0))
        e("    v_mov_b32 v%d, s%d" % (t1, sT0))
        e("    s_mov_b64 exec, 1")
        e("    global_store_dwordx4 v%d, v[%d:%d], s[14:15]" % (t1, vX, vX + 3))
        e("    global_store_dwordx4 v%d, v[%d:%d], s[14:15] offset:16" % (t1, vX + 4, vX + 7))
        e("    global_store_dwordx4 v%d, v[%d:%d], s[14:15] offset:32" % (t1, vX + 8, vX + 11))
    e("L_done:")
    e("    s_endpgm")
    e('.section .rodata,"a"')
    e(".p2align 6")
    e(".amdhsa_kernel %s" % KNAME)
    e("  .amdhsa_next_free_vgpr %d" % NVGPR)
    e("  .amdhsa_next_free_sgpr %d" % NSGPR)
    e("  .amdhsa_accum_offset %d" % ((NVGPR + 3) // 4 * 4))
    e("  .amdhsa_group_segment_fixed_size 0")
    e("  .amdhsa_kernarg_size 48")
    e("  .amdhsa_user_sgpr_count 2")
    e("  .amdhsa_user_sgpr_kernarg_segment_ptr 1")
    e("  .amdhsa_system_sgpr_workgroup_id_x 1")
    e("  .amdhsa_float_denorm_mode_32 3")
    e(".end_amdhsa_kernel")
    return "\n".join(o) + "\n"

if __name__ == "__main__":
    ap = argparse.ArgumentParser()
    ap.add_argument("-o", default="standalone__mha_softmax__decode.s")
    for k, d in dict(W=8, NW=4, SSL=6, TP=384, CAP=14, THR=3, NWC=4, STAMP=0, TRACE=0, HOLD=0).items():
        ap.add_argument("--" + k, type=int, default=d)
    ap.add_argument("--POL", default="nt")
    a = vars(ap.parse_args())
    out = a.pop("o")
    open(out, "w").write(gen(**a))
    print("wrote", out)
```

```python
import math, struct, sys, argparse
H = 32; SK = 32768; D = 192
ROWB = D * 2
HEADB = SK * ROWB
NWG = 256
TB = 8 * ROWB
TPH = SK // 8

def f32hex(x):
    return "0x%08x" % struct.unpack("<I", struct.pack("<f", x))[0]

HEADER = """; Kernarg layout for this problem (48 bytes, ptrs only, base s[0:1]):
"""

def gen(W=4, NW=4, SSL=4, TP=512, CAP=8, THR=3, NWC=4, LOOK=3, SLP=4, S=4, KW="545454", VW="555555", TW="555555", POL="nt", STAMP=0, TRACE=0, HOLD=0, HMODE=0, SPROBE=0, LIN=0, EARLY=1, PH=0,
        KNAME="standalone__mha_softmax__decode_kernel"):
    o = []
    e = o.append
    PER = NWG // W; RND = H // W
    LOGP = int(math.log2(PER))
    TB2 = 2 * TB; TPH2 = SK // 16
    TOTB = H * HEADB
    SST = PER * NW
    SSF = TPH2 // SST
    LA = 3
    LIML = TPH2 - TP
    assert SSF * SST == TPH2 and SSF < 63 and RND >= 2
    assert SSL * SST <= LIML and SSL >= 2
    assert CAP * (PER // S) >= -(-(LIML - SSL * SST) // (NW * S)), "cap too small to cover the dynamic units"
    NUT = -(-(2 * TP) // (NW * S))
    RPW = PER // NWC
    assert NW >= NWC and PER <= 64 and RPW % 4 == 0 and 2 * W * S <= 64 and PER // 8 >= S
    pol = (" " + POL) if POL else ""
    C = (D ** -0.5) * math.log2(math.e)
    QO = 0
    NONO = RND * ROWB
    MLO = (NONO + 16 + 15) // 16 * 16
    LSO = MLO + RND * 16
    LLO = LSO + (SSF + 2) * 4
    LLN = max(SSL + CAP + 1, SSF + 1)
    TLO = LLO + LLN * 4
    TLN = NUT + 1
    PO = (TLO + TLN * 4 + 15) // 16 * 16
    assert NW == 4
    DLO = (PO + 16 + 63) // 64 * 64
    DO = (DLO + 2 * NW * 4 + 1023) // 1024 * 1024
    SLOTB = NW * 1024
    RECO = DO + 2 * SLOTB
    SCO = RECO + (RND - 1) * 1024
    SCR = (SSF + 1) * 64
    SCW = (RND - 1) * SCR + (SSL + CAP + 1) * 64
    LDS = SCO + NW * SCW
    MRG = DO + (RND & 1) * SLOTB
    assert LDS <= 64 * 1024 and NWC * 1024 <= SLOTB
    CTR_OFF = 0x800000
    MLG = 0x400000
    OOB = 0xF0000000
    SPIN = 0x100000

    vLANE = 0; vOFF = 1; vM = 2; vNB = 3; vA = 3; vS = 4
    vT = 6; vQ = 14; vO = 28; vMC = 52; vL = 53
    vDA = 54; vQA = 55; vTR = 56; vSA = 57; vLA = 58; vS0 = 59; vPA = 26; vP = 27
    vB = 60; vX = 60
    NVGPR = max(84, vX + 5 * NW + 1 + 4 * RND, vX + 4 * RND + 4, vX + 4 * RPW)
    sCOL = 24; sIDX = 25; sWAVE = 26; sMASK = 27; sC = 28; sCNT = 29; sR = 30; sTMP = 31
    sOFF = 32; sHO = 33; sG = 34; sBIAS = 35; sNB = 36; sHEAD = 37; sT2 = 38; sNON = 39
    sT0 = 40
    sM1 = 53; sN = 54; sNT = 55; sL0 = 56; sOFB = 57; sLIM = 58; sNEED = 59; sBASE = 60; sP = 61; sCAP = 62; sT3 = 63
    sW = 64
    sBAD = sW + RPW + (RPW & 1)
    NSGPR = sBAD + 2

    e(HEADER + "; @launch grid=(%d,1,1) block=(%d,1,1) lds=%d" % (NWG, (NW + 1) * 64, LDS))
    if TRACE: e("; UNITBYTES=%d" % TB2)
    e('.amdgcn_target "amdgcn-amd-amdhsa--gfx950"')
    e(".text")
    e(".globl %s" % KNAME)
    e(".p2align 8")
    e(".type %s,@function" % KNAME)
    e("%s:" % KNAME)
    e("    s_cmp_ge_u32 s2, %d" % NWG)
    e("    s_cbranch_scc1 L_done")
    e("    s_load_dwordx4 s[4:7], s[0:1], 0")
    e("    s_load_dwordx4 s[8:11], s[0:1], 16")
    e("    s_load_dwordx4 s[12:15], s[0:1], 32")
    if STAMP or HOLD or SPROBE or PH:
        e("    s_memrealtime s[%d:%d]" % (sT0, sT0 + 1))
    e("    v_lshrrev_b32 v%d, 6, v0" % vA)
    e("    v_and_b32 v%d, 63, v0" % vLANE)
    e("    v_readfirstlane_b32 s%d, v%d" % (sWAVE, vA))
    e("    s_lshr_b32 s%d, s2, %d" % (sCOL, LOGP))
    e("    s_and_b32 s%d, s2, %d" % (sIDX, PER - 1))
    e("    s_mul_i32 s%d, s%d, %d" % (sL0, sIDX, NW))
    e("    s_cmp_eq_u32 s%d, %d" % (sWAVE, NW))
    e("    s_cbranch_scc1 L_service")
    e("    v_lshrrev_b32 v%d, 3, v%d" % (vS0, vLANE))
    e("    v_and_b32 v%d, 7, v%d" % (vQA, vLANE))
    e("    v_lshlrev_b32 v%d, 4, v%d" % (vQA, vQA))
    e("    v_mul_u32_u24 v%d, %d, v%d" % (vT, ROWB, vS0))
    e("    v_add_u32 v%d, v%d, v%d" % (vOFF, vT, vQA))
    if LIN: e("    v_lshlrev_b32 v%d, 4, v%d" % (vOFF, vLANE))
    e("    s_mov_b32 s18, %d" % TOTB)
    e("    s_mov_b32 s19, 0x00020000")
    e("    s_mov_b32 s22, %d" % TOTB)
    e("    s_mov_b32 s23, 0x00020000")
    e("    s_mul_i32 s%d, s%d, %d" % (sHO, sCOL, HEADB))
    e("    s_add_u32 s%d, s%d, s%d" % (sG, sL0, sWAVE))
    e("    s_mul_i32 s%d, s%d, %d" % (sOFF, sG, TB2))
    e("    s_add_u32 s%d, s%d, s%d" % (sOFF, sOFF, sHO))
    e("    s_add_u32 s%d, s%d, %d" % (sOFB, sOFF, TB))
    e("    s_mul_i32 s%d, s%d, %d" % (sCNT, sCOL, ROWB))
    e("    v_add_u32 v%d, s%d, v%d" % (vT + 1, sCNT, vQA))
    e("    s_waitcnt lgkmcnt(0)")
    if SPROBE: e("    s_memrealtime s[42:43]")
    for j in range(3):
        e("    global_load_dwordx4 v[%d:%d], v%d, s[4:5] offset:%d" % (vQ + 4 * j, vQ + 4 * j + 3, vT + 1, j * 128))
    e("    s_and_b32 s7, s7, 0xffff")
    e("    s_and_b32 s9, s9, 0xffff")
    e("    s_mov_b64 s[16:17], s[6:7]")
    e("    s_mov_b64 s[20:21], s[6:7]")
    def load(j):
        e("    buffer_load_dwordx4 v[%d:%d], v%d, s[%s], s%d offen offset:%d%s" %
          (vB + 4 * j, vB + 4 * j + 3, vOFF, "16:19" if j < 3 else "20:23", sOFF if j < 3 else sOFB, (j % 3) * (1024 if LIN else 128), pol))
    for j in range(6): load(j)
    if TRACE:
        e("    s_mul_i32 s52, s2, %d" % (NW + 1))
        e("    s_add_u32 s52, s52, s%d" % sWAVE)
        e("    s_lshl_b32 s52, s52, 10")
        e("    s_add_u32 s52, s52, 0x1100000")
        e("    v_mov_b32 v%d, s52" % vTR)
    e("    s_mov_b32 s%d, 0xffff0000" % sMASK)
    e("    s_mov_b32 s%d, %s" % (sC, f32hex(C)))
    e("    s_mov_b32 s%d, 0" % sR)
    e("    v_mov_b32 v%d, 0" % vP)
    e("    s_lshl_b32 s%d, s%d, 2" % (sTMP, sWAVE))
    e("    s_add_u32 s%d, s%d, %d" % (sTMP, sTMP, PO))
    e("    v_mov_b32 v%d, s%d" % (vPA, sTMP))
    e("    s_mov_b32 s%d, %d" % (sT2, SLOTB))
    e("    s_lshl_b32 s%d, s%d, 10" % (sTMP, sWAVE))
    e("    s_add_u32 s%d, s%d, %d" % (sTMP, sTMP, DO))
    e("    v_lshlrev_b32 v%d, 4, v%d" % (vDA, vLANE))
    e("    v_add_u32 v%d, s%d, v%d" % (vDA, sTMP, vDA))
    e("    s_lshl_b32 s%d, s%d, 2" % (sT3, sWAVE))
    e("    s_add_u32 s%d, s%d, %d" % (sT3, sT3, DLO))
    e("    s_mul_i32 s%d, s%d, %d" % (sTMP, sWAVE, SCW))
    e("    s_add_u32 s%d, s%d, %d" % (sTMP, sTMP, SCO))
    e("    v_lshlrev_b32 v%d, 3, v%d" % (vS0, vS0))
    e("    v_add_u32 v%d, s%d, v%d" % (vS0, sTMP, vS0))
    def init_state():
        e("    v_mov_b32 v%d, 0" % vL)
        for i in range(24): e("    v_mov_b32 v%d, 0" % (vO + i))
    init_state()
    if SPROBE:
        e("    s_memrealtime s[44:45]")
        e("    s_waitcnt vmcnt(5)")
        e("    s_memrealtime s[46:47]")
    e("    s_barrier")
    if SPROBE: e("    s_waitcnt vmcnt(0)")
    if SPROBE:
        e("    s_memrealtime s[48:49]")
        e("    s_mul_i32 s52, s2, %d" % (NW + 1))
        e("    s_add_u32 s52, s52, s%d" % sWAVE)
        e("    s_lshl_b32 s52, s52, 5")
        e("    s_add_u32 s52, s52, 0x1100000")
        e("    v_mov_b32 v%d, s52" % vTR)
        e("    s_waitcnt lgkmcnt(0)")
        for i in range(5): e("    v_mov_b32 v%d, s%d" % (vT + i, 40 + 2 * i))
        e("    s_mov_b64 exec, 1")
        e("    global_store_dwordx4 v%d, v[%d:%d], s[14:15]" % (vTR, vT, vT + 3))
        e("    global_store_dword v%d, v%d, s[14:15] offset:16" % (vTR, vT + 4))
        e("    s_mov_b64 exec, -1")
    def trace():
        if TRACE:
            e("    s_memrealtime s[50:51]")
            e("    s_waitcnt lgkmcnt(0)")
            e("    v_mov_b32 v%d, s50" % vT)
            e("    s_mov_b64 exec, 1")
            e("    global_store_dword v%d, v%d, s[14:15]" % (vTR, vT))
            e("    s_mov_b64 exec, -1")
            e("    v_add_u32 v%d, 4, v%d" % (vTR, vTR))
    def next_off16(sbase, sh):
        e("    s_add_u32 s%d, s%d, s%d" % (sG, sbase, sWAVE))
        e("    s_mul_i32 s%d, s%d, %d" % (sOFF, sG, TB2))
        e("    s_add_u32 s%d, s%d, s%d" % (sOFF, sOFF, sh))
        e("    s_cmp_lt_u32 s%d, s%d" % (sG, sLIM))
        e("    s_cselect_b32 s%d, s%d, 0x%x" % (sOFF, sOFF, OOB))
        e("    s_add_u32 s%d, s%d, %d" % (sOFB, sOFF, TB))
    def next_off8():
        e("    s_add_u32 s%d, s%d, s%d" % (sG, sNB, sWAVE))
        e("    s_mul_i32 s%d, s%d, %d" % (sOFF, sG, TB))
        e("    s_add_u32 s%d, s%d, s%d" % (sOFF, sOFF, sHO))
        e("    s_cmp_lt_u32 s%d, %d" % (sG, TPH))
        e("    s_cselect_b32 s%d, s%d, 0x%x" % (sOFF, sOFF, OOB))
        e("    s_mov_b32 s%d, s%d" % (sOFB, sOFF))
    def dots4(jj, accs, first):
        j = jj % 3
        for i in range(4):
            acc = accs[i % 2]
            if first and i < 2:
                e("    v_dot2_f32_bf16 v%d, v%d, v%d, 0" % (acc, vB + 4 * jj + i, vQ + 4 * j + i))
            else:
                e("    v_dot2_f32_bf16 v%d, v%d, v%d, v%d" % (acc, vB + 4 * jj + i, vQ + 4 * j + i, acc))
    def pv(jj, r, pat):
        j = jj % 3
        e("    s_waitcnt vmcnt(%s)" % pat[jj])
        for i in range(4):
            e("    v_lshlrev_b32 v%d, 16, v%d" % (vT + 2 * i, vB + 4 * jj + i))
            e("    v_and_b32 v%d, s%d, v%d" % (vT + 2 * i + 1, sMASK, vB + 4 * jj + i))
        load(jj)
        for i in range(4):
            oo = vO + j * 8 + 2 * i
            e("    v_pk_fma_f32 v[%d:%d], v[%d:%d], v[%d:%d], v[%d:%d] op_sel:[0,%d,0] op_sel_hi:[1,%d,1]" %
              (oo, oo + 1, vT + 2 * i, vT + 2 * i + 1, vS, vS + 1, oo, oo + 1, r, r))
    def set_round():
        e("    s_cmp_eq_u32 s%d, %d" % (sR, RND - 1))
        e("    s_cselect_b32 s%d, %d, 0" % (sLIM, TP))
        e("    s_cselect_b32 s%d, %d, 0" % (sTMP, LLO - LSO))
        e("    s_sub_u32 s%d, %d, s%d" % (sLIM, TPH2, sLIM))
        e("    s_add_u32 s%d, s%d, %d" % (sTMP, sTMP, LSO))
        e("    v_mov_b32 v%d, s%d" % (vLA, sTMP))
        e("    s_mul_i32 s%d, s%d, %d" % (sTMP, sR, SCR))
        e("    v_add_u32 v%d, s%d, v%d" % (vSA, sTMP, vS0))
    def progress():
        e("    ds_write_b32 v%d, v%d" % (vPA, vP))
        e("    v_add_u32 v%d, 1, v%d" % (vP, vP))
    def waitent(name):
        e("L_%sw:" % name)
        e("    s_mov_b32 s%d, 0x%x" % (sN, SPIN))
        e("L_%sw1:" % name)
        e("    ds_read_b32 v%d, v%d" % (vNB, vLA))
        e("    s_sub_u32 s%d, s%d, 1" % (sN, sN))
        e("    s_cbranch_scc1 L_%sok" % name)
        e("    s_waitcnt lgkmcnt(0)")
        e("    v_readfirstlane_b32 s%d, v%d" % (sNB, vNB))
        e("    s_cmp_eq_u32 s%d, -1" % sNB)
        e("    s_cbranch_scc1 L_%sw1" % name)
        e("    s_branch L_%sok" % name)
    e("L_kround:")
    set_round()
    e("    v_mov_b32 v%d, 0xff7fffff" % vM)
    e("    v_mov_b32 v%d, v%d" % (vMC, vSA))
    e("    v_add_u32 v%d, 64, v%d" % (vSA, vSA))
    e("L_k:")
    e("    ds_read_b32 v%d, v%d offset:4" % (vNB, vLA))
    progress()
    e("    s_cmp_lt_u32 s%d, s%d" % (sG, sLIM))
    e("    s_cselect_b32 s%d, 0, 0xff800000" % sBIAS)
    e("    v_add_u32 v%d, 4, v%d" % (vLA, vLA))
    e("    s_waitcnt lgkmcnt(1)")
    e("    v_readfirstlane_b32 s%d, v%d" % (sNB, vNB))
    e("    s_cmp_eq_u32 s%d, -1" % sNB)
    e("    s_cbranch_scc1 L_kw")
    e("L_kok:")
    e("    s_cmp_lt_u32 s%d, s%d" % (sNB, sLIM))
    e("    s_cbranch_scc0 L_klast")
    next_off16(sNB, sHO)
    e("L_kgo:")
    for jj in range(6):
        r = jj // 3
        e("    s_waitcnt vmcnt(%s)" % KW[jj])
        dots4(jj, (vS + r, vT + r), jj % 3 == 0)
        load(jj)
    e("    v_add_f32 v%d, v%d, v%d" % (vS, vS, vT))
    e("    s_nop 0")
    e("    v_add_f32 v%d, v%d, v%d" % (vS + 1, vS + 1, vT + 1))
    e("    s_nop 0")
    for pat in ("quad_perm:[1,0,3,2]", "quad_perm:[2,3,0,1]", "row_half_mirror"):
        for r in range(2):
            e("    v_add_f32_dpp v%d, v%d, v%d %s row_mask:0xf bank_mask:0xf" % (vS + r, vS + r, vS + r, pat))
        if pat != "row_half_mirror": e("    s_nop 0")
    e("    v_add_f32 v%d, s%d, v%d" % (vS, sBIAS, vS))
    e("    v_add_f32 v%d, s%d, v%d" % (vS + 1, sBIAS, vS + 1))
    e("    v_max3_f32 v%d, v%d, v%d, v%d" % (vM, vM, vS, vS + 1))
    e("    ds_write_b64 v%d, v[%d:%d]" % (vSA, vS, vS + 1))
    e("    v_add_u32 v%d, 64, v%d" % (vSA, vSA))
    trace()
    e("    s_cmp_lt_u32 s%d, s%d" % (sNB, sLIM))
    e("    s_cbranch_scc1 L_k")
    e("    ds_write_b32 v%d, v%d" % (vMC, vM))
    e("    s_cmp_eq_u32 s%d, %d" % (sR, RND - 1))
    e("    s_cbranch_scc1 L_vstart")
    e("    s_cmp_lg_u32 s%d, 0" % sR)
    e("    s_cbranch_scc1 L_qok")
    e("    s_barrier")
    e("L_qok:")
    e("    v_add_u32 v%d, %d, v%d" % (vQA, ROWB, vQA))
    e("    s_add_u32 s%d, s%d, 1" % (sR, sR))
    e("    s_add_u32 s%d, s%d, %d" % (sHO, sHO, W * HEADB))
    for j in range(3):
        e("    ds_read_b128 v[%d:%d], v%d offset:%d" % (vQ + 4 * j, vQ + 4 * j + 3, vQA, QO + j * 128))
    e("    s_branch L_kround")
    e("L_vstart:")
    e("    s_mov_b32 s%d, 0" % sR)
    e("    s_sub_u32 s%d, s%d, %d" % (sHO, sHO, (RND - 1) * W * HEADB))
    e("L_vround:")
    set_round()
    e("    ds_read_b32 v%d, v%d" % (vM, vSA))
    e("    v_add_u32 v%d, 64, v%d" % (vSA, vSA))
    e("    s_waitcnt lgkmcnt(0)")
    e("    v_mul_f32 v%d, s%d, v%d" % (vMC, sC, vM))
    e("L_v:")
    e("    ds_read_b64 v[%d:%d], v%d" % (vS, vS + 1, vSA))
    e("    ds_read_b32 v%d, v%d offset:4" % (vNB, vLA))
    progress()
    e("    v_add_u32 v%d, 64, v%d" % (vSA, vSA))
    e("    v_add_u32 v%d, 4, v%d" % (vLA, vLA))
    e("    s_waitcnt lgkmcnt(1)")
    e("    v_readfirstlane_b32 s%d, v%d" % (sNB, vNB))
    e("    v_fma_f32 v%d, v%d, s%d, -v%d" % (vS, vS, sC, vMC))
    e("    v_fma_f32 v%d, v%d, s%d, -v%d" % (vS + 1, vS + 1, sC, vMC))
    e("    s_cmp_lt_u32 s%d, s%d" % (sNB, sLIM))
    e("    s_cbranch_scc0 L_vlast")
    next_off16(sNB, sHO)
    e("L_vgo:")
    e("    v_exp_f32 v%d, v%d" % (vS, vS))
    e("    v_exp_f32 v%d, v%d" % (vS + 1, vS + 1))
    e("    s_nop 0")
    e("    v_add_f32 v%d, v%d, v%d" % (vL, vL, vS))
    e("    v_add_f32 v%d, v%d, v%d" % (vL, vL, vS + 1))
    for jj in range(6): pv(jj, jj // 3, VW)
    trace()
    e("    s_cmp_lt_u32 s%d, s%d" % (sNB, sLIM))
    e("    s_cbranch_scc1 L_v")
    e("    s_cmp_lg_u32 s%d, %d" % (sR, RND - 1))
    e("    s_cbranch_scc1 L_dump")
    e("    s_cmp_ge_u32 s%d, %d" % (sNB, TPH))
    e("    s_cbranch_scc1 L_dump")
    e("L_t:")
    e("    ds_read_b32 v%d, v%d offset:4" % (vNB, vLA))
    progress()
    e("    s_cmp_lt_u32 s%d, %d" % (sG, TPH))
    e("    s_cselect_b32 s%d, 0, 0xff800000" % sBIAS)
    e("    v_add_u32 v%d, 4, v%d" % (vLA, vLA))
    e("    s_waitcnt lgkmcnt(1)")
    e("    v_readfirstlane_b32 s%d, v%d" % (sNB, vNB))
    e("    s_cmp_eq_u32 s%d, -1" % sNB)
    e("    s_cbranch_scc1 L_tw")
    e("L_tok:")
    next_off8()
    for jj in range(3):
        e("    s_waitcnt vmcnt(%s)" % TW[jj])
        dots4(jj, (vS, vT), jj == 0)
        load(jj)
    e("    s_nop 1")
    e("    v_add_f32 v%d, v%d, v%d" % (vS, vS, vT))
    e("    s_nop 1")
    for pat in ("quad_perm:[1,0,3,2]", "quad_perm:[2,3,0,1]", "row_half_mirror"):
        e("    v_add_f32_dpp v%d, v%d, v%d %s row_mask:0xf bank_mask:0xf" % (vS, vS, vS, pat))
        if pat != "row_half_mirror": e("    s_nop 1")
    e("    v_add_f32 v%d, s%d, v%d" % (vS, sBIAS, vS))
    e("    v_max_f32 v%d, v%d, v%d" % (vM, vM, vS))
    e("    v_mov_b32 v%d, v%d" % (vA, vMC))
    e("    v_mul_f32 v%d, s%d, v%d" % (vMC, sC, vM))
    e("    v_sub_f32 v%d, v%d, v%d" % (vA, vA, vMC))
    e("    v_fma_f32 v%d, v%d, s%d, -v%d" % (vS, vS, sC, vMC))
    e("    v_exp_f32 v%d, v%d" % (vA, vA))
    e("    v_exp_f32 v%d, v%d" % (vS, vS))
    for i in range(12):
        e("    v_pk_mul_f32 v[%d:%d], v[%d:%d], v[%d:%d] op_sel:[0,1] op_sel_hi:[1,1]" %
          (vO + 2 * i, vO + 2 * i + 1, vO + 2 * i, vO + 2 * i + 1, vA - 1, vA))
    e("    v_fma_f32 v%d, v%d, v%d, v%d" % (vL, vL, vA, vS))
    for jj in range(3, 6): pv(jj, 0, TW)
    trace()
    e("    s_cmp_lt_u32 s%d, %d" % (sNB, TPH))
    e("    s_cbranch_scc1 L_t")
    e("L_dump:")
    vZ = vT; vMX = vT + 3; t0 = vT + 4; vLX = vT + 5; t1 = vT + 6
    e("    v_max_f32_dpp v%d, v%d, v%d row_ror:8 row_mask:0xf bank_mask:0xf" % (vMX, vMC, vMC))
    e("    v_mov_b32 v%d, s%d" % (t1, sT3))
    for sw in ("v_permlane16_swap_b32", "v_permlane32_swap_b32"):
        e("    v_mov_b32 v%d, v%d" % (t0, vMX))
        e("    s_nop 1")
        e("    %s v%d, v%d" % (sw, vMX, t0))
        e("    s_nop 0")
        e("    v_max_f32 v%d, v%d, v%d" % (vMX, vMX, t0))
    e("    v_sub_f32 v%d, v%d, v%d" % (vA, vMC, vMX))
    e("    v_exp_f32 v%d, v%d" % (vA, vA))
    e("    s_xor_b32 s%d, s%d, %d" % (sT3, sT3, DLO ^ (DLO + NW * 4)) if (DLO % (2 * NW * 4) == 0) else "    s_nop 0")
    e("    v_mul_f32 v%d, v%d, v%d" % (vL, vL, vA))
    for i in range(12):
        e("    v_pk_mul_f32 v[%d:%d], v[%d:%d], v[%d:%d] op_sel:[0,1] op_sel_hi:[1,1]" %
          (vO + 2 * i, vO + 2 * i + 1, vO + 2 * i, vO + 2 * i + 1, vA - 1, vA))
    e("    v_add_f32_dpp v%d, v%d, v%d row_ror:8 row_mask:0xf bank_mask:0xf" % (vLX, vL, vL))
    for j in range(3):
        for ee in range(4):
            a = vO + j * 8 + ee
            e("    v_permlane32_swap_b32 v%d, v%d" % (a, a + 4))
    e("    v_mov_b32 v%d, v%d" % (t0, vLX))
    for j in range(3):
        for ee in range(4):
            a = vO + j * 8 + ee
            e("    v_add_f32 v%d, v%d, v%d" % (a, a, a + 4))
    e("    v_permlane16_swap_b32 v%d, v%d" % (vLX, t0))
    for j in range(3):
        for ee in range(2):
            a = vO + j * 8 + ee
            e("    v_permlane16_swap_b32 v%d, v%d" % (a, a + 2))
    e("    v_add_f32 v%d, v%d, v%d" % (vLX, vLX, t0))
    for j in range(3):
        for ee in range(2):
            a = vO + j * 8 + ee
            e("    v_add_f32 v%d, v%d, v%d" % (a, a, a + 2))
    e("    v_mov_b32 v%d, v%d" % (t0, vLX))
    e("    s_add_u32 s%d, s%d, 1" % (sR, sR))
    for j in range(3):
        a = vO + j * 8
        e("    v_add_f32_dpp v%d, v%d, v%d row_ror:8 row_mask:0xf bank_mask:0x3" % (vZ + j, a, a))
    e("    v_permlane32_swap_b32 v%d, v%d" % (vLX, t0))
    for j in range(3):
        a = vO + j * 8
        e("    v_add_f32_dpp v%d, v%d, v%d row_ror:8 row_mask:0xf bank_mask:0xc" % (vZ + j, a + 1, a + 1))
    e("    v_add_f32 v%d, v%d, v%d" % (vLX, vLX, t0))
    e("    ds_write_b128 v%d, v[%d:%d]" % (vDA, vZ, vZ + 3))
    e("    ds_write_b32 v%d, v%d" % (t1, vLX))
    e("    v_add_u32 v%d, s%d, v%d" % (vDA, sT2, vDA))
    e("    s_sub_u32 s%d, 0, s%d" % (sT2, sT2))
    e("    s_add_u32 s%d, s%d, %d" % (sHO, sHO, W * HEADB))
    e("    s_waitcnt lgkmcnt(0)")
    e("    s_barrier")
    e("    s_cmp_eq_u32 s%d, %d" % (sR, RND))
    e("    s_cbranch_scc1 L_fin")
    init_state()
    e("    s_branch L_vround")
    assert DLO % (2 * NW * 4) == 0
    e("L_klast:")
    e("    s_add_u32 s%d, s%d, %d" % (sTMP, sHO, W * HEADB))
    e("    s_cmp_lg_u32 s%d, %d" % (sR, RND - 1))
    e("    s_cbranch_scc1 L_klast2")
    e("    s_sub_u32 s%d, s%d, %d" % (sTMP, sHO, (RND - 1) * W * HEADB))
    e("    s_mov_b64 s[16:17], s[8:9]")
    e("    s_mov_b64 s[20:21], s[8:9]")
    e("L_klast2:")
    next_off16(sL0, sTMP)
    e("    s_branch L_kgo")
    e("L_vlast:")
    e("    s_cmp_eq_u32 s%d, %d" % (sR, RND - 1))
    e("    s_cbranch_scc1 L_vlast2")
    e("    s_add_u32 s%d, s%d, %d" % (sTMP, sHO, W * HEADB))
    next_off16(sL0, sTMP)
    e("    s_branch L_vgo")
    e("L_vlast2:")
    e("    s_mov_b64 s[16:17], s[6:7]")
    e("    v_mov_b32 v%d, %d" % (vLA, TLO))
    e("    s_mov_b32 s%d, -1" % sNB)
    waitent("z")
    e("L_zok:")
    next_off8()
    e("    s_branch L_vgo")
    waitent("k")
    waitent("t")

    e("L_fin:")
    e("    s_cmp_ge_u32 s%d, %d" % (sIDX, RND))
    e("    s_cbranch_scc1 L_done")
    e("    s_cmp_ge_u32 s%d, %d" % (sWAVE, NWC))
    e("    s_cbranch_scc1 L_done")
    cA = vT; cB = vT + 1; cT = vT + 2; cB0 = vT + 3; cMX = vT + 4; cLX = vT + 5; cW = vT + 6; cLB = vT + 7
    cM = vQ; cACC = vQ + 4; cO = vQ + 8; cX = vX
    e("    v_mov_b32 v%d, %d" % (cT, NONO))
    e("    ds_read_b32 v%d, v%d" % (cT, cT))
    e("    s_mul_i32 s%d, s%d, %d" % (sHEAD, sIDX, W))
    e("    s_add_u32 s%d, s%d, s%d" % (sHEAD, sHEAD, sCOL))
    e("    v_lshlrev_b32 v%d, 4, v%d" % (cLB, vLANE))
    e("    s_lshl_b32 s%d, s%d, %d" % (sTMP, sHEAD, LOGP + 4))
    e("    s_add_u32 s%d, s%d, 0x%x" % (sTMP, sTMP, MLG))
    e("    s_mul_i32 s%d, s%d, %d" % (sCNT, sWAVE, RPW * 16))
    e("    v_add_u32 v%d, s%d, v%d" % (cA, sCNT, cLB))
    e("    v_and_b32 v%d, %d, v%d" % (cA, PER * 16 - 1, cA))
    e("    v_add_u32 v%d, s%d, v%d" % (cA, sTMP, cA))
    e("    s_lshl_b32 s%d, s%d, %d" % (sTMP, sHEAD, LOGP + 10))
    e("    s_mul_i32 s%d, s%d, %d" % (sCNT, sWAVE, RPW * 1024))
    e("    s_add_u32 s%d, s%d, s%d" % (sCNT, sCNT, sTMP))
    e("    v_add_u32 v%d, s%d, v%d" % (cB0, sCNT, cLB))
    e("    v_and_b32 v%d, 7, v%d" % (cO, vLANE))
    e("    v_lshlrev_b32 v%d, 4, v%d" % (cO, cO))
    e("    v_lshrrev_b32 v%d, 3, v%d" % (cW, vLANE))
    e("    v_lshl_add_u32 v%d, v%d, 1, v%d" % (cO, cW, cO))
    e("    s_mul_i32 s%d, s%d, %d" % (sTMP, sHEAD, ROWB))
    e("    v_add_u32 v%d, s%d, v%d" % (cO, sTMP, cO))
    e("    s_lshl_b32 s%d, s%d, 10" % (sTMP, sWAVE))
    e("    s_add_u32 s%d, s%d, %d" % (sTMP, sTMP, MRG))
    e("    v_add_u32 v%d, s%d, v%d" % (cW, sTMP, cLB))
    e("    s_waitcnt vmcnt(0) lgkmcnt(0)")
    e("    v_readfirstlane_b32 s%d, v%d" % (sNON, cT))
    e("    s_mov_b32 s%d, 0x%x" % (sN, SPIN))
    e("L_poll1:")
    e("    s_sub_u32 s%d, s%d, 1" % (sN, sN))
    e("    s_cbranch_scc1 L_done")
    e("    global_load_dwordx4 v[%d:%d], v%d, s[14:15] sc1" % (cM, cM + 3, cA))
    e("    s_waitcnt vmcnt(0)")
    e("    v_cmp_eq_u32 vcc, s%d, v%d" % (sNON, cM + 3))
    if PER < 64:
        e("    s_and_b32 vcc_hi, vcc_hi, 0" if PER == 32 else "    s_and_b64 vcc, vcc, 0x%x" % ((1 << PER) - 1))
    e("    s_bcnt1_i32_b64 s%d, vcc" % sTMP)
    e("    s_cmp_lt_u32 s%d, %d" % (sTMP, PER - THR))
    e("    s_cbranch_scc1 L_poll1")
    if STAMP: e("    s_memrealtime s[42:43]")
    e("L_poll2:")
    e("    s_sub_u32 s%d, s%d, 1" % (sN, sN))
    e("    s_cbranch_scc1 L_done")
    e("    v_mov_b32 v%d, v%d" % (cB, cB0))
    e("    global_load_dwordx4 v[%d:%d], v%d, s[14:15] sc1" % (cM, cM + 3, cA))
    for j in range(RPW):
        e("    global_load_dwordx4 v[%d:%d], v%d, s[14:15] offset:%d sc1" % (cX + 4 * j, cX + 4 * j + 3, cB, (j % 4) * 1024))
        if j % 4 == 3 and j + 1 < RPW:
            e("    v_add_u32 v%d, 4096, v%d" % (cB, cB))
    e("    s_waitcnt vmcnt(%d)" % RPW)
    e("    v_cmp_ne_u32 s[%d:%d], s%d, v%d" % (sBAD, sBAD + 1, sNON, cM + 3))
    e("    v_mov_b32 v%d, v%d" % (cMX, cM))
    e("    s_cmp_lg_u64 s[%d:%d], 0" % (sBAD, sBAD + 1))
    e("    s_cbranch_scc1 L_retry")
    if STAMP: e("    s_memrealtime s[44:45]")
    def allreduce(op, r, t):
        e("    s_nop 1")
        for pat in ("quad_perm:[1,0,3,2]", "quad_perm:[2,3,0,1]", "row_half_mirror", "row_ror:8"):
            e("    %s_dpp v%d, v%d, v%d %s row_mask:0xf bank_mask:0xf" % (op, r, r, r, pat))
            e("    s_nop 1")
        for sw in ("v_permlane16_swap_b32", "v_permlane32_swap_b32"):
            e("    v_mov_b32 v%d, v%d" % (t, r))
            e("    s_nop 1")
            e("    %s v%d, v%d" % (sw, r, t))
            e("    s_nop 0")
            e("    %s v%d, v%d, v%d" % (op, r, r, t))
    allreduce("v_max_f32", cMX, cT)
    e("    v_sub_f32 v%d, v%d, v%d" % (cM, cM, cMX))
    e("    v_exp_f32 v%d, v%d" % (cM, cM))
    if PER < 64:
        e("    v_cmp_gt_u32 vcc, %d, v%d" % (PER, vLANE))
    e("    v_mov_b32 v%d, 0" % cACC)
    e("    v_mul_f32 v%d, v%d, v%d" % (cLX, cM, cM + 1))
    e("    v_mov_b32 v%d, 0" % (cACC + 1))
    if PER < 64:
        e("    v_cndmask_b32 v%d, 0, v%d, vcc" % (cLX, cLX))
    e("    v_mov_b32 v%d, 0" % (cACC + 2))
    steps = []
    for pat in ("quad_perm:[1,0,3,2]", "quad_perm:[2,3,0,1]", "row_half_mirror", "row_ror:8"):
        steps.append("    v_add_f32_dpp v%d, v%d, v%d %s row_mask:0xf bank_mask:0xf" % (cLX, cLX, cLX, pat))
    for sw in ("v_permlane16_swap_b32", "v_permlane32_swap_b32"):
        steps.append("    v_mov_b32 v%d, v%d" % (cT, cLX))
        steps.append("    %s v%d, v%d" % (sw, cLX, cT))
        steps.append("    v_add_f32 v%d, v%d, v%d" % (cLX, cLX, cT))
    steps.append("    v_rcp_f32 v%d, v%d" % (cLX, cLX))
    for j in range(RPW):
        e("    v_readlane_b32 s%d, v%d, %d" % (sW + j, cM, j))
        if j % 2 == 1 and len(steps) > 7: e(steps.pop(0))
    if STAMP: e("    s_memrealtime s[46:47]")
    for j in range(RPW):
        if j % 4 == 0:
            e("    s_waitcnt vmcnt(%d)" % (RPW - 4 - j))
        sp = (sW + j) & ~1; hi = (sW + j) & 1
        e("    v_cmp_ne_u32 vcc, s%d, v%d" % (sNON, cX + 4 * j + 3))
        e("    v_pk_fma_f32 v[%d:%d], v[%d:%d], s[%d:%d], v[%d:%d] op_sel:[0,%d,0] op_sel_hi:[1,%d,1]" %
          (cACC, cACC + 1, cX + 4 * j, cX + 4 * j + 1, sp, sp + 1, cACC, cACC + 1, hi, hi))
        e("    v_fma_f32 v%d, v%d, s%d, v%d" % (cACC + 2, cX + 4 * j + 2, sW + j, cACC + 2))
        if steps: e(steps.pop(0))
        e("    s_or_b64 s[%d:%d], s[%d:%d], vcc" % (sBAD, sBAD + 1, sBAD, sBAD + 1))
    assert not steps
    e("    s_cbranch_scc1 L_poll2")
    if STAMP: e("    s_memrealtime s[48:49]")
    if NWC > 1:
        e("    ds_write_b128 v%d, v[%d:%d]" % (cW, cACC, cACC + 3))
        e("    s_waitcnt lgkmcnt(0)")
        e("    s_barrier")
        e("    s_cmp_lg_u32 s%d, 0" % sWAVE)
        e("    s_cbranch_scc1 L_done")
        for w in range(1, NWC):
            e("    ds_read_b128 v[%d:%d], v%d offset:%d" % (cX + 4 * w, cX + 4 * w + 3, cW, w * 1024))
        for w in range(1, NWC):
            e("    s_waitcnt lgkmcnt(%d)" % (NWC - 1 - w))
            e("    v_pk_add_f32 v[%d:%d], v[%d:%d], v[%d:%d]" % (cACC, cACC + 1, cACC, cACC + 1, cX + 4 * w, cX + 4 * w + 1))
            e("    v_add_f32 v%d, v%d, v%d" % (cACC + 2, cACC + 2, cX + 4 * w + 2))
    for k in range(3):
        e("    v_mul_f32 v%d, v%d, v%d" % (cACC + k, cACC + k, cLX))
    e("    v_cvt_pk_bf16_f32 v%d, v%d, v%d" % (cACC, cACC, cACC + 1))
    e("    v_cvt_pk_bf16_f32 v%d, v%d, v%d" % (cACC + 2, cACC + 2, cACC + 2))
    e("    global_store_short v%d, v%d, s[10:11]" % (cO, cACC))
    e("    global_store_short_d16_hi v%d, v%d, s[10:11] offset:128" % (cO, cACC))
    e("    global_store_short v%d, v%d, s[10:11] offset:256" % (cO, cACC + 2))
    if HOLD and HMODE:
        e("    v_mov_b32 v%d, 0" % cT)
        e("    global_load_dword v%d, v%d, s[12:13] offset:128 sc1" % (cT, cT))
        e("    s_waitcnt vmcnt(0)")
        e("    v_readfirstlane_b32 s%d, v%d" % (sT0, cT))
        if HMODE == 1: e("    s_not_b32 s%d, s%d" % (sT0, sT0))
    if HOLD:
        e("L_hold:")
        e("    s_memrealtime s[50:51]")
        e("    s_waitcnt lgkmcnt(0)")
        e("    s_sub_u32 s50, s50, s%d" % sT0)
        e("    s_cmp_lt_u32 s50, %d" % HOLD)
        e("    s_cbranch_scc1 L_hold")
    if STAMP:
        e("    s_waitcnt vmcnt(0)")
        e("    s_memrealtime s[50:51]")
        e("    s_lshl_b32 s%d, s2, 6" % sTMP)
        e("    s_add_u32 s%d, s%d, 0x1000000" % (sTMP, sTMP))
        e("    v_mov_b32 v%d, s%d" % (cT, sTMP))
        e("    s_waitcnt lgkmcnt(0)")
        e("    v_mov_b32 v%d, s50" % cACC)
        e("    v_mov_b32 v%d, s51" % (cACC + 1))
        e("    s_mov_b64 exec, 1")
        e("    global_store_dwordx2 v%d, v[%d:%d], s[14:15] offset:48" % (cT, cACC, cACC + 1))
        for i in range(4): e("    v_mov_b32 v%d, s%d" % (cX + i, 42 + 2 * i))
        e("    v_add_u32 v%d, 0x8000, v%d" % (cT, cT))
        e("    global_store_dwordx4 v%d, v[%d:%d], s[14:15]" % (cT, cX, cX + 3))
    e("    s_endpgm")
    e("L_retry:")
    e("    s_waitcnt vmcnt(0)")
    e("    s_branch L_poll2")

    e("L_service:")
    vAD = vT; vRA = vT + 1; vGA = vT + 2; vONE = vT + 3; vMX = vT + 4; vLX = vT + 5; t0 = vT + 6; t1 = vT + 7
    vE = vX + 5 * NW + (NW & 1)
    vR0 = vQ; vR1 = vQ + 1; vZERO = vQ + 2; vRL = vQ + 3; vCW = vQ + 4; vML = vQ + 5; vZ = vQ + 6; vG = vQ + 10; vDL = vQ + 14
    e("    v_lshlrev_b32 v%d, 4, v%d" % (vAD, vLANE))
    e("    v_mul_u32_u24 v%d, %d, v%d" % (t0, SST, vLANE))
    e("    v_add_u32 v%d, s%d, v%d" % (t0, sL0, t0))
    e("    v_lshlrev_b32 v%d, 2, v%d" % (t1, vLANE))
    e("    s_mov_b32 exec_lo, 0x%x" % (((1 << (SSF + 1)) - 1) & 0xffffffff))
    e("    s_mov_b32 exec_hi, 0x%x" % (((1 << (SSF + 1)) - 1) >> 32))
    e("    ds_write_b32 v%d, v%d offset:%d" % (t1, t0, LSO))
    e("    s_mov_b64 exec, -1")
    e("    v_cmp_gt_u32 vcc, %d, v%d" % (SSL, vLANE))
    e("    v_mov_b32 v%d, -1" % vONE)
    e("    v_mov_b32 v%d, 0" % vZERO)
    e("    v_cndmask_b32 v%d, -1, v%d, vcc" % (t0, t0))
    e("    ds_write_b32 v%d, v%d offset:%d" % (t1, t0, LLO))
    for k in range(64, LLN + TLN, 64):
        e("    ds_write_b32 v%d, v%d offset:%d" % (t1, vONE, LLO + 4 * k))
    e("    v_and_b32 v%d, 12, v%d" % (t1, t1))
    e("    ds_write_b32 v%d, v%d offset:%d" % (t1, vZERO, PO))
    e("    s_mul_i32 s%d, s%d, %d" % (sTMP, sCOL, ROWB))
    e("    v_add_u32 v%d, s%d, v%d" % (vRA, sTMP, vAD))
    e("    s_waitcnt lgkmcnt(0)")
    e("    v_mov_b32 v%d, 1" % vONE)
    e("    s_barrier")
    e("    s_mov_b64 exec, 0xffffff")
    for r in range(1, RND):
        e("    v_add_u32 v%d, %d, v%d" % (vRA, W * ROWB, vRA))
        e("    global_load_dwordx4 v[%d:%d], v%d, s[4:5]" % (vX + 4 * r, vX + 4 * r + 3, vRA))
    e("    s_waitcnt vmcnt(0)")
    for r in range(1, RND):
        e("    ds_write_b128 v%d, v[%d:%d] offset:%d" % (vAD, vX + 4 * r, vX + 4 * r + 3, QO + r * ROWB))
    e("    s_mov_b64 exec, -1")
    e("    s_lshl_b32 s%d, s%d, %d" % (sTMP, sCOL, LOGP))
    e("    s_add_u32 s%d, s%d, s%d" % (sTMP, sTMP, sIDX))
    e("    s_lshl_b32 s%d, s%d, 10" % (sCNT, sTMP))
    e("    v_add_u32 v%d, s%d, v%d" % (vRA, sCNT, vAD))
    e("    s_lshl_b32 s%d, s%d, 4" % (sCNT, sTMP))
    e("    s_add_u32 s%d, s%d, 0x%x" % (sCNT, sCNT, MLG))
    e("    v_mul_u32_u24 v%d, %d, v%d" % (vGA, NWG * 16, vLANE))
    e("    v_add_u32 v%d, s%d, v%d" % (vGA, sCNT, vGA))
    e("    s_lshr_b32 s%d, s%d, 3" % (sNT, sIDX))
    e("    s_and_b32 s%d, s%d, %d" % (sNT, sNT, S - 1))
    e("    s_mul_i32 s%d, s%d, %d" % (sTMP, sCOL, S))
    e("    s_add_u32 s%d, s%d, s%d" % (sTMP, sTMP, sNT))
    e("    s_mul_i32 s%d, s%d, %d" % (sNT, sNT, NW))
    e("    s_lshl_b32 s%d, s%d, 8" % (sTMP, sTMP))
    e("    s_add_u32 s%d, s%d, 0x%x" % (sTMP, sTMP, CTR_OFF))
    e("    v_mov_b32 v%d, s%d" % (vCW, sTMP))
    e("    s_mov_b32 s%d, 0" % sR)
    e("    s_mov_b32 s%d, %d" % (sT2, SLOTB))
    e("    v_add_u32 v%d, %d, v%d" % (vDA, DO, vAD))
    e("    v_mov_b32 v%d, %d" % (vDL, DLO))
    e("    v_add_u32 v%d, %d, v%d" % (vRL, RECO, vAD))
    e("    v_mov_b32 v%d, %d" % (vML, MLO))
    e("    v_mov_b32 v%d, 0" % (vG + 2))
    def ph():
        if PH:
            e("    s_memrealtime s[50:51]")
            e("    s_waitcnt lgkmcnt(0)")
            e("    v_mov_b32 v%d, s50" % (vTR + 1))
            e("    global_store_dword v%d, v%d, s[14:15]" % (vTR, vTR + 1))
            e("    v_add_u32 v%d, 4, v%d" % (vTR, vTR))
    if PH:
        e("    s_lshl_b32 s52, s2, 8")
        e("    s_add_u32 s52, s52, 0x1100000")
        e("    v_mov_b32 v%d, s52" % vTR)
        e("    v_mov_b32 v%d, s%d" % (vTR + 1, sT0))
        e("    s_mov_b64 exec, 1")
        e("    global_store_dword v%d, v%d, s[14:15]" % (vTR, vTR + 1))
        e("    v_add_u32 v%d, 4, v%d" % (vTR, vTR))
        e("    s_mov_b64 exec, -1")
    def elect(tag):
        e("    s_mov_b64 exec, 1")
        e("    global_atomic_add v%d, v%d, v%d, s[12:13] sc0" % (t0, vZERO, vONE))
        e("    s_memrealtime s[50:51]")
        e("    s_waitcnt vmcnt(0) lgkmcnt(0)")
        e("    v_readfirstlane_b32 s%d, v%d" % (sTMP, t0))
        e("    s_mov_b64 exec, -1")
        e("    s_cmp_lg_u32 s%d, 0" % sTMP)
        e("    s_cbranch_scc1 L_lost%s" % tag)
        e("    v_lshlrev_b32 v%d, 8, v%d" % (t0, vLANE))
        e("    v_add_u32 v%d, 0x%x, v%d" % (t0, CTR_OFF, t0))
        e("    s_or_b32 s50, s50, 1")
        e("    v_mov_b32 v%d, s50" % t1)
        e("    global_store_dword v%d, v%d, s[14:15] sc1" % (t0, vZERO))
        e("    s_waitcnt vmcnt(0)")
        e("    global_store_dword v%d, v%d, s[12:13] offset:64 sc1" % (vZERO, t1))
        e("L_lost%s:" % tag)
    if HMODE:
        e("    v_mov_b32 v%d, s%d" % (t0, sT0))
        if HMODE == 1: e("    v_not_b32 v%d, v%d" % (t0, t0))
        e("    s_mov_b64 exec, 1")
        e("    global_atomic_umax v%d, v%d, s[12:13] offset:128" % (vZERO, t0))
        e("    s_mov_b64 exec, -1")
    e("    s_cmp_lg_u32 s2, 0")
    e("    s_cbranch_scc1 L_lostA")
    elect("A")
    e("    s_waitcnt lgkmcnt(0)")
    e("    s_barrier")
    if PH:
        e("    s_mov_b64 exec, 1")
        ph()
        e("    s_mov_b64 exec, -1")
    e("    global_load_dword v%d, v%d, s[12:13] offset:64 sc1" % (t0, vZERO))
    e("    s_waitcnt vmcnt(0)")
    e("    v_readfirstlane_b32 s%d, v%d" % (sNON, t0))
    e("    s_cmp_lg_u32 s%d, 0" % sNON)
    e("    s_cbranch_scc1 L_ready")
    elect("B")
    e("    s_mov_b32 s%d, 0x%x" % (sN, SPIN))
    e("L_spinf:")
    e("    s_sub_u32 s%d, s%d, 1" % (sN, sN))
    e("    s_cbranch_scc1 L_ready")
    e("    global_load_dword v%d, v%d, s[12:13] offset:64 sc1" % (t0, vZERO))
    e("    s_waitcnt vmcnt(0)")
    e("    v_readfirstlane_b32 s%d, v%d" % (sNON, t0))
    e("    s_cmp_eq_u32 s%d, 0" % sNON)
    e("    s_cbranch_scc1 L_spinf")
    e("L_ready:")
    e("    v_mov_b32 v%d, s%d" % (vZ + 3, sNON))
    e("    v_mov_b32 v%d, s%d" % (vG + 3, sNON))
    e("    ds_write_b32 v%d, v%d offset:%d" % (vZERO, vZ + 3, NONO))
    e("    s_mov_b32 s%d, %d" % (sLIM, LIML))
    e("    s_add_u32 s%d, s%d, %d" % (sBASE, sNT, SSL * SST))
    e("    v_mov_b32 v%d, %d" % (vLA, LLO + 4 * SSL))
    e("    s_mov_b32 s%d, %d" % (sCAP, CAP))
    e("    s_mov_b32 s%d, %d" % (sNEED, (RND - 1) * SSF + SSL - 1 - LOOK))
    e("L_seq:")
    e("    s_mov_b64 exec, 1")
    ph()
    e("L_sls:")
    e("    ds_read_b128 v[%d:%d], v%d offset:%d" % (vX, vX + 3, vZERO, PO))
    e("    s_waitcnt lgkmcnt(0)")
    e("    v_max3_u32 v%d, v%d, v%d, v%d" % (t0, vX, vX + 1, vX + 2))
    e("    v_max_u32 v%d, v%d, v%d" % (t0, t0, vX + 3))
    e("    s_nop 0")
    e("    v_readfirstlane_b32 s%d, v%d" % (sP, t0))
    e("    s_cmp_ge_u32 s%d, s%d" % (sP, sNEED))
    e("    s_cbranch_scc1 L_grab")
    e("    s_sleep %d" % SLP)
    e("    s_branch L_sls")
    e("L_grab:")
    e("    s_mov_b32 s%d, %d" % (sM1, TPH))
    e("    s_sub_u32 s%d, s%d, 1" % (sCAP, sCAP))
    e("    s_cbranch_scc1 L_got")
    e("    global_atomic_add v%d, v%d, v%d, s[14:15] sc0" % (vR0, vCW, vONE))
    e("    s_waitcnt vmcnt(0)")
    e("    v_readfirstlane_b32 s%d, v%d" % (sM1, vR0))
    e("    s_min_u32 s%d, s%d, %d" % (sM1, sM1, TPH))
    e("L_got:")
    e("    s_mul_i32 s%d, s%d, %d" % (sM1, sM1, NW * S))
    e("    s_add_u32 s%d, s%d, s%d" % (sM1, sM1, sBASE))
    e("    v_mov_b32 v%d, s%d" % (t0, sM1))
    e("    ds_write_b32 v%d, v%d" % (vLA, t0))
    e("    v_add_u32 v%d, 4, v%d" % (vLA, vLA))
    e("    s_add_u32 s%d, s%d, 1" % (sNEED, sNEED))
    e("    s_cmp_lt_u32 s%d, s%d" % (sM1, sLIM))
    e("    s_cbranch_scc1 L_sls")
    e("L_slsend:")
    ph()
    e("    s_mov_b64 exec, -1")
    e("    s_cmp_eq_u32 s%d, %d" % (sLIM, TPH))
    e("    s_cbranch_scc1 %s" % ("L_early" if EARLY else "L_sdump"))
    e("L_svround:")
    e("    s_cmp_lg_u32 s%d, %d" % (sR, RND - 1))
    e("    s_cbranch_scc1 L_sdump")
    e("    s_mov_b32 s%d, %d" % (sLIM, TPH))
    e("    s_add_u32 s%d, s%d, %d" % (sBASE, sNT, 2 * LIML))
    e("    s_mov_b32 s%d, %d" % (sCAP, NUT))
    e("    v_add_u32 v%d, %d, v%d" % (vCW, W * S * 256, vCW))
    e("    v_mov_b32 v%d, %d" % (vLA, TLO))
    e("    s_lshl_b32 s%d, s%d, 1" % (sNEED, sNEED))
    e("    s_add_u32 s%d, s%d, %d" % (sNEED, sNEED, LOOK - 1))
    e("    s_branch L_seq")
    if EARLY:
        e("L_early:")
        e("    v_min_u32 v%d, %d, v%d" % (t1, (RND - 2) * 16, vAD))
        e("    ds_read_b128 v[%d:%d], v%d offset:%d" % (vE, vE + 3, t1, MLO))
        for r in range(RND - 1):
            e("    ds_read_b128 v[%d:%d], v%d offset:%d" % (vE + 4 + 4 * r, vE + 4 + 4 * r + 3, vAD, RECO + r * 1024))
        e("    s_mov_b64 exec, %d" % ((1 << (RND - 1)) - 1))
        e("    s_waitcnt lgkmcnt(%d)" % (RND - 1))
        e("    global_store_dwordx4 v%d, v[%d:%d], s[14:15] sc1" % (vGA, vE, vE + 3))
        e("    s_mov_b64 exec, -1")
        for r in range(RND - 1):
            e("    s_waitcnt lgkmcnt(%d)" % (RND - 2 - r))
            e("    global_store_dwordx4 v%d, v[%d:%d], s[14:15] sc1" % (vRA, vE + 4 + 4 * r, vE + 4 + 4 * r + 3))
            e("    v_add_u32 v%d, %d, v%d" % (vRA, NWG * 1024, vRA))
    e("L_sdump:")
    e("    s_waitcnt lgkmcnt(0)")
    e("    s_barrier")
    if PH:
        e("    s_mov_b64 exec, 1")
        ph()
        e("    s_mov_b64 exec, -1")
    if STAMP:
        e("    s_memrealtime s[%d:%d]" % (sT0 + 2, sT0 + 3))
    vY = vX + 4 * NW
    for w in range(NW):
        e("    ds_read_b128 v[%d:%d], v%d offset:%d" % (vX + 4 * w, vX + 4 * w + 3, vDA, w * 1024))
    for w in range(NW):
        e("    ds_read_b32 v%d, v%d offset:%d" % (vY + w, vDL, w * 4))
    e("    v_add_u32 v%d, s%d, v%d" % (vDA, sT2, vDA))
    e("    s_sub_u32 s%d, 0, s%d" % (sT2, sT2))
    e("    v_xor_b32 v%d, %d, v%d" % (vDL, DLO ^ (DLO + NW * 4), vDL))
    e("    s_add_u32 s%d, s%d, 1" % (sR, sR))
    e("    s_waitcnt lgkmcnt(%d)" % (0 if STAMP else NW))
    e("    v_max_f32 v%d, v%d, v%d" % (vG, vX + 3, vX + 7))
    for w in range(2, NW):
        e("    v_max_f32 v%d, v%d, v%d" % (vG, vG, vX + 4 * w + 3))
    for w in range(NW):
        e("    v_sub_f32 v%d, v%d, v%d" % (vX + 4 * w + 3, vX + 4 * w + 3, vG))
    for w in range(NW):
        e("    v_exp_f32 v%d, v%d" % (vX + 4 * w + 3, vX + 4 * w + 3))
    e("    s_waitcnt lgkmcnt(0)")
    for k in range(3):
        e("    v_mul_f32 v%d, v%d, v%d" % (vZ + k, vX + k, vX + 3))
    e("    v_mul_f32 v%d, v%d, v%d" % (vG + 1, vY, vX + 3))
    for w in range(1, NW):
        for k in range(3):
            e("    v_fma_f32 v%d, v%d, v%d, v%d" % (vZ + k, vX + 4 * w + k, vX + 4 * w + 3, vZ + k))
        e("    v_fma_f32 v%d, v%d, v%d, v%d" % (vG + 1, vY + w, vX + 4 * w + 3, vG + 1))
    e("    s_cmp_eq_u32 s%d, %d" % (sR, RND))
    e("    s_cbranch_scc1 L_final")
    e("    ds_write_b128 v%d, v[%d:%d]" % (vRL, vZ, vZ + 3))
    e("    ds_write_b128 v%d, v[%d:%d]" % (vML, vG, vG + 3))
    e("    v_add_u32 v%d, 1024, v%d" % (vRL, vRL))
    e("    v_add_u32 v%d, 16, v%d" % (vML, vML))
    e("    s_branch L_svround")
    e("L_final:")
    if EARLY:
        e("    global_store_dwordx4 v%d, v[%d:%d], s[14:15] sc1" % (vRA, vZ, vZ + 3))
        e("    s_mov_b64 exec, %d" % (1 << (RND - 1)))
        e("    global_store_dwordx4 v%d, v[%d:%d], s[14:15] sc1" % (vGA, vG, vG + 3))
        if STAMP: e("    s_mov_b64 exec, -1")
    else:
        e("    v_add_u32 v%d, %d, v%d" % (t0, (RND - 1) * NWG * 1024, vRA))
        e("    global_store_dwordx4 v%d, v[%d:%d], s[14:15] sc1" % (t0, vZ, vZ + 3))
        e("    ds_write_b128 v%d, v[%d:%d]" % (vML, vG, vG + 3))
        e("    v_min_u32 v%d, %d, v%d" % (t1, (RND - 1) * 16, vAD))
        e("    ds_read_b128 v[%d:%d], v%d offset:%d" % (vX, vX + 3, t1, MLO))
        for r in range(RND - 1):
            e("    ds_read_b128 v[%d:%d], v%d offset:%d" % (vX + 4 + 4 * r, vX + 4 + 4 * r + 3, vAD, RECO + r * 1024))
        e("    s_mov_b64 exec, %d" % ((1 << RND) - 1))
        e("    s_waitcnt lgkmcnt(%d)" % (RND - 1))
        e("    global_store_dwordx4 v%d, v[%d:%d], s[14:15] sc1" % (vGA, vX, vX + 3))
        e("    s_mov_b64 exec, -1")
        for r in range(RND - 1):
            e("    s_waitcnt lgkmcnt(%d)" % (RND - 2 - r))
            e("    global_store_dwordx4 v%d, v[%d:%d], s[14:15] sc1" % (vRA, vX + 4 + 4 * r, vX + 4 + 4 * r + 3))
            if r + 2 < RND:
                e("    v_add_u32 v%d, %d, v%d" % (vRA, NWG * 1024, vRA))
    if STAMP:
        e("    s_memrealtime s[%d:%d]" % (sT0 + 4, sT0 + 5))
        e("    s_waitcnt vmcnt(0)")
        e("    s_memrealtime s[%d:%d]" % (sT0 + 6, sT0 + 7))
        e("    s_getreg_b32 s%d, hwreg(HW_REG_XCC_ID)" % (sT0 + 8))
        e("    s_getreg_b32 s%d, hwreg(HW_REG_HW_ID)" % (sT0 + 9))
        e("    s_waitcnt lgkmcnt(0)")
        for i in range(10):
            e("    v_mov_b32 v%d, s%d" % (vX + i, sT0 + i))
        e("    v_mov_b32 v%d, s%d" % (vX + 10, sT0 + 6))
        e("    v_mov_b32 v%d, s%d" % (vX + 11, sT0 + 7))
        e("    s_lshl_b32 s%d, s2, 6" % (sT0))
        e("    s_add_u32 s%d, s%d, 0x1000000" % (sT0, sT0))
        e("    v_mov_b32 v%d, s%d" % (t1, sT0))
        e("    s_mov_b64 exec, 1")
        e("    global_store_dwordx4 v%d, v[%d:%d], s[14:15]" % (t1, vX, vX + 3))
        e("    global_store_dwordx4 v%d, v[%d:%d], s[14:15] offset:16" % (t1, vX + 4, vX + 7))
        e("    global_store_dwordx4 v%d, v[%d:%d], s[14:15] offset:32" % (t1, vX + 8, vX + 11))
    e("L_done:")
    e("    s_endpgm")
    e('.section .rodata,"a"')
    e(".p2align 6")
    e(".amdhsa_kernel %s" % KNAME)
    e("  .amdhsa_next_free_vgpr %d" % NVGPR)
    e("  .amdhsa_next_free_sgpr %d" % NSGPR)
    e("  .amdhsa_accum_offset %d" % ((NVGPR + 3) // 4 * 4))
    e("  .amdhsa_group_segment_fixed_size 0")
    e("  .amdhsa_kernarg_size 48")
    e("  .amdhsa_user_sgpr_count 2")
    e("  .amdhsa_user_sgpr_kernarg_segment_ptr 1")
    e("  .amdhsa_system_sgpr_workgroup_id_x 1")
    e("  .amdhsa_float_denorm_mode_32 3")
    e(".end_amdhsa_kernel")
    return "\n".join(o) + "\n"

if __name__ == "__main__":
    ap = argparse.ArgumentParser()
    ap.add_argument("-o", default="standalone__mha_softmax__decode.s")
    for k, d in dict(W=4, NW=4, SSL=4, TP=512, CAP=8, THR=3, NWC=4, LOOK=3, SLP=4, S=4, STAMP=0, TRACE=0, HOLD=0, HMODE=0, SPROBE=0, LIN=0, EARLY=1, PH=0).items():
        ap.add_argument("--" + k, type=int, default=d)
    ap.add_argument("--POL", default="nt")
    for k, d in (("KW", "545454"), ("VW", "555555"), ("TW", "555555")): ap.add_argument("--" + k, default=d)
    a = vars(ap.parse_args())
    out = a.pop("o")
    open(out, "w").write(gen(**a))
    print("wrote", out)
```

```python
import math, struct, sys, argparse
H = 32; SK = 32768; D = 192
ROWB = D * 2
HEADB = SK * ROWB
NWG = 256
TB = 8 * ROWB
TPH = SK // 8

def f32hex(x):
    return "0x%08x" % struct.unpack("<I", struct.pack("<f", x))[0]

HEADER = """; Kernarg layout for this problem (48 bytes, ptrs only, base s[0:1]):
"""

def gen(W=4, NW=4, SSL=4, TP=640, CAP=8, THR=3, NWC=4, LOOK=2, SLP=4, S=2, KW="545454", VW="554555", TW="555555", POL="nt", STAMP=0, TRACE=0, HOLD=0, HMODE=0, SPROBE=0, LIN=0, EARLY=1, PH=0,
        KNAME="standalone__mha_softmax__decode_kernel"):
    o = []
    e = o.append
    PER = NWG // W; RND = H // W
    LOGP = int(math.log2(PER))
    TB2 = 2 * TB; TPH2 = SK // 16
    TOTB = H * HEADB
    SST = PER * NW
    SSF = TPH2 // SST
    LA = 3
    LIML = TPH2 - TP
    assert SSF * SST == TPH2 and SSF < 63 and RND >= 2
    assert SSL * SST <= LIML and SSL >= 2 and LOOK >= 1
    assert CAP * (PER // S) >= -(-(LIML - SSL * SST) // (NW * S)), "cap too small to cover the dynamic units"
    NUT = -(-(2 * TP) // (NW * S))
    RPW = PER // NWC
    assert NW >= NWC and PER <= 64 and RPW % 4 == 0 and 2 * W * S <= 64 and PER // 8 >= S
    pol = (" " + POL) if POL else ""
    C = (D ** -0.5) * math.log2(math.e)
    QO = 0
    NONO = RND * ROWB
    MLO = (NONO + 16 + 15) // 16 * 16
    LSO = MLO + RND * 16
    LLO = LSO + (SSF + 2) * 4
    LLN = max(SSL + CAP + 1, SSF + 1)
    TLO = LLO + LLN * 4
    TLN = NUT + 1
    PO = (TLO + TLN * 4 + 15) // 16 * 16
    assert NW == 4
    DLO = (PO + 16 + 63) // 64 * 64
    DO = (DLO + 2 * NW * 4 + 1023) // 1024 * 1024
    SLOTB = NW * 1024
    RECO = DO + 2 * SLOTB
    SCO = RECO + (RND - 1) * 1024
    SCR = (SSF + 1) * 64
    SCW = (RND - 1) * SCR + (SSL + CAP + 1) * 64
    LDS = SCO + NW * SCW
    MRG = DO + (RND & 1) * SLOTB
    assert LDS <= 64 * 1024 and NWC * 1024 <= SLOTB
    CTR_OFF = 0x800000
    MLG = 0x400000
    OOB = 0xF0000000
    SPIN = 0x100000

    vLANE = 0; vOFF = 1; vM = 2; vNB = 3; vA = 3; vS = 4
    vT = 6; vQ = 14; vO = 28; vMC = 52; vL = 53
    vDA = 54; vQA = 55; vTR = 56; vSA = 57; vLA = 58; vS0 = 59; vPA = 26; vP = 27; vS2 = 84; vNB2 = 86
    vB = 60; vX = 60
    NVGPR = max(88, vX + 5 * NW + 1 + 4 * RND, vX + 4 * RND + 4, vX + 4 * RPW)
    sCOL = 24; sIDX = 25; sWAVE = 26; sMASK = 27; sC = 28; sCNT = 29; sR = 30; sTMP = 31
    sOFF = 32; sHO = 33; sG = 34; sBIAS = 35; sNB = 36; sHEAD = 37; sT2 = 38; sNON = 39
    sT0 = 40
    sM1 = 53; sN = 54; sNT = 55; sL0 = 56; sOFB = 57; sLIM = 58; sNEED = 59; sBASE = 60; sP = 61; sCAP = 62; sT3 = 63
    sW = 64
    sBAD = sW + RPW + (RPW & 1)
    NSGPR = sBAD + 2

    e(HEADER + "; @launch grid=(%d,1,1) block=(%d,1,1) lds=%d" % (NWG, (NW + 1) * 64, LDS))
    if TRACE: e("; UNITBYTES=%d" % TB2)
    e('.amdgcn_target "amdgcn-amd-amdhsa--gfx950"')
    e(".text")
    e(".globl %s" % KNAME)
    e(".p2align 8")
    e(".type %s,@function" % KNAME)
    e("%s:" % KNAME)
    e("    s_cmp_ge_u32 s2, %d" % NWG)
    e("    s_cbranch_scc1 L_done")
    e("    s_load_dwordx4 s[4:7], s[0:1], 0")
    e("    s_load_dwordx4 s[8:11], s[0:1], 16")
    e("    s_load_dwordx4 s[12:15], s[0:1], 32")
    if STAMP or HOLD or SPROBE or PH:
        e("    s_memrealtime s[%d:%d]" % (sT0, sT0 + 1))
    e("    v_lshrrev_b32 v%d, 6, v0" % vA)
    e("    v_and_b32 v%d, 63, v0" % vLANE)
    e("    v_readfirstlane_b32 s%d, v%d" % (sWAVE, vA))
    e("    s_lshr_b32 s%d, s2, %d" % (sCOL, LOGP))
    e("    s_and_b32 s%d, s2, %d" % (sIDX, PER - 1))
    e("    s_mul_i32 s%d, s%d, %d" % (sL0, sIDX, NW))
    e("    s_cmp_eq_u32 s%d, %d" % (sWAVE, NW))
    e("    s_cbranch_scc1 L_service")
    e("    v_lshrrev_b32 v%d, 3, v%d" % (vS0, vLANE))
    e("    v_and_b32 v%d, 7, v%d" % (vQA, vLANE))
    e("    v_lshlrev_b32 v%d, 4, v%d" % (vQA, vQA))
    e("    v_mul_u32_u24 v%d, %d, v%d" % (vT, ROWB, vS0))
    e("    v_add_u32 v%d, v%d, v%d" % (vOFF, vT, vQA))
    if LIN: e("    v_lshlrev_b32 v%d, 4, v%d" % (vOFF, vLANE))
    e("    s_mov_b32 s18, %d" % TOTB)
    e("    s_mov_b32 s19, 0x00020000")
    e("    s_mov_b32 s22, %d" % TOTB)
    e("    s_mov_b32 s23, 0x00020000")
    e("    s_mul_i32 s%d, s%d, %d" % (sHO, sCOL, HEADB))
    e("    s_add_u32 s%d, s%d, s%d" % (sG, sL0, sWAVE))
    e("    s_mul_i32 s%d, s%d, %d" % (sOFF, sG, TB2))
    e("    s_add_u32 s%d, s%d, s%d" % (sOFF, sOFF, sHO))
    e("    s_add_u32 s%d, s%d, %d" % (sOFB, sOFF, TB))
    e("    s_mul_i32 s%d, s%d, %d" % (sCNT, sCOL, ROWB))
    e("    v_add_u32 v%d, s%d, v%d" % (vT + 1, sCNT, vQA))
    e("    s_waitcnt lgkmcnt(0)")
    if SPROBE: e("    s_memrealtime s[42:43]")
    for j in range(3):
        e("    global_load_dwordx4 v[%d:%d], v%d, s[4:5] offset:%d" % (vQ + 4 * j, vQ + 4 * j + 3, vT + 1, j * 128))
    e("    s_and_b32 s7, s7, 0xffff")
    e("    s_and_b32 s9, s9, 0xffff")
    e("    s_mov_b64 s[16:17], s[6:7]")
    e("    s_mov_b64 s[20:21], s[6:7]")
    def load(j):
        e("    buffer_load_dwordx4 v[%d:%d], v%d, s[%s], s%d offen offset:%d%s" %
          (vB + 4 * j, vB + 4 * j + 3, vOFF, "16:19" if j < 3 else "20:23", sOFF if j < 3 else sOFB, (j % 3) * (1024 if LIN else 128), pol))
    for j in range(6): load(j)
    if TRACE:
        e("    s_mul_i32 s52, s2, %d" % (NW + 1))
        e("    s_add_u32 s52, s52, s%d" % sWAVE)
        e("    s_lshl_b32 s52, s52, 10")
        e("    s_add_u32 s52, s52, 0x1100000")
        e("    v_mov_b32 v%d, s52" % vTR)
    e("    s_mov_b32 s%d, 0xffff0000" % sMASK)
    e("    s_mov_b32 s%d, %s" % (sC, f32hex(C)))
    e("    s_mov_b32 s%d, 0" % sR)
    e("    v_mov_b32 v%d, 0" % vP)
    e("    s_lshl_b32 s%d, s%d, 2" % (sTMP, sWAVE))
    e("    s_add_u32 s%d, s%d, %d" % (sTMP, sTMP, PO))
    e("    v_mov_b32 v%d, s%d" % (vPA, sTMP))
    e("    s_mov_b32 s%d, %d" % (sT2, SLOTB))
    e("    s_lshl_b32 s%d, s%d, 10" % (sTMP, sWAVE))
    e("    s_add_u32 s%d, s%d, %d" % (sTMP, sTMP, DO))
    e("    v_lshlrev_b32 v%d, 4, v%d" % (vDA, vLANE))
    e("    v_add_u32 v%d, s%d, v%d" % (vDA, sTMP, vDA))
    e("    s_lshl_b32 s%d, s%d, 2" % (sT3, sWAVE))
    e("    s_add_u32 s%d, s%d, %d" % (sT3, sT3, DLO))
    e("    s_mul_i32 s%d, s%d, %d" % (sTMP, sWAVE, SCW))
    e("    s_add_u32 s%d, s%d, %d" % (sTMP, sTMP, SCO))
    e("    v_lshlrev_b32 v%d, 3, v%d" % (vS0, vS0))
    e("    v_add_u32 v%d, s%d, v%d" % (vS0, sTMP, vS0))
    def init_state():
        e("    v_mov_b32 v%d, 0" % vL)
        for i in range(24): e("    v_mov_b32 v%d, 0" % (vO + i))
    init_state()
    if SPROBE:
        e("    s_memrealtime s[44:45]")
        e("    s_waitcnt vmcnt(5)")
        e("    s_memrealtime s[46:47]")
    e("    s_barrier")
    if SPROBE: e("    s_waitcnt vmcnt(0)")
    if SPROBE:
        e("    s_memrealtime s[48:49]")
        e("    s_mul_i32 s52, s2, %d" % (NW + 1))
        e("    s_add_u32 s52, s52, s%d" % sWAVE)
        e("    s_lshl_b32 s52, s52, 5")
        e("    s_add_u32 s52, s52, 0x1100000")
        e("    v_mov_b32 v%d, s52" % vTR)
        e("    s_waitcnt lgkmcnt(0)")
        for i in range(5): e("    v_mov_b32 v%d, s%d" % (vT + i, 40 + 2 * i))
        e("    s_mov_b64 exec, 1")
        e("    global_store_dwordx4 v%d, v[%d:%d], s[14:15]" % (vTR, vT, vT + 3))
        e("    global_store_dword v%d, v%d, s[14:15] offset:16" % (vTR, vT + 4))
        e("    s_mov_b64 exec, -1")
    def trace():
        if TRACE:
            e("    s_memrealtime s[50:51]")
            e("    s_waitcnt lgkmcnt(0)")
            e("    v_mov_b32 v%d, s50" % vT)
            e("    s_mov_b64 exec, 1")
            e("    global_store_dword v%d, v%d, s[14:15]" % (vTR, vT))
            e("    s_mov_b64 exec, -1")
            e("    v_add_u32 v%d, 4, v%d" % (vTR, vTR))
    def next_off16(sbase, sh):
        e("    s_add_u32 s%d, s%d, s%d" % (sG, sbase, sWAVE))
        e("    s_mul_i32 s%d, s%d, %d" % (sOFF, sG, TB2))
        e("    s_add_u32 s%d, s%d, s%d" % (sOFF, sOFF, sh))
        e("    s_cmp_lt_u32 s%d, s%d" % (sG, sLIM))
        e("    s_cselect_b32 s%d, s%d, 0x%x" % (sOFF, sOFF, OOB))
        e("    s_add_u32 s%d, s%d, %d" % (sOFB, sOFF, TB))
    def next_off8():
        e("    s_add_u32 s%d, s%d, s%d" % (sG, sNB, sWAVE))
        e("    s_mul_i32 s%d, s%d, %d" % (sOFF, sG, TB))
        e("    s_add_u32 s%d, s%d, s%d" % (sOFF, sOFF, sHO))
        e("    s_cmp_lt_u32 s%d, %d" % (sG, TPH))
        e("    s_cselect_b32 s%d, s%d, 0x%x" % (sOFF, sOFF, OOB))
        e("    s_mov_b32 s%d, s%d" % (sOFB, sOFF))
    def dots4(jj, accs, first):
        j = jj % 3
        for i in range(4):
            acc = accs[i % 2]
            if first and i < 2:
                e("    v_dot2_f32_bf16 v%d, v%d, v%d, 0" % (acc, vB + 4 * jj + i, vQ + 4 * j + i))
            else:
                e("    v_dot2_f32_bf16 v%d, v%d, v%d, v%d" % (acc, vB + 4 * jj + i, vQ + 4 * j + i, acc))
    def pv(jj, r, pat):
        j = jj % 3
        e("    s_waitcnt vmcnt(%s)" % pat[jj])
        for i in range(4):
            e("    v_lshlrev_b32 v%d, 16, v%d" % (vT + 2 * i, vB + 4 * jj + i))
            e("    v_and_b32 v%d, s%d, v%d" % (vT + 2 * i + 1, sMASK, vB + 4 * jj + i))
        load(jj)
        for i in range(4):
            oo = vO + j * 8 + 2 * i
            e("    v_pk_fma_f32 v[%d:%d], v[%d:%d], v[%d:%d], v[%d:%d] op_sel:[0,%d,0] op_sel_hi:[1,%d,1]" %
              (oo, oo + 1, vT + 2 * i, vT + 2 * i + 1, vS, vS + 1, oo, oo + 1, r, r))
    def set_round():
        e("    s_cmp_eq_u32 s%d, %d" % (sR, RND - 1))
        e("    s_cselect_b32 s%d, %d, 0" % (sLIM, TP))
        e("    s_cselect_b32 s%d, %d, 0" % (sTMP, LLO - LSO))
        e("    s_sub_u32 s%d, %d, s%d" % (sLIM, TPH2, sLIM))
        e("    s_add_u32 s%d, s%d, %d" % (sTMP, sTMP, LSO))
        e("    v_mov_b32 v%d, s%d" % (vLA, sTMP))
        e("    s_mul_i32 s%d, s%d, %d" % (sTMP, sR, SCR))
        e("    v_add_u32 v%d, s%d, v%d" % (vSA, sTMP, vS0))
    def progress():
        e("    ds_write_b32 v%d, v%d" % (vPA, vP))
        e("    v_add_u32 v%d, 1, v%d" % (vP, vP))
    def waitent(name):
        e("L_%sw:" % name)
        e("    s_mov_b32 s%d, 0x%x" % (sN, SPIN))
        e("L_%sw1:" % name)
        e("    ds_read_b32 v%d, v%d" % (vNB, vLA))
        e("    s_sub_u32 s%d, s%d, 1" % (sN, sN))
        e("    s_cbranch_scc1 L_%sok" % name)
        e("    s_waitcnt lgkmcnt(0)")
        e("    v_readfirstlane_b32 s%d, v%d" % (sNB, vNB))
        e("    s_cmp_eq_u32 s%d, -1" % sNB)
        e("    s_cbranch_scc1 L_%sw1" % name)
        e("    s_branch L_%sok" % name)
    def ahead():
        e("    ds_read_b32 v%d, v%d offset:4" % (vNB2, vLA))
        e("    v_add_u32 v%d, 4, v%d" % (vLA, vLA))
        progress()
    e("L_kround:")
    set_round()
    e("    ds_read_b32 v%d, v%d offset:4" % (vNB2, vLA))
    e("    v_add_u32 v%d, 4, v%d" % (vLA, vLA))
    e("    v_mov_b32 v%d, 0xff7fffff" % vM)
    e("    v_mov_b32 v%d, v%d" % (vMC, vSA))
    e("    v_add_u32 v%d, 64, v%d" % (vSA, vSA))
    e("    s_waitcnt lgkmcnt(0)")
    e("L_k:")
    e("    s_cmp_lt_u32 s%d, s%d" % (sG, sLIM))
    e("    s_cselect_b32 s%d, 0, 0xff800000" % sBIAS)
    e("    s_waitcnt lgkmcnt(2)")
    e("    v_readfirstlane_b32 s%d, v%d" % (sNB, vNB2))
    e("    s_cmp_eq_u32 s%d, -1" % sNB)
    e("    s_cbranch_scc1 L_kw")
    e("L_kok:")
    e("    s_cmp_lt_u32 s%d, s%d" % (sNB, sLIM))
    e("    s_cbranch_scc0 L_klast")
    next_off16(sNB, sHO)
    e("L_kgo:")
    for jj in range(6):
        r = jj // 3
        e("    s_waitcnt vmcnt(%s)" % KW[jj])
        dots4(jj, (vS + r, vT + r), jj % 3 == 0)
        load(jj)
        if jj == 2: ahead()
    e("    v_add_f32 v%d, v%d, v%d" % (vS, vS, vT))
    e("    s_nop 0")
    e("    v_add_f32 v%d, v%d, v%d" % (vS + 1, vS + 1, vT + 1))
    e("    s_nop 0")
    for pat in ("quad_perm:[1,0,3,2]", "quad_perm:[2,3,0,1]", "row_half_mirror"):
        for r in range(2):
            e("    v_add_f32_dpp v%d, v%d, v%d %s row_mask:0xf bank_mask:0xf" % (vS + r, vS + r, vS + r, pat))
        if pat != "row_half_mirror": e("    s_nop 0")
    e("    v_add_f32 v%d, s%d, v%d" % (vS, sBIAS, vS))
    e("    v_add_f32 v%d, s%d, v%d" % (vS + 1, sBIAS, vS + 1))
    e("    v_max3_f32 v%d, v%d, v%d, v%d" % (vM, vM, vS, vS + 1))
    e("    ds_write_b64 v%d, v[%d:%d]" % (vSA, vS, vS + 1))
    e("    v_add_u32 v%d, 64, v%d" % (vSA, vSA))
    trace()
    e("    s_cmp_lt_u32 s%d, s%d" % (sNB, sLIM))
    e("    s_cbranch_scc1 L_k")
    e("    ds_write_b32 v%d, v%d" % (vMC, vM))
    e("    s_cmp_eq_u32 s%d, %d" % (sR, RND - 1))
    e("    s_cbranch_scc1 L_vstart")
    e("    s_cmp_lg_u32 s%d, 0" % sR)
    e("    s_cbranch_scc1 L_qok")
    e("    s_barrier")
    e("L_qok:")
    e("    v_add_u32 v%d, %d, v%d" % (vQA, ROWB, vQA))
    e("    s_add_u32 s%d, s%d, 1" % (sR, sR))
    e("    s_add_u32 s%d, s%d, %d" % (sHO, sHO, W * HEADB))
    for j in range(3):
        e("    ds_read_b128 v[%d:%d], v%d offset:%d" % (vQ + 4 * j, vQ + 4 * j + 3, vQA, QO + j * 128))
    e("    s_branch L_kround")
    e("L_vstart:")
    e("    s_mov_b32 s%d, 0" % sR)
    e("    s_sub_u32 s%d, s%d, %d" % (sHO, sHO, (RND - 1) * W * HEADB))
    e("L_vround:")
    set_round()
    e("    ds_read_b32 v%d, v%d" % (vM, vSA))
    e("    v_add_u32 v%d, 64, v%d" % (vSA, vSA))
    e("    ds_read_b64 v[%d:%d], v%d" % (vS2, vS2 + 1, vSA))
    e("    ds_read_b32 v%d, v%d offset:4" % (vNB2, vLA))
    e("    v_add_u32 v%d, 4, v%d" % (vLA, vLA))
    e("    s_waitcnt lgkmcnt(0)")
    e("    v_mul_f32 v%d, s%d, v%d" % (vMC, sC, vM))
    e("L_v:")
    e("    s_waitcnt lgkmcnt(1)")
    e("    v_readfirstlane_b32 s%d, v%d" % (sNB, vNB2))
    e("    v_fma_f32 v%d, v%d, s%d, -v%d" % (vS, vS2, sC, vMC))
    e("    v_fma_f32 v%d, v%d, s%d, -v%d" % (vS + 1, vS2 + 1, sC, vMC))
    e("    s_cmp_lt_u32 s%d, s%d" % (sNB, sLIM))
    e("    s_cbranch_scc0 L_vlast")
    next_off16(sNB, sHO)
    e("L_vgo:")
    e("    v_exp_f32 v%d, v%d" % (vS, vS))
    e("    v_exp_f32 v%d, v%d" % (vS + 1, vS + 1))
    e("    s_nop 0")
    e("    v_add_f32 v%d, v%d, v%d" % (vL, vL, vS))
    e("    v_add_f32 v%d, v%d, v%d" % (vL, vL, vS + 1))
    for jj in range(6):
        pv(jj, jj // 3, VW)
        if jj == 2:
            e("    ds_read_b64 v[%d:%d], v%d offset:64" % (vS2, vS2 + 1, vSA))
            e("    v_add_u32 v%d, 64, v%d" % (vSA, vSA))
            ahead()
    trace()
    e("    s_cmp_lt_u32 s%d, s%d" % (sNB, sLIM))
    e("    s_cbranch_scc1 L_v")
    e("    s_cmp_lg_u32 s%d, %d" % (sR, RND - 1))
    e("    s_cbranch_scc1 L_dump")
    e("    s_cmp_ge_u32 s%d, %d" % (sNB, TPH))
    e("    s_cbranch_scc1 L_dump")
    e("L_t:")
    e("    s_cmp_lt_u32 s%d, %d" % (sG, TPH))
    e("    s_cselect_b32 s%d, 0, 0xff800000" % sBIAS)
    e("    s_waitcnt lgkmcnt(1)")
    e("    v_readfirstlane_b32 s%d, v%d" % (sNB, vNB2))
    e("    s_cmp_eq_u32 s%d, -1" % sNB)
    e("    s_cbranch_scc1 L_tw")
    e("L_tok:")
    next_off8()
    for jj in range(3):
        e("    s_waitcnt vmcnt(%s)" % TW[jj])
        dots4(jj, (vS, vT), jj == 0)
        load(jj)
    ahead()
    e("    v_add_f32 v%d, v%d, v%d" % (vS, vS, vT))
    e("    s_nop 1")
    for pat in ("quad_perm:[1,0,3,2]", "quad_perm:[2,3,0,1]", "row_half_mirror"):
        e("    v_add_f32_dpp v%d, v%d, v%d %s row_mask:0xf bank_mask:0xf" % (vS, vS, vS, pat))
        if pat != "row_half_mirror": e("    s_nop 1")
    e("    v_add_f32 v%d, s%d, v%d" % (vS, sBIAS, vS))
    e("    v_max_f32 v%d, v%d, v%d" % (vM, vM, vS))
    e("    v_mov_b32 v%d, v%d" % (vA, vMC))
    e("    v_mul_f32 v%d, s%d, v%d" % (vMC, sC, vM))
    e("    v_sub_f32 v%d, v%d, v%d" % (vA, vA, vMC))
    e("    v_fma_f32 v%d, v%d, s%d, -v%d" % (vS, vS, sC, vMC))
    e("    v_exp_f32 v%d, v%d" % (vA, vA))
    e("    v_exp_f32 v%d, v%d" % (vS, vS))
    for i in range(12):
        e("    v_pk_mul_f32 v[%d:%d], v[%d:%d], v[%d:%d] op_sel:[0,1] op_sel_hi:[1,1]" %
          (vO + 2 * i, vO + 2 * i + 1, vO + 2 * i, vO + 2 * i + 1, vA - 1, vA))
    e("    v_fma_f32 v%d, v%d, v%d, v%d" % (vL, vL, vA, vS))
    for jj in range(3, 6): pv(jj, 0, TW)
    trace()
    e("    s_cmp_lt_u32 s%d, %d" % (sNB, TPH))
    e("    s_cbranch_scc1 L_t")
    e("L_dump:")
    vZ = vT; vMX = vT + 3; t0 = vT + 4; vLX = vT + 5; t1 = vT + 6
    e("    v_max_f32_dpp v%d, v%d, v%d row_ror:8 row_mask:0xf bank_mask:0xf" % (vMX, vMC, vMC))
    e("    v_mov_b32 v%d, s%d" % (t1, sT3))
    for sw in ("v_permlane16_swap_b32", "v_permlane32_swap_b32"):
        e("    v_mov_b32 v%d, v%d" % (t0, vMX))
        e("    s_nop 1")
        e("    %s v%d, v%d" % (sw, vMX, t0))
        e("    s_nop 0")
        e("    v_max_f32 v%d, v%d, v%d" % (vMX, vMX, t0))
    e("    v_sub_f32 v%d, v%d, v%d" % (vA, vMC, vMX))
    e("    v_exp_f32 v%d, v%d" % (vA, vA))
    e("    s_xor_b32 s%d, s%d, %d" % (sT3, sT3, DLO ^ (DLO + NW * 4)) if (DLO % (2 * NW * 4) == 0) else "    s_nop 0")
    e("    v_mul_f32 v%d, v%d, v%d" % (vL, vL, vA))
    for i in range(12):
        e("    v_pk_mul_f32 v[%d:%d], v[%d:%d], v[%d:%d] op_sel:[0,1] op_sel_hi:[1,1]" %
          (vO + 2 * i, vO + 2 * i + 1, vO + 2 * i, vO + 2 * i + 1, vA - 1, vA))
    e("    v_add_f32_dpp v%d, v%d, v%d row_ror:8 row_mask:0xf bank_mask:0xf" % (vLX, vL, vL))
    for j in range(3):
        for ee in range(4):
            a = vO + j * 8 + ee
            e("    v_permlane32_swap_b32 v%d, v%d" % (a, a + 4))
    e("    v_mov_b32 v%d, v%d" % (t0, vLX))
    for j in range(3):
        for ee in range(4):
            a = vO + j * 8 + ee
            e("    v_add_f32 v%d, v%d, v%d" % (a, a, a + 4))
    e("    v_permlane16_swap_b32 v%d, v%d" % (vLX, t0))
    for j in range(3):
        for ee in range(2):
            a = vO + j * 8 + ee
            e("    v_permlane16_swap_b32 v%d, v%d" % (a, a + 2))
    e("    v_add_f32 v%d, v%d, v%d" % (vLX, vLX, t0))
    for j in range(3):
        for ee in range(2):
            a = vO + j * 8 + ee
            e("    v_add_f32 v%d, v%d, v%d" % (a, a, a + 2))
    e("    v_mov_b32 v%d, v%d" % (t0, vLX))
    e("    s_add_u32 s%d, s%d, 1" % (sR, sR))
    for j in range(3):
        a = vO + j * 8
        e("    v_add_f32_dpp v%d, v%d, v%d row_ror:8 row_mask:0xf bank_mask:0x3" % (vZ + j, a, a))
    e("    v_permlane32_swap_b32 v%d, v%d" % (vLX, t0))
    for j in range(3):
        a = vO + j * 8
        e("    v_add_f32_dpp v%d, v%d, v%d row_ror:8 row_mask:0xf bank_mask:0xc" % (vZ + j, a + 1, a + 1))
    e("    v_add_f32 v%d, v%d, v%d" % (vLX, vLX, t0))
    e("    ds_write_b128 v%d, v[%d:%d]" % (vDA, vZ, vZ + 3))
    e("    ds_write_b32 v%d, v%d" % (t1, vLX))
    e("    v_add_u32 v%d, s%d, v%d" % (vDA, sT2, vDA))
    e("    s_sub_u32 s%d, 0, s%d" % (sT2, sT2))
    e("    s_add_u32 s%d, s%d, %d" % (sHO, sHO, W * HEADB))
    e("    s_waitcnt lgkmcnt(0)")
    e("    s_barrier")
    e("    s_cmp_eq_u32 s%d, %d" % (sR, RND))
    e("    s_cbranch_scc1 L_fin")
    init_state()
    e("    s_branch L_vround")
    assert DLO % (2 * NW * 4) == 0
    e("L_klast:")
    e("    s_add_u32 s%d, s%d, %d" % (sTMP, sHO, W * HEADB))
    e("    s_cmp_lg_u32 s%d, %d" % (sR, RND - 1))
    e("    s_cbranch_scc1 L_klast2")
    e("    s_sub_u32 s%d, s%d, %d" % (sTMP, sHO, (RND - 1) * W * HEADB))
    e("    s_mov_b64 s[16:17], s[8:9]")
    e("    s_mov_b64 s[20:21], s[8:9]")
    e("L_klast2:")
    next_off16(sL0, sTMP)
    e("    s_branch L_kgo")
    e("L_vlast:")
    e("    s_cmp_eq_u32 s%d, %d" % (sR, RND - 1))
    e("    s_cbranch_scc1 L_vlast2")
    e("    s_add_u32 s%d, s%d, %d" % (sTMP, sHO, W * HEADB))
    next_off16(sL0, sTMP)
    e("    s_branch L_vgo")
    e("L_vlast2:")
    e("    s_mov_b64 s[16:17], s[6:7]")
    e("    v_mov_b32 v%d, %d" % (vLA, TLO))
    e("    s_mov_b32 s%d, -1" % sNB)
    waitent("z")
    e("L_zok:")
    next_off8()
    e("    s_branch L_vgo")
    waitent("k")
    waitent("t")

    e("L_fin:")
    e("    s_cmp_ge_u32 s%d, %d" % (sIDX, RND))
    e("    s_cbranch_scc1 L_done")
    e("    s_cmp_ge_u32 s%d, %d" % (sWAVE, NWC))
    e("    s_cbranch_scc1 L_done")
    cA = vT; cB = vT + 1; cT = vT + 2; cB0 = vT + 3; cMX = vT + 4; cLX = vT + 5; cW = vT + 6; cLB = vT + 7
    cM = vQ; cACC = vQ + 4; cO = vQ + 8; cX = vX
    e("    v_mov_b32 v%d, %d" % (cT, NONO))
    e("    ds_read_b32 v%d, v%d" % (cT, cT))
    e("    s_mul_i32 s%d, s%d, %d" % (sHEAD, sIDX, W))
    e("    s_add_u32 s%d, s%d, s%d" % (sHEAD, sHEAD, sCOL))
    e("    v_lshlrev_b32 v%d, 4, v%d" % (cLB, vLANE))
    e("    s_lshl_b32 s%d, s%d, %d" % (sTMP, sHEAD, LOGP + 4))
    e("    s_add_u32 s%d, s%d, 0x%x" % (sTMP, sTMP, MLG))
    e("    s_mul_i32 s%d, s%d, %d" % (sCNT, sWAVE, RPW * 16))
    e("    v_add_u32 v%d, s%d, v%d" % (cA, sCNT, cLB))
    e("    v_and_b32 v%d, %d, v%d" % (cA, PER * 16 - 1, cA))
    e("    v_add_u32 v%d, s%d, v%d" % (cA, sTMP, cA))
    e("    s_lshl_b32 s%d, s%d, %d" % (sTMP, sHEAD, LOGP + 10))
    e("    s_mul_i32 s%d, s%d, %d" % (sCNT, sWAVE, RPW * 1024))
    e("    s_add_u32 s%d, s%d, s%d" % (sCNT, sCNT, sTMP))
    e("    v_add_u32 v%d, s%d, v%d" % (cB0, sCNT, cLB))
    e("    v_and_b32 v%d, 7, v%d" % (cO, vLANE))
    e("    v_lshlrev_b32 v%d, 4, v%d" % (cO, cO))
    e("    v_lshrrev_b32 v%d, 3, v%d" % (cW, vLANE))
    e("    v_lshl_add_u32 v%d, v%d, 1, v%d" % (cO, cW, cO))
    e("    s_mul_i32 s%d, s%d, %d" % (sTMP, sHEAD, ROWB))
    e("    v_add_u32 v%d, s%d, v%d" % (cO, sTMP, cO))
    e("    s_lshl_b32 s%d, s%d, 10" % (sTMP, sWAVE))
    e("    s_add_u32 s%d, s%d, %d" % (sTMP, sTMP, MRG))
    e("    v_add_u32 v%d, s%d, v%d" % (cW, sTMP, cLB))
    e("    s_waitcnt vmcnt(0) lgkmcnt(0)")
    e("    v_readfirstlane_b32 s%d, v%d" % (sNON, cT))
    e("    s_mov_b32 s%d, 0x%x" % (sN, SPIN))
    e("L_poll1:")
    e("    s_sub_u32 s%d, s%d, 1" % (sN, sN))
    e("    s_cbranch_scc1 L_done")
    e("    global_load_dwordx4 v[%d:%d], v%d, s[14:15] sc1" % (cM, cM + 3, cA))
    e("    s_waitcnt vmcnt(0)")
    e("    v_cmp_eq_u32 vcc, s%d, v%d" % (sNON, cM + 3))
    if PER < 64:
        e("    s_and_b32 vcc_hi, vcc_hi, 0" if PER == 32 else "    s_and_b64 vcc, vcc, 0x%x" % ((1 << PER) - 1))
    e("    s_bcnt1_i32_b64 s%d, vcc" % sTMP)
    e("    s_cmp_lt_u32 s%d, %d" % (sTMP, PER - THR))
    e("    s_cbranch_scc1 L_poll1")
    if STAMP: e("    s_memrealtime s[42:43]")
    e("L_poll2:")
    e("    s_sub_u32 s%d, s%d, 1" % (sN, sN))
    e("    s_cbranch_scc1 L_done")
    e("    v_mov_b32 v%d, v%d" % (cB, cB0))
    e("    global_load_dwordx4 v[%d:%d], v%d, s[14:15] sc1" % (cM, cM + 3, cA))
    for j in range(RPW):
        e("    global_load_dwordx4 v[%d:%d], v%d, s[14:15] offset:%d sc1" % (cX + 4 * j, cX + 4 * j + 3, cB, (j % 4) * 1024))
        if j % 4 == 3 and j + 1 < RPW:
            e("    v_add_u32 v%d, 4096, v%d" % (cB, cB))
    e("    s_waitcnt vmcnt(%d)" % RPW)
    e("    v_cmp_ne_u32 s[%d:%d], s%d, v%d" % (sBAD, sBAD + 1, sNON, cM + 3))
    e("    v_mov_b32 v%d, v%d" % (cMX, cM))
    e("    s_cmp_lg_u64 s[%d:%d], 0" % (sBAD, sBAD + 1))
    e("    s_cbranch_scc1 L_retry")
    if STAMP: e("    s_memrealtime s[44:45]")
    def allreduce(op, r, t):
        e("    s_nop 1")
        for pat in ("quad_perm:[1,0,3,2]", "quad_perm:[2,3,0,1]", "row_half_mirror", "row_ror:8"):
            e("    %s_dpp v%d, v%d, v%d %s row_mask:0xf bank_mask:0xf" % (op, r, r, r, pat))
            e("    s_nop 1")
        for sw in ("v_permlane16_swap_b32", "v_permlane32_swap_b32"):
            e("    v_mov_b32 v%d, v%d" % (t, r))
            e("    s_nop 1")
            e("    %s v%d, v%d" % (sw, r, t))
            e("    s_nop 0")
            e("    %s v%d, v%d, v%d" % (op, r, r, t))
    allreduce("v_max_f32", cMX, cT)
    e("    v_sub_f32 v%d, v%d, v%d" % (cM, cM, cMX))
    e("    v_exp_f32 v%d, v%d" % (cM, cM))
    if PER < 64:
        e("    v_cmp_gt_u32 vcc, %d, v%d" % (PER, vLANE))
    e("    v_mov_b32 v%d, 0" % cACC)
    e("    v_mul_f32 v%d, v%d, v%d" % (cLX, cM, cM + 1))
    e("    v_mov_b32 v%d, 0" % (cACC + 1))
    if PER < 64:
        e("    v_cndmask_b32 v%d, 0, v%d, vcc" % (cLX, cLX))
    e("    v_mov_b32 v%d, 0" % (cACC + 2))
    steps = []
    for pat in ("quad_perm:[1,0,3,2]", "quad_perm:[2,3,0,1]", "row_half_mirror", "row_ror:8"):
        steps.append("    v_add_f32_dpp v%d, v%d, v%d %s row_mask:0xf bank_mask:0xf" % (cLX, cLX, cLX, pat))
    for sw in ("v_permlane16_swap_b32", "v_permlane32_swap_b32"):
        steps.append("    v_mov_b32 v%d, v%d" % (cT, cLX))
        steps.append("    %s v%d, v%d" % (sw, cLX, cT))
        steps.append("    v_add_f32 v%d, v%d, v%d" % (cLX, cLX, cT))
    steps.append("    v_rcp_f32 v%d, v%d" % (cLX, cLX))
    for j in range(RPW):
        e("    v_readlane_b32 s%d, v%d, %d" % (sW + j, cM, j))
        if j % 2 == 1 and len(steps) > 7: e(steps.pop(0))
    if STAMP: e("    s_memrealtime s[46:47]")
    for j in range(RPW):
        if j % 4 == 0:
            e("    s_waitcnt vmcnt(%d)" % (RPW - 4 - j))
        sp = (sW + j) & ~1; hi = (sW + j) & 1
        e("    v_cmp_ne_u32 vcc, s%d, v%d" % (sNON, cX + 4 * j + 3))
        e("    v_pk_fma_f32 v[%d:%d], v[%d:%d], s[%d:%d], v[%d:%d] op_sel:[0,%d,0] op_sel_hi:[1,%d,1]" %
          (cACC, cACC + 1, cX + 4 * j, cX + 4 * j + 1, sp, sp + 1, cACC, cACC + 1, hi, hi))
        e("    v_fma_f32 v%d, v%d, s%d, v%d" % (cACC + 2, cX + 4 * j + 2, sW + j, cACC + 2))
        if steps: e(steps.pop(0))
        e("    s_or_b64 s[%d:%d], s[%d:%d], vcc" % (sBAD, sBAD + 1, sBAD, sBAD + 1))
    assert not steps
    e("    s_cbranch_scc1 L_poll2")
    if STAMP: e("    s_memrealtime s[48:49]")
    if NWC > 1:
        e("    ds_write_b128 v%d, v[%d:%d]" % (cW, cACC, cACC + 3))
        e("    s_waitcnt lgkmcnt(0)")
        e("    s_barrier")
        e("    s_cmp_lg_u32 s%d, 0" % sWAVE)
        e("    s_cbranch_scc1 L_done")
        for w in range(1, NWC):
            e("    ds_read_b128 v[%d:%d], v%d offset:%d" % (cX + 4 * w, cX + 4 * w + 3, cW, w * 1024))
        for w in range(1, NWC):
            e("    s_waitcnt lgkmcnt(%d)" % (NWC - 1 - w))
            e("    v_pk_add_f32 v[%d:%d], v[%d:%d], v[%d:%d]" % (cACC, cACC + 1, cACC, cACC + 1, cX + 4 * w, cX + 4 * w + 1))
            e("    v_add_f32 v%d, v%d, v%d" % (cACC + 2, cACC + 2, cX + 4 * w + 2))
    for k in range(3):
        e("    v_mul_f32 v%d, v%d, v%d" % (cACC + k, cACC + k, cLX))
    e("    v_cvt_pk_bf16_f32 v%d, v%d, v%d" % (cACC, cACC, cACC + 1))
    e("    v_cvt_pk_bf16_f32 v%d, v%d, v%d" % (cACC + 2, cACC + 2, cACC + 2))
    e("    global_store_short v%d, v%d, s[10:11]" % (cO, cACC))
    e("    global_store_short_d16_hi v%d, v%d, s[10:11] offset:128" % (cO, cACC))
    e("    global_store_short v%d, v%d, s[10:11] offset:256" % (cO, cACC + 2))
    if HOLD and HMODE:
        e("    v_mov_b32 v%d, 0" % cT)
        e("    global_load_dword v%d, v%d, s[12:13] offset:128 sc1" % (cT, cT))
        e("    s_waitcnt vmcnt(0)")
        e("    v_readfirstlane_b32 s%d, v%d" % (sT0, cT))
        if HMODE == 1: e("    s_not_b32 s%d, s%d" % (sT0, sT0))
    if HOLD:
        e("L_hold:")
        e("    s_memrealtime s[50:51]")
        e("    s_waitcnt lgkmcnt(0)")
        e("    s_sub_u32 s50, s50, s%d" % sT0)
        e("    s_cmp_lt_u32 s50, %d" % HOLD)
        e("    s_cbranch_scc1 L_hold")
    if STAMP:
        e("    s_waitcnt vmcnt(0)")
        e("    s_memrealtime s[50:51]")
        e("    s_lshl_b32 s%d, s2, 6" % sTMP)
        e("    s_add_u32 s%d, s%d, 0x1000000" % (sTMP, sTMP))
        e("    v_mov_b32 v%d, s%d" % (cT, sTMP))
        e("    s_waitcnt lgkmcnt(0)")
        e("    v_mov_b32 v%d, s50" % cACC)
        e("    v_mov_b32 v%d, s51" % (cACC + 1))
        e("    s_mov_b64 exec, 1")
        e("    global_store_dwordx2 v%d, v[%d:%d], s[14:15] offset:48" % (cT, cACC, cACC + 1))
        for i in range(4): e("    v_mov_b32 v%d, s%d" % (cX + i, 42 + 2 * i))
        e("    v_add_u32 v%d, 0x8000, v%d" % (cT, cT))
        e("    global_store_dwordx4 v%d, v[%d:%d], s[14:15]" % (cT, cX, cX + 3))
    e("    s_endpgm")
    e("L_retry:")
    e("    s_waitcnt vmcnt(0)")
    e("    s_branch L_poll2")

    e("L_service:")
    vAD = vT; vRA = vT + 1; vGA = vT + 2; vONE = vT + 3; vMX = vT + 4; vLX = vT + 5; t0 = vT + 6; t1 = vT + 7
    vE = vX + 5 * NW + (NW & 1)
    vR0 = vQ; vR1 = vQ + 1; vZERO = vQ + 2; vRL = vQ + 3; vCW = vQ + 4; vML = vQ + 5; vZ = vQ + 6; vG = vQ + 10; vDL = vQ + 14
    e("    v_lshlrev_b32 v%d, 4, v%d" % (vAD, vLANE))
    e("    v_mul_u32_u24 v%d, %d, v%d" % (t0, SST, vLANE))
    e("    v_add_u32 v%d, s%d, v%d" % (t0, sL0, t0))
    e("    v_lshlrev_b32 v%d, 2, v%d" % (t1, vLANE))
    e("    s_mov_b32 exec_lo, 0x%x" % (((1 << (SSF + 1)) - 1) & 0xffffffff))
    e("    s_mov_b32 exec_hi, 0x%x" % (((1 << (SSF + 1)) - 1) >> 32))
    e("    ds_write_b32 v%d, v%d offset:%d" % (t1, t0, LSO))
    e("    s_mov_b64 exec, -1")
    e("    v_cmp_gt_u32 vcc, %d, v%d" % (SSL, vLANE))
    e("    v_mov_b32 v%d, -1" % vONE)
    e("    v_mov_b32 v%d, 0" % vZERO)
    e("    v_cndmask_b32 v%d, -1, v%d, vcc" % (t0, t0))
    e("    ds_write_b32 v%d, v%d offset:%d" % (t1, t0, LLO))
    for k in range(64, LLN + TLN, 64):
        e("    ds_write_b32 v%d, v%d offset:%d" % (t1, vONE, LLO + 4 * k))
    e("    v_and_b32 v%d, 12, v%d" % (t1, t1))
    e("    ds_write_b32 v%d, v%d offset:%d" % (t1, vZERO, PO))
    e("    s_mul_i32 s%d, s%d, %d" % (sTMP, sCOL, ROWB))
    e("    v_add_u32 v%d, s%d, v%d" % (vRA, sTMP, vAD))
    e("    s_waitcnt lgkmcnt(0)")
    e("    v_mov_b32 v%d, 1" % vONE)
    e("    s_barrier")
    e("    s_mov_b64 exec, 0xffffff")
    for r in range(1, RND):
        e("    v_add_u32 v%d, %d, v%d" % (vRA, W * ROWB, vRA))
        e("    global_load_dwordx4 v[%d:%d], v%d, s[4:5]" % (vX + 4 * r, vX + 4 * r + 3, vRA))
    e("    s_waitcnt vmcnt(0)")
    for r in range(1, RND):
        e("    ds_write_b128 v%d, v[%d:%d] offset:%d" % (vAD, vX + 4 * r, vX + 4 * r + 3, QO + r * ROWB))
    e("    s_mov_b64 exec, -1")
    e("    s_lshl_b32 s%d, s%d, %d" % (sTMP, sCOL, LOGP))
    e("    s_add_u32 s%d, s%d, s%d" % (sTMP, sTMP, sIDX))
    e("    s_lshl_b32 s%d, s%d, 10" % (sCNT, sTMP))
    e("    v_add_u32 v%d, s%d, v%d" % (vRA, sCNT, vAD))
    e("    s_lshl_b32 s%d, s%d, 4" % (sCNT, sTMP))
    e("    s_add_u32 s%d, s%d, 0x%x" % (sCNT, sCNT, MLG))
    e("    v_mul_u32_u24 v%d, %d, v%d" % (vGA, NWG * 16, vLANE))
    e("    v_add_u32 v%d, s%d, v%d" % (vGA, sCNT, vGA))
    e("    s_lshr_b32 s%d, s%d, 3" % (sNT, sIDX))
    e("    s_and_b32 s%d, s%d, %d" % (sNT, sNT, S - 1))
    e("    s_mul_i32 s%d, s%d, %d" % (sTMP, sCOL, S))
    e("    s_add_u32 s%d, s%d, s%d" % (sTMP, sTMP, sNT))
    e("    s_mul_i32 s%d, s%d, %d" % (sNT, sNT, NW))
    e("    s_lshl_b32 s%d, s%d, 8" % (sTMP, sTMP))
    e("    s_add_u32 s%d, s%d, 0x%x" % (sTMP, sTMP, CTR_OFF))
    e("    v_mov_b32 v%d, s%d" % (vCW, sTMP))
    e("    s_mov_b32 s%d, 0" % sR)
    e("    s_mov_b32 s%d, %d" % (sT2, SLOTB))
    e("    v_add_u32 v%d, %d, v%d" % (vDA, DO, vAD))
    e("    v_mov_b32 v%d, %d" % (vDL, DLO))
    e("    v_add_u32 v%d, %d, v%d" % (vRL, RECO, vAD))
    e("    v_mov_b32 v%d, %d" % (vML, MLO))
    e("    v_mov_b32 v%d, 0" % (vG + 2))
    def ph():
        if PH:
            e("    s_memrealtime s[50:51]")
            e("    s_waitcnt lgkmcnt(0)")
            e("    v_mov_b32 v%d, s50" % (vTR + 1))
            e("    global_store_dword v%d, v%d, s[14:15]" % (vTR, vTR + 1))
            e("    v_add_u32 v%d, 4, v%d" % (vTR, vTR))
    if PH:
        e("    s_lshl_b32 s52, s2, 8")
        e("    s_add_u32 s52, s52, 0x1100000")
        e("    v_mov_b32 v%d, s52" % vTR)
        e("    v_mov_b32 v%d, s%d" % (vTR + 1, sT0))
        e("    s_mov_b64 exec, 1")
        e("    global_store_dword v%d, v%d, s[14:15]" % (vTR, vTR + 1))
        e("    v_add_u32 v%d, 4, v%d" % (vTR, vTR))
        e("    s_mov_b64 exec, -1")
    def elect(tag):
        e("    s_mov_b64 exec, 1")
        e("    global_atomic_add v%d, v%d, v%d, s[12:13] sc0" % (t0, vZERO, vONE))
        e("    s_memrealtime s[50:51]")
        e("    s_waitcnt vmcnt(0) lgkmcnt(0)")
        e("    v_readfirstlane_b32 s%d, v%d" % (sTMP, t0))
        e("    s_mov_b64 exec, -1")
        e("    s_cmp_lg_u32 s%d, 0" % sTMP)
        e("    s_cbranch_scc1 L_lost%s" % tag)
        e("    v_lshlrev_b32 v%d, 8, v%d" % (t0, vLANE))
        e("    v_add_u32 v%d, 0x%x, v%d" % (t0, CTR_OFF, t0))
        e("    s_or_b32 s50, s50, 1")
        e("    v_mov_b32 v%d, s50" % t1)
        e("    global_store_dword v%d, v%d, s[14:15] sc1" % (t0, vZERO))
        e("    s_waitcnt vmcnt(0)")
        e("    global_store_dword v%d, v%d, s[12:13] offset:64 sc1" % (vZERO, t1))
        e("L_lost%s:" % tag)
    if HMODE:
        e("    v_mov_b32 v%d, s%d" % (t0, sT0))
        if HMODE == 1: e("    v_not_b32 v%d, v%d" % (t0, t0))
        e("    s_mov_b64 exec, 1")
        e("    global_atomic_umax v%d, v%d, s[12:13] offset:128" % (vZERO, t0))
        e("    s_mov_b64 exec, -1")
    e("    s_cmp_lg_u32 s2, 0")
    e("    s_cbranch_scc1 L_lostA")
    elect("A")
    e("    s_waitcnt lgkmcnt(0)")
    e("    s_barrier")
    if PH:
        e("    s_mov_b64 exec, 1")
        ph()
        e("    s_mov_b64 exec, -1")
    e("    global_load_dword v%d, v%d, s[12:13] offset:64 sc1" % (t0, vZERO))
    e("    s_waitcnt vmcnt(0)")
    e("    v_readfirstlane_b32 s%d, v%d" % (sNON, t0))
    e("    s_cmp_lg_u32 s%d, 0" % sNON)
    e("    s_cbranch_scc1 L_ready")
    elect("B")
    e("    s_mov_b32 s%d, 0x%x" % (sN, SPIN))
    e("L_spinf:")
    e("    s_sub_u32 s%d, s%d, 1" % (sN, sN))
    e("    s_cbranch_scc1 L_ready")
    e("    global_load_dword v%d, v%d, s[12:13] offset:64 sc1" % (t0, vZERO))
    e("    s_waitcnt vmcnt(0)")
    e("    v_readfirstlane_b32 s%d, v%d" % (sNON, t0))
    e("    s_cmp_eq_u32 s%d, 0" % sNON)
    e("    s_cbranch_scc1 L_spinf")
    e("L_ready:")
    e("    v_mov_b32 v%d, s%d" % (vZ + 3, sNON))
    e("    v_mov_b32 v%d, s%d" % (vG + 3, sNON))
    e("    ds_write_b32 v%d, v%d offset:%d" % (vZERO, vZ + 3, NONO))
    e("    s_mov_b32 s%d, %d" % (sLIM, LIML))
    e("    s_add_u32 s%d, s%d, %d" % (sBASE, sNT, SSL * SST))
    e("    v_mov_b32 v%d, %d" % (vLA, LLO + 4 * SSL))
    e("    s_mov_b32 s%d, %d" % (sCAP, CAP))
    e("    s_mov_b32 s%d, %d" % (sNEED, (RND - 1) * SSF + SSL - 1 - LOOK))
    e("L_seq:")
    e("    s_mov_b64 exec, 1")
    ph()
    e("L_sls:")
    e("    ds_read_b128 v[%d:%d], v%d offset:%d" % (vX, vX + 3, vZERO, PO))
    e("    s_waitcnt lgkmcnt(0)")
    e("    v_max3_u32 v%d, v%d, v%d, v%d" % (t0, vX, vX + 1, vX + 2))
    e("    v_max_u32 v%d, v%d, v%d" % (t0, t0, vX + 3))
    e("    s_nop 0")
    e("    v_readfirstlane_b32 s%d, v%d" % (sP, t0))
    e("    s_cmp_ge_u32 s%d, s%d" % (sP, sNEED))
    e("    s_cbranch_scc1 L_grab")
    e("    s_sleep %d" % SLP)
    e("    s_branch L_sls")
    e("L_grab:")
    e("    s_mov_b32 s%d, %d" % (sM1, TPH))
    e("    s_sub_u32 s%d, s%d, 1" % (sCAP, sCAP))
    e("    s_cbranch_scc1 L_got")
    e("    global_atomic_add v%d, v%d, v%d, s[14:15] sc0" % (vR0, vCW, vONE))
    e("    s_waitcnt vmcnt(0)")
    e("    v_readfirstlane_b32 s%d, v%d" % (sM1, vR0))
    e("    s_min_u32 s%d, s%d, %d" % (sM1, sM1, TPH))
    e("L_got:")
    e("    s_mul_i32 s%d, s%d, %d" % (sM1, sM1, NW * S))
    e("    s_add_u32 s%d, s%d, s%d" % (sM1, sM1, sBASE))
    e("    v_mov_b32 v%d, s%d" % (t0, sM1))
    e("    ds_write_b32 v%d, v%d" % (vLA, t0))
    e("    v_add_u32 v%d, 4, v%d" % (vLA, vLA))
    e("    s_add_u32 s%d, s%d, 1" % (sNEED, sNEED))
    e("    s_cmp_lt_u32 s%d, s%d" % (sM1, sLIM))
    e("    s_cbranch_scc1 L_sls")
    e("L_slsend:")
    ph()
    e("    s_mov_b64 exec, -1")
    e("    s_cmp_eq_u32 s%d, %d" % (sLIM, TPH))
    e("    s_cbranch_scc1 %s" % ("L_early" if EARLY else "L_sdump"))
    e("L_svround:")
    e("    s_cmp_lg_u32 s%d, %d" % (sR, RND - 1))
    e("    s_cbranch_scc1 L_sdump")
    e("    s_mov_b32 s%d, %d" % (sLIM, TPH))
    e("    s_add_u32 s%d, s%d, %d" % (sBASE, sNT, 2 * LIML))
    e("    s_mov_b32 s%d, %d" % (sCAP, NUT))
    e("    v_add_u32 v%d, %d, v%d" % (vCW, W * S * 256, vCW))
    e("    v_mov_b32 v%d, %d" % (vLA, TLO))
    e("    s_lshl_b32 s%d, s%d, 1" % (sNEED, sNEED))
    e("    s_add_u32 s%d, s%d, %d" % (sNEED, sNEED, LOOK - 1))
    e("    s_branch L_seq")
    if EARLY:
        e("L_early:")
        e("    v_min_u32 v%d, %d, v%d" % (t1, (RND - 2) * 16, vAD))
        e("    ds_read_b128 v[%d:%d], v%d offset:%d" % (vE, vE + 3, t1, MLO))
        for r in range(RND - 1):
            e("    ds_read_b128 v[%d:%d], v%d offset:%d" % (vE + 4 + 4 * r, vE + 4 + 4 * r + 3, vAD, RECO + r * 1024))
        e("    s_mov_b64 exec, %d" % ((1 << (RND - 1)) - 1))
        e("    s_waitcnt lgkmcnt(%d)" % (RND - 1))
        e("    global_store_dwordx4 v%d, v[%d:%d], s[14:15] sc1" % (vGA, vE, vE + 3))
        e("    s_mov_b64 exec, -1")
        for r in range(RND - 1):
            e("    s_waitcnt lgkmcnt(%d)" % (RND - 2 - r))
            e("    global_store_dwordx4 v%d, v[%d:%d], s[14:15] sc1" % (vRA, vE + 4 + 4 * r, vE + 4 + 4 * r + 3))
            e("    v_add_u32 v%d, %d, v%d" % (vRA, NWG * 1024, vRA))
    e("L_sdump:")
    e("    s_waitcnt lgkmcnt(0)")
    e("    s_barrier")
    if PH:
        e("    s_mov_b64 exec, 1")
        ph()
        e("    s_mov_b64 exec, -1")
    if STAMP:
        e("    s_memrealtime s[%d:%d]" % (sT0 + 2, sT0 + 3))
    vY = vX + 4 * NW
    for w in range(NW):
        e("    ds_read_b128 v[%d:%d], v%d offset:%d" % (vX + 4 * w, vX + 4 * w + 3, vDA, w * 1024))
    for w in range(NW):
        e("    ds_read_b32 v%d, v%d offset:%d" % (vY + w, vDL, w * 4))
    e("    v_add_u32 v%d, s%d, v%d" % (vDA, sT2, vDA))
    e("    s_sub_u32 s%d, 0, s%d" % (sT2, sT2))
    e("    v_xor_b32 v%d, %d, v%d" % (vDL, DLO ^ (DLO + NW * 4), vDL))
    e("    s_add_u32 s%d, s%d, 1" % (sR, sR))
    e("    s_waitcnt lgkmcnt(%d)" % (0 if STAMP else NW))
    e("    v_max_f32 v%d, v%d, v%d" % (vG, vX + 3, vX + 7))
    for w in range(2, NW):
        e("    v_max_f32 v%d, v%d, v%d" % (vG, vG, vX + 4 * w + 3))
    for w in range(NW):
        e("    v_sub_f32 v%d, v%d, v%d" % (vX + 4 * w + 3, vX + 4 * w + 3, vG))
    for w in range(NW):
        e("    v_exp_f32 v%d, v%d" % (vX + 4 * w + 3, vX + 4 * w + 3))
    e("    s_waitcnt lgkmcnt(0)")
    for k in range(3):
        e("    v_mul_f32 v%d, v%d, v%d" % (vZ + k, vX + k, vX + 3))
    e("    v_mul_f32 v%d, v%d, v%d" % (vG + 1, vY, vX + 3))
    for w in range(1, NW):
        for k in range(3):
            e("    v_fma_f32 v%d, v%d, v%d, v%d" % (vZ + k, vX + 4 * w + k, vX + 4 * w + 3, vZ + k))
        e("    v_fma_f32 v%d, v%d, v%d, v%d" % (vG + 1, vY + w, vX + 4 * w + 3, vG + 1))
    e("    s_cmp_eq_u32 s%d, %d" % (sR, RND))
    e("    s_cbranch_scc1 L_final")
    e("    ds_write_b128 v%d, v[%d:%d]" % (vRL, vZ, vZ + 3))
    e("    ds_write_b128 v%d, v[%d:%d]" % (vML, vG, vG + 3))
    e("    v_add_u32 v%d, 1024, v%d" % (vRL, vRL))
    e("    v_add_u32 v%d, 16, v%d" % (vML, vML))
    e("    s_branch L_svround")
    e("L_final:")
    if EARLY:
        e("    global_store_dwordx4 v%d, v[%d:%d], s[14:15] sc1" % (vRA, vZ, vZ + 3))
        e("    s_mov_b64 exec, %d" % (1 << (RND - 1)))
        e("    global_store_dwordx4 v%d, v[%d:%d], s[14:15] sc1" % (vGA, vG, vG + 3))
        if STAMP: e("    s_mov_b64 exec, -1")
    else:
        e("    v_add_u32 v%d, %d, v%d" % (t0, (RND - 1) * NWG * 1024, vRA))
        e("    global_store_dwordx4 v%d, v[%d:%d], s[14:15] sc1" % (t0, vZ, vZ + 3))
        e("    ds_write_b128 v%d, v[%d:%d]" % (vML, vG, vG + 3))
        e("    v_min_u32 v%d, %d, v%d" % (t1, (RND - 1) * 16, vAD))
        e("    ds_read_b128 v[%d:%d], v%d offset:%d" % (vX, vX + 3, t1, MLO))
        for r in range(RND - 1):
            e("    ds_read_b128 v[%d:%d], v%d offset:%d" % (vX + 4 + 4 * r, vX + 4 + 4 * r + 3, vAD, RECO + r * 1024))
        e("    s_mov_b64 exec, %d" % ((1 << RND) - 1))
        e("    s_waitcnt lgkmcnt(%d)" % (RND - 1))
        e("    global_store_dwordx4 v%d, v[%d:%d], s[14:15] sc1" % (vGA, vX, vX + 3))
        e("    s_mov_b64 exec, -1")
        for r in range(RND - 1):
            e("    s_waitcnt lgkmcnt(%d)" % (RND - 2 - r))
            e("    global_store_dwordx4 v%d, v[%d:%d], s[14:15] sc1" % (vRA, vX + 4 + 4 * r, vX + 4 + 4 * r + 3))
            if r + 2 < RND:
                e("    v_add_u32 v%d, %d, v%d" % (vRA, NWG * 1024, vRA))
    if STAMP:
        e("    s_memrealtime s[%d:%d]" % (sT0 + 4, sT0 + 5))
        e("    s_waitcnt vmcnt(0)")
        e("    s_memrealtime s[%d:%d]" % (sT0 + 6, sT0 + 7))
        e("    s_getreg_b32 s%d, hwreg(HW_REG_XCC_ID)" % (sT0 + 8))
        e("    s_getreg_b32 s%d, hwreg(HW_REG_HW_ID)" % (sT0 + 9))
        e("    s_waitcnt lgkmcnt(0)")
        for i in range(10):
            e("    v_mov_b32 v%d, s%d" % (vX + i, sT0 + i))
        e("    v_mov_b32 v%d, s%d" % (vX + 10, sT0 + 6))
        e("    v_mov_b32 v%d, s%d" % (vX + 11, sT0 + 7))
        e("    s_lshl_b32 s%d, s2, 6" % (sT0))
        e("    s_add_u32 s%d, s%d, 0x1000000" % (sT0, sT0))
        e("    v_mov_b32 v%d, s%d" % (t1, sT0))
        e("    s_mov_b64 exec, 1")
        e("    global_store_dwordx4 v%d, v[%d:%d], s[14:15]" % (t1, vX, vX + 3))
        e("    global_store_dwordx4 v%d, v[%d:%d], s[14:15] offset:16" % (t1, vX + 4, vX + 7))
        e("    global_store_dwordx4 v%d, v[%d:%d], s[14:15] offset:32" % (t1, vX + 8, vX + 11))
    e("L_done:")
    e("    s_endpgm")
    e('.section .rodata,"a"')
    e(".p2align 6")
    e(".amdhsa_kernel %s" % KNAME)
    e("  .amdhsa_next_free_vgpr %d" % NVGPR)
    e("  .amdhsa_next_free_sgpr %d" % NSGPR)
    e("  .amdhsa_accum_offset %d" % ((NVGPR + 3) // 4 * 4))
    e("  .amdhsa_group_segment_fixed_size 0")
    e("  .amdhsa_kernarg_size 48")
    e("  .amdhsa_user_sgpr_count 2")
    e("  .amdhsa_user_sgpr_kernarg_segment_ptr 1")
    e("  .amdhsa_system_sgpr_workgroup_id_x 1")
    e("  .amdhsa_float_denorm_mode_32 3")
    e(".end_amdhsa_kernel")
    return "\n".join(o) + "\n"

if __name__ == "__main__":
    ap = argparse.ArgumentParser()
    ap.add_argument("-o", default="standalone__mha_softmax__decode.s")
    for k, d in dict(W=4, NW=4, SSL=4, TP=640, CAP=8, THR=3, NWC=4, LOOK=2, SLP=4, S=2, STAMP=0, TRACE=0, HOLD=0, HMODE=0, SPROBE=0, LIN=0, EARLY=1, PH=0).items():
        ap.add_argument("--" + k, type=int, default=d)
    ap.add_argument("--POL", default="nt")
    for k, d in (("KW", "545454"), ("VW", "554555"), ("TW", "555555")): ap.add_argument("--" + k, default=d)
    a = vars(ap.parse_args())
    out = a.pop("o")
    open(out, "w").write(gen(**a))
    print("wrote", out)
```

```python
import math, struct, sys, argparse
H = 32; SK = 32768; D = 192
ROWB = D * 2
HEADB = SK * ROWB
NWG = 256
TB = 8 * ROWB
TPH = SK // 8

def f32hex(x):
    return "0x%08x" % struct.unpack("<I", struct.pack("<f", x))[0]

HEADER = """; Kernarg layout for this problem (48 bytes, ptrs only, base s[0:1]):
"""


DOC = """;
;
; Work split.  256 workgroups = %(W)d columns x %(PER)d; round r (0..%(RL)d) covers heads r*%(W)d+col, so the whole chip sweeps a
;
"""

def gen(W=4, NW=4, SSL=4, TP=640, CAP=8, THR=3, NWC=4, LOOK=2, SLP=0, S=2, KW="545454", VW="554555", TW="555555", POL="nt", STAMP=0, TRACE=0, HOLD=0, HMODE=0, SPROBE=0, LIN=0, EARLY=1, PH=0, QKF=0, WARM=0,
        KNAME="standalone__mha_softmax__decode_kernel"):
    o = []
    e = o.append
    PER = NWG // W; RND = H // W
    LOGP = int(math.log2(PER))
    TB2 = 2 * TB; TPH2 = SK // 16
    TOTB = H * HEADB
    SST = PER * NW
    SSF = TPH2 // SST
    LA = 3
    LIML = TPH2 - TP
    assert SSF * SST == TPH2 and SSF < 63 and RND >= 2
    assert SSL * SST <= LIML and SSL >= 2 and LOOK >= 1
    assert CAP * (PER // S) >= -(-(LIML - SSL * SST) // (NW * S)), "cap too small to cover the dynamic units"
    NUT = -(-(2 * TP) // (NW * S))
    RPW = PER // NWC
    assert NW >= NWC and PER <= 64 and RPW % 4 == 0 and 2 * W * S <= 64 and PER // 8 >= S
    pol = (" " + POL) if POL else ""
    C = (D ** -0.5) * math.log2(math.e)
    QO = 0
    NONO = RND * ROWB
    MLO = (NONO + 16 + 15) // 16 * 16
    LSO = MLO + RND * 16
    LLO = LSO + (SSF + 2) * 4
    LLN = max(SSL + CAP + 1, SSF + 1)
    TLO = LLO + LLN * 4
    TLN = NUT + 1
    PO = (TLO + TLN * 4 + 15) // 16 * 16
    assert NW == 4
    DLO = (PO + 16 + 63) // 64 * 64
    DO = (DLO + 2 * NW * 4 + 1023) // 1024 * 1024
    SLOTB = NW * 1024
    RECO = DO + 2 * SLOTB
    SCO = RECO + (RND - 1) * 1024
    SCR = (SSF + 1) * 64
    SCW = (RND - 1) * SCR + (SSL + CAP + 1) * 64
    LDS = SCO + NW * SCW
    MRG = DO + (RND & 1) * SLOTB
    assert LDS <= 64 * 1024 and NWC * 1024 <= SLOTB
    CTR_OFF = 0x800000
    MLG = 0x400000
    OOB = 0xF0000000
    SPIN = 0x100000

    vLANE = 0; vOFF = 1; vM = 2; vNB = 3; vA = 3; vS = 4
    vT = 6; vQ = 14; vO = 28; vMC = 52; vL = 53
    vDA = 54; vQA = 55; vTR = 56; vSA = 57; vLA = 58; vS0 = 59; vPA = 26; vP = 27; vS2 = 84; vNB2 = 86; vQF = 88; vAC = 112
    vB = 60; vX = 60
    NVGPR = max(116 if QKF else 88, vX + 5 * NW + 1 + 4 * RND, vX + 4 * RND + 4, vX + 4 * RPW)
    sCOL = 24; sIDX = 25; sWAVE = 26; sMASK = 27; sC = 28; sCNT = 29; sR = 30; sTMP = 31
    sOFF = 32; sHO = 33; sG = 34; sBIAS = 35; sNB = 36; sHEAD = 37; sT2 = 38; sNON = 39
    sT0 = 40
    sM1 = 53; sN = 54; sNT = 55; sL0 = 56; sOFB = 57; sLIM = 58; sNEED = 59; sBASE = 60; sP = 61; sCAP = 62; sT3 = 63
    sW = 64
    sBAD = sW + RPW + (RPW & 1)
    NSGPR = sBAD + 2

    e(HEADER + "; @launch grid=(%d,1,1) block=(%d,1,1) lds=%d" % (NWG, (NW + 1) * 64, LDS))
    if TRACE: e("; UNITBYTES=%d" % TB2)
    e(DOC.rstrip("\n") % dict(W=W, PER=PER, RL=RND - 1))
    e('.amdgcn_target "amdgcn-amd-amdhsa--gfx950"')
    e(".text")
    e(".globl %s" % KNAME)
    e(".p2align 8")
    e(".type %s,@function" % KNAME)
    e("%s:" % KNAME)
    e("    s_cmp_ge_u32 s2, %d" % NWG)
    e("    s_cbranch_scc1 L_done")
    e("    s_load_dwordx4 s[4:7], s[0:1], 0")
    e("    s_load_dwordx4 s[8:11], s[0:1], 16")
    e("    s_load_dwordx4 s[12:15], s[0:1], 32")
    if STAMP or HOLD or SPROBE or PH:
        e("    s_memrealtime s[%d:%d]" % (sT0, sT0 + 1))
    e("    v_lshrrev_b32 v%d, 6, v0" % vA)
    e("    v_and_b32 v%d, 63, v0" % vLANE)
    e("    v_readfirstlane_b32 s%d, v%d" % (sWAVE, vA))
    e("    s_lshr_b32 s%d, s2, %d" % (sCOL, LOGP))
    e("    s_and_b32 s%d, s2, %d" % (sIDX, PER - 1))
    e("    s_mul_i32 s%d, s%d, %d" % (sL0, sIDX, NW))
    e("    s_cmp_eq_u32 s%d, %d" % (sWAVE, NW))
    e("    s_cbranch_scc1 L_service")
    e("    v_lshrrev_b32 v%d, 3, v%d" % (vS0, vLANE))
    e("    v_and_b32 v%d, 7, v%d" % (vQA, vLANE))
    e("    v_lshlrev_b32 v%d, 4, v%d" % (vQA, vQA))
    e("    v_mul_u32_u24 v%d, %d, v%d" % (vT, ROWB, vS0))
    e("    v_add_u32 v%d, v%d, v%d" % (vOFF, vT, vQA))
    if LIN: e("    v_lshlrev_b32 v%d, 4, v%d" % (vOFF, vLANE))
    e("    s_mov_b32 s18, %d" % TOTB)
    e("    s_mov_b32 s19, 0x00020000")
    e("    s_mov_b32 s22, %d" % TOTB)
    e("    s_mov_b32 s23, 0x00020000")
    e("    s_mul_i32 s%d, s%d, %d" % (sHO, sCOL, HEADB))
    e("    s_add_u32 s%d, s%d, s%d" % (sG, sL0, sWAVE))
    e("    s_mul_i32 s%d, s%d, %d" % (sOFF, sG, TB2))
    e("    s_add_u32 s%d, s%d, s%d" % (sOFF, sOFF, sHO))
    e("    s_add_u32 s%d, s%d, %d" % (sOFB, sOFF, TB))
    e("    s_mul_i32 s%d, s%d, %d" % (sCNT, sCOL, ROWB))
    e("    v_add_u32 v%d, s%d, v%d" % (vT + 1, sCNT, vQA))
    e("    s_waitcnt lgkmcnt(0)")
    if SPROBE: e("    s_memrealtime s[42:43]")
    for j in range(3):
        e("    global_load_dwordx4 v[%d:%d], v%d, s[4:5] offset:%d" % (vQ + 4 * j, vQ + 4 * j + 3, vT + 1, j * 128))
    e("    s_and_b32 s7, s7, 0xffff")
    e("    s_and_b32 s9, s9, 0xffff")
    e("    s_mov_b64 s[16:17], s[6:7]")
    e("    s_mov_b64 s[20:21], s[6:7]")
    def load(j):
        e("    buffer_load_dwordx4 v[%d:%d], v%d, s[%s], s%d offen offset:%d%s" %
          (vB + 4 * j, vB + 4 * j + 3, vOFF, "16:19" if j < 3 else "20:23", sOFF if j < 3 else sOFB, (j % 3) * (1024 if LIN else 128), pol))
    for j in range(6): load(j)
    if TRACE:
        e("    s_mul_i32 s52, s2, %d" % (NW + 1))
        e("    s_add_u32 s52, s52, s%d" % sWAVE)
        e("    s_lshl_b32 s52, s52, 10")
        e("    s_add_u32 s52, s52, 0x1100000")
        e("    v_mov_b32 v%d, s52" % vTR)
    e("    s_mov_b32 s%d, 0xffff0000" % sMASK)
    e("    s_mov_b32 s%d, %s" % (sC, f32hex(C)))
    e("    s_mov_b32 s%d, 0" % sR)
    e("    v_mov_b32 v%d, 0" % vP)
    e("    s_lshl_b32 s%d, s%d, 2" % (sTMP, sWAVE))
    e("    s_add_u32 s%d, s%d, %d" % (sTMP, sTMP, PO))
    e("    v_mov_b32 v%d, s%d" % (vPA, sTMP))
    e("    s_mov_b32 s%d, %d" % (sT2, SLOTB))
    e("    s_lshl_b32 s%d, s%d, 10" % (sTMP, sWAVE))
    e("    s_add_u32 s%d, s%d, %d" % (sTMP, sTMP, DO))
    e("    v_lshlrev_b32 v%d, 4, v%d" % (vDA, vLANE))
    e("    v_add_u32 v%d, s%d, v%d" % (vDA, sTMP, vDA))
    e("    s_lshl_b32 s%d, s%d, 2" % (sT3, sWAVE))
    e("    s_add_u32 s%d, s%d, %d" % (sT3, sT3, DLO))
    e("    s_mul_i32 s%d, s%d, %d" % (sTMP, sWAVE, SCW))
    e("    s_add_u32 s%d, s%d, %d" % (sTMP, sTMP, SCO))
    e("    v_lshlrev_b32 v%d, 3, v%d" % (vS0, vS0))
    e("    v_add_u32 v%d, s%d, v%d" % (vS0, sTMP, vS0))
    def init_state():
        e("    v_mov_b32 v%d, 0" % vL)
        for i in range(24): e("    v_mov_b32 v%d, 0" % (vO + i))
    init_state()
    if SPROBE:
        e("    s_memrealtime s[44:45]")
        e("    s_waitcnt vmcnt(5)")
        e("    s_memrealtime s[46:47]")
    e("    s_barrier")
    if SPROBE: e("    s_waitcnt vmcnt(0)")
    if SPROBE:
        e("    s_memrealtime s[48:49]")
        e("    s_mul_i32 s52, s2, %d" % (NW + 1))
        e("    s_add_u32 s52, s52, s%d" % sWAVE)
        e("    s_lshl_b32 s52, s52, 5")
        e("    s_add_u32 s52, s52, 0x1100000")
        e("    v_mov_b32 v%d, s52" % vTR)
        e("    s_waitcnt lgkmcnt(0)")
        for i in range(5): e("    v_mov_b32 v%d, s%d" % (vT + i, 40 + 2 * i))
        e("    s_mov_b64 exec, 1")
        e("    global_store_dwordx4 v%d, v[%d:%d], s[14:15]" % (vTR, vT, vT + 3))
        e("    global_store_dword v%d, v%d, s[14:15] offset:16" % (vTR, vT + 4))
        e("    s_mov_b64 exec, -1")
    def trace():
        if TRACE:
            e("    s_memrealtime s[50:51]")
            e("    s_waitcnt lgkmcnt(0)")
            e("    v_mov_b32 v%d, s50" % vT)
            e("    s_mov_b64 exec, 1")
            e("    global_store_dword v%d, v%d, s[14:15]" % (vTR, vT))
            e("    s_mov_b64 exec, -1")
            e("    v_add_u32 v%d, 4, v%d" % (vTR, vTR))
    def next_off16(sbase, sh):
        e("    s_add_u32 s%d, s%d, s%d" % (sG, sbase, sWAVE))
        e("    s_mul_i32 s%d, s%d, %d" % (sOFF, sG, TB2))
        e("    s_add_u32 s%d, s%d, s%d" % (sOFF, sOFF, sh))
        e("    s_cmp_lt_u32 s%d, s%d" % (sG, sLIM))
        e("    s_cselect_b32 s%d, s%d, 0x%x" % (sOFF, sOFF, OOB))
        e("    s_add_u32 s%d, s%d, %d" % (sOFB, sOFF, TB))
    def next_off8():
        e("    s_add_u32 s%d, s%d, s%d" % (sG, sNB, sWAVE))
        e("    s_mul_i32 s%d, s%d, %d" % (sOFF, sG, TB))
        e("    s_add_u32 s%d, s%d, s%d" % (sOFF, sOFF, sHO))
        e("    s_cmp_lt_u32 s%d, %d" % (sG, TPH))
        e("    s_cselect_b32 s%d, s%d, 0x%x" % (sOFF, sOFF, OOB))
        e("    s_mov_b32 s%d, s%d" % (sOFB, sOFF))
    def dots4(jj, accs, first):
        j = jj % 3
        for i in range(4):
            acc = accs[i % 2]
            if first and i < 2:
                e("    v_dot2_f32_bf16 v%d, v%d, v%d, 0" % (acc, vB + 4 * jj + i, vQ + 4 * j + i))
            else:
                e("    v_dot2_f32_bf16 v%d, v%d, v%d, v%d" % (acc, vB + 4 * jj + i, vQ + 4 * j + i, acc))
    def pv(jj, r, pat):
        j = jj % 3
        e("    s_waitcnt vmcnt(%s)" % pat[jj])
        for i in range(4):
            e("    v_lshlrev_b32 v%d, 16, v%d" % (vT + 2 * i, vB + 4 * jj + i))
            e("    v_and_b32 v%d, s%d, v%d" % (vT + 2 * i + 1, sMASK, vB + 4 * jj + i))
        load(jj)
        for i in range(4):
            oo = vO + j * 8 + 2 * i
            e("    v_pk_fma_f32 v[%d:%d], v[%d:%d], v[%d:%d], v[%d:%d] op_sel:[0,%d,0] op_sel_hi:[1,%d,1]" %
              (oo, oo + 1, vT + 2 * i, vT + 2 * i + 1, vS, vS + 1, oo, oo + 1, r, r))
    def set_round():
        e("    s_cmp_eq_u32 s%d, %d" % (sR, RND - 1))
        e("    s_cselect_b32 s%d, %d, 0" % (sLIM, TP))
        e("    s_cselect_b32 s%d, %d, 0" % (sTMP, LLO - LSO))
        e("    s_sub_u32 s%d, %d, s%d" % (sLIM, TPH2, sLIM))
        e("    s_add_u32 s%d, s%d, %d" % (sTMP, sTMP, LSO))
        e("    v_mov_b32 v%d, s%d" % (vLA, sTMP))
        e("    s_mul_i32 s%d, s%d, %d" % (sTMP, sR, SCR))
        e("    v_add_u32 v%d, s%d, v%d" % (vSA, sTMP, vS0))
    def progress():
        e("    ds_write_b32 v%d, v%d" % (vPA, vP))
        e("    v_add_u32 v%d, 1, v%d" % (vP, vP))
    def waitent(name):
        e("L_%sw:" % name)
        e("    s_mov_b32 s%d, 0x%x" % (sN, SPIN))
        e("L_%sw1:" % name)
        e("    ds_read_b32 v%d, v%d" % (vNB, vLA))
        e("    s_sub_u32 s%d, s%d, 1" % (sN, sN))
        e("    s_cbranch_scc1 L_%sok" % name)
        e("    s_waitcnt lgkmcnt(0)")
        e("    v_readfirstlane_b32 s%d, v%d" % (sNB, vNB))
        e("    s_cmp_eq_u32 s%d, -1" % sNB)
        e("    s_cbranch_scc1 L_%sw1" % name)
        e("    s_branch L_%sok" % name)
    def ahead():
        e("    ds_read_b32 v%d, v%d offset:4" % (vNB2, vLA))
        e("    v_add_u32 v%d, 4, v%d" % (vLA, vLA))
        progress()
    e("L_kround:")
    set_round()
    e("    ds_read_b32 v%d, v%d offset:4" % (vNB2, vLA))
    e("    v_add_u32 v%d, 4, v%d" % (vLA, vLA))
    e("    v_mov_b32 v%d, 0xff7fffff" % vM)
    e("    v_mov_b32 v%d, v%d" % (vMC, vSA))
    e("    v_add_u32 v%d, 64, v%d" % (vSA, vSA))
    e("    s_waitcnt lgkmcnt(0)")
    if QKF:
        e("    s_waitcnt vmcnt(6)")
        for i in range(12):
            e("    v_lshlrev_b32 v%d, 16, v%d" % (vQF + 2 * i, vQ + i))
            e("    v_and_b32 v%d, s%d, v%d" % (vQF + 2 * i + 1, sMASK, vQ + i))
    e("L_k:")
    e("    s_cmp_lt_u32 s%d, s%d" % (sG, sLIM))
    e("    s_cselect_b32 s%d, 0, 0xff800000" % sBIAS)
    e("    s_waitcnt lgkmcnt(2)")
    e("    v_readfirstlane_b32 s%d, v%d" % (sNB, vNB2))
    e("    s_cmp_eq_u32 s%d, -1" % sNB)
    e("    s_cbranch_scc1 L_kw")
    e("L_kok:")
    e("    s_cmp_lt_u32 s%d, s%d" % (sNB, sLIM))
    e("    s_cbranch_scc0 L_klast")
    next_off16(sNB, sHO)
    e("L_kgo:")
    for jj in range(6):
        r = jj // 3
        e("    s_waitcnt vmcnt(%s)" % KW[jj])
        if QKF:
            j = jj % 3
            for i in range(4):
                e("    v_lshlrev_b32 v%d, 16, v%d" % (vT + 2 * i, vB + 4 * jj + i))
                e("    v_and_b32 v%d, s%d, v%d" % (vT + 2 * i + 1, sMASK, vB + 4 * jj + i))
            load(jj)
            for i in range(4):
                ac = vAC + 2 * r
                qq = vQF + 8 * j + 2 * i
                if j == 0 and i == 0:
                    e("    v_pk_mul_f32 v[%d:%d], v[%d:%d], v[%d:%d]" % (ac, ac + 1, vT, vT + 1, qq, qq + 1))
                else:
                    e("    v_pk_fma_f32 v[%d:%d], v[%d:%d], v[%d:%d], v[%d:%d]" % (ac, ac + 1, vT + 2 * i, vT + 2 * i + 1, qq, qq + 1, ac, ac + 1))
        else:
            dots4(jj, (vS + r, vT + r), jj % 3 == 0)
            load(jj)
        if jj == 2: ahead()
    if QKF:
        e("    v_add_f32 v%d, v%d, v%d" % (vS, vAC, vAC + 1))
        e("    v_add_f32 v%d, v%d, v%d" % (vS + 1, vAC + 2, vAC + 3))
    else:
        e("    v_add_f32 v%d, v%d, v%d" % (vS, vS, vT))
        e("    s_nop 0")
        e("    v_add_f32 v%d, v%d, v%d" % (vS + 1, vS + 1, vT + 1))
    e("    s_nop 0")
    for pat in ("quad_perm:[1,0,3,2]", "quad_perm:[2,3,0,1]", "row_half_mirror"):
        for r in range(2):
            e("    v_add_f32_dpp v%d, v%d, v%d %s row_mask:0xf bank_mask:0xf" % (vS + r, vS + r, vS + r, pat))
        if pat != "row_half_mirror": e("    s_nop 0")
    e("    v_add_f32 v%d, s%d, v%d" % (vS, sBIAS, vS))
    e("    v_add_f32 v%d, s%d, v%d" % (vS + 1, sBIAS, vS + 1))
    e("    v_max3_f32 v%d, v%d, v%d, v%d" % (vM, vM, vS, vS + 1))
    e("    ds_write_b64 v%d, v[%d:%d]" % (vSA, vS, vS + 1))
    e("    v_add_u32 v%d, 64, v%d" % (vSA, vSA))
    trace()
    e("    s_cmp_lt_u32 s%d, s%d" % (sNB, sLIM))
    e("    s_cbranch_scc1 L_k")
    e("    ds_write_b32 v%d, v%d" % (vMC, vM))
    e("    s_cmp_eq_u32 s%d, %d" % (sR, RND - 1))
    e("    s_cbranch_scc1 L_vstart")
    e("    s_cmp_lg_u32 s%d, 0" % sR)
    e("    s_cbranch_scc1 L_qok")
    e("    s_barrier")
    e("L_qok:")
    e("    v_add_u32 v%d, %d, v%d" % (vQA, ROWB, vQA))
    e("    s_add_u32 s%d, s%d, 1" % (sR, sR))
    e("    s_add_u32 s%d, s%d, %d" % (sHO, sHO, W * HEADB))
    for j in range(3):
        e("    ds_read_b128 v[%d:%d], v%d offset:%d" % (vQ + 4 * j, vQ + 4 * j + 3, vQA, QO + j * 128))
    e("    s_branch L_kround")
    e("L_vstart:")
    e("    s_mov_b32 s%d, 0" % sR)
    e("    s_sub_u32 s%d, s%d, %d" % (sHO, sHO, (RND - 1) * W * HEADB))
    e("L_vround:")
    set_round()
    e("    ds_read_b32 v%d, v%d" % (vM, vSA))
    e("    v_add_u32 v%d, 64, v%d" % (vSA, vSA))
    e("    ds_read_b64 v[%d:%d], v%d" % (vS2, vS2 + 1, vSA))
    e("    ds_read_b32 v%d, v%d offset:4" % (vNB2, vLA))
    e("    v_add_u32 v%d, 4, v%d" % (vLA, vLA))
    e("    s_waitcnt lgkmcnt(0)")
    e("    v_mul_f32 v%d, s%d, v%d" % (vMC, sC, vM))
    e("L_v:")
    e("    s_waitcnt lgkmcnt(1)")
    e("    v_readfirstlane_b32 s%d, v%d" % (sNB, vNB2))
    e("    v_fma_f32 v%d, v%d, s%d, -v%d" % (vS, vS2, sC, vMC))
    e("    v_fma_f32 v%d, v%d, s%d, -v%d" % (vS + 1, vS2 + 1, sC, vMC))
    e("    s_cmp_lt_u32 s%d, s%d" % (sNB, sLIM))
    e("    s_cbranch_scc0 L_vlast")
    next_off16(sNB, sHO)
    e("L_vgo:")
    e("    v_exp_f32 v%d, v%d" % (vS, vS))
    e("    v_exp_f32 v%d, v%d" % (vS + 1, vS + 1))
    e("    s_nop 0")
    e("    v_add_f32 v%d, v%d, v%d" % (vL, vL, vS))
    e("    v_add_f32 v%d, v%d, v%d" % (vL, vL, vS + 1))
    for jj in range(6):
        pv(jj, jj // 3, VW)
        if jj == 2:
            e("    ds_read_b64 v[%d:%d], v%d offset:64" % (vS2, vS2 + 1, vSA))
            e("    v_add_u32 v%d, 64, v%d" % (vSA, vSA))
            ahead()
    trace()
    e("    s_cmp_lt_u32 s%d, s%d" % (sNB, sLIM))
    e("    s_cbranch_scc1 L_v")
    e("    s_cmp_lg_u32 s%d, %d" % (sR, RND - 1))
    e("    s_cbranch_scc1 L_dump")
    e("    s_cmp_ge_u32 s%d, %d" % (sNB, TPH))
    e("    s_cbranch_scc1 L_dump")
    e("L_t:")
    e("    s_cmp_lt_u32 s%d, %d" % (sG, TPH))
    e("    s_cselect_b32 s%d, 0, 0xff800000" % sBIAS)
    e("    s_waitcnt lgkmcnt(1)")
    e("    v_readfirstlane_b32 s%d, v%d" % (sNB, vNB2))
    e("    s_cmp_eq_u32 s%d, -1" % sNB)
    e("    s_cbranch_scc1 L_tw")
    e("L_tok:")
    next_off8()
    for jj in range(3):
        e("    s_waitcnt vmcnt(%s)" % TW[jj])
        dots4(jj, (vS, vT), jj == 0)
        load(jj)
    ahead()
    e("    v_add_f32 v%d, v%d, v%d" % (vS, vS, vT))
    e("    s_nop 1")
    for pat in ("quad_perm:[1,0,3,2]", "quad_perm:[2,3,0,1]", "row_half_mirror"):
        e("    v_add_f32_dpp v%d, v%d, v%d %s row_mask:0xf bank_mask:0xf" % (vS, vS, vS, pat))
        if pat != "row_half_mirror": e("    s_nop 1")
    e("    v_add_f32 v%d, s%d, v%d" % (vS, sBIAS, vS))
    e("    v_max_f32 v%d, v%d, v%d" % (vM, vM, vS))
    e("    v_mov_b32 v%d, v%d" % (vA, vMC))
    e("    v_mul_f32 v%d, s%d, v%d" % (vMC, sC, vM))
    e("    v_sub_f32 v%d, v%d, v%d" % (vA, vA, vMC))
    e("    v_fma_f32 v%d, v%d, s%d, -v%d" % (vS, vS, sC, vMC))
    e("    v_exp_f32 v%d, v%d" % (vA, vA))
    e("    v_exp_f32 v%d, v%d" % (vS, vS))
    for i in range(12):
        e("    v_pk_mul_f32 v[%d:%d], v[%d:%d], v[%d:%d] op_sel:[0,1] op_sel_hi:[1,1]" %
          (vO + 2 * i, vO + 2 * i + 1, vO + 2 * i, vO + 2 * i + 1, vA - 1, vA))
    e("    v_fma_f32 v%d, v%d, v%d, v%d" % (vL, vL, vA, vS))
    for jj in range(3, 6): pv(jj, 0, TW)
    trace()
    e("    s_cmp_lt_u32 s%d, %d" % (sNB, TPH))
    e("    s_cbranch_scc1 L_t")
    e("L_dump:")
    vZ = vT; vMX = vT + 3; t0 = vT + 4; vLX = vT + 5; t1 = vT + 6
    e("    v_max_f32_dpp v%d, v%d, v%d row_ror:8 row_mask:0xf bank_mask:0xf" % (vMX, vMC, vMC))
    e("    v_mov_b32 v%d, s%d" % (t1, sT3))
    for sw in ("v_permlane16_swap_b32", "v_permlane32_swap_b32"):
        e("    v_mov_b32 v%d, v%d" % (t0, vMX))
        e("    s_nop 1")
        e("    %s v%d, v%d" % (sw, vMX, t0))
        e("    s_nop 0")
        e("    v_max_f32 v%d, v%d, v%d" % (vMX, vMX, t0))
    e("    v_sub_f32 v%d, v%d, v%d" % (vA, vMC, vMX))
    e("    v_exp_f32 v%d, v%d" % (vA, vA))
    e("    s_xor_b32 s%d, s%d, %d" % (sT3, sT3, DLO ^ (DLO + NW * 4)) if (DLO % (2 * NW * 4) == 0) else "    s_nop 0")
    e("    v_mul_f32 v%d, v%d, v%d" % (vL, vL, vA))
    for i in range(12):
        e("    v_pk_mul_f32 v[%d:%d], v[%d:%d], v[%d:%d] op_sel:[0,1] op_sel_hi:[1,1]" %
          (vO + 2 * i, vO + 2 * i + 1, vO + 2 * i, vO + 2 * i + 1, vA - 1, vA))
    e("    v_add_f32_dpp v%d, v%d, v%d row_ror:8 row_mask:0xf bank_mask:0xf" % (vLX, vL, vL))
    for j in range(3):
        for ee in range(4):
            a = vO + j * 8 + ee
            e("    v_permlane32_swap_b32 v%d, v%d" % (a, a + 4))
    e("    v_mov_b32 v%d, v%d" % (t0, vLX))
    for j in range(3):
        for ee in range(4):
            a = vO + j * 8 + ee
            e("    v_add_f32 v%d, v%d, v%d" % (a, a, a + 4))
    e("    v_permlane16_swap_b32 v%d, v%d" % (vLX, t0))
    for j in range(3):
        for ee in range(2):
            a = vO + j * 8 + ee
            e("    v_permlane16_swap_b32 v%d, v%d" % (a, a + 2))
    e("    v_add_f32 v%d, v%d, v%d" % (vLX, vLX, t0))
    for j in range(3):
        for ee in range(2):
            a = vO + j * 8 + ee
            e("    v_add_f32 v%d, v%d, v%d" % (a, a, a + 2))
    e("    v_mov_b32 v%d, v%d" % (t0, vLX))
    e("    s_add_u32 s%d, s%d, 1" % (sR, sR))
    for j in range(3):
        a = vO + j * 8
        e("    v_add_f32_dpp v%d, v%d, v%d row_ror:8 row_mask:0xf bank_mask:0x3" % (vZ + j, a, a))
    e("    v_permlane32_swap_b32 v%d, v%d" % (vLX, t0))
    for j in range(3):
        a = vO + j * 8
        e("    v_add_f32_dpp v%d, v%d, v%d row_ror:8 row_mask:0xf bank_mask:0xc" % (vZ + j, a + 1, a + 1))
    e("    v_add_f32 v%d, v%d, v%d" % (vLX, vLX, t0))
    e("    ds_write_b128 v%d, v[%d:%d]" % (vDA, vZ, vZ + 3))
    e("    ds_write_b32 v%d, v%d" % (t1, vLX))
    e("    v_add_u32 v%d, s%d, v%d" % (vDA, sT2, vDA))
    e("    s_sub_u32 s%d, 0, s%d" % (sT2, sT2))
    e("    s_add_u32 s%d, s%d, %d" % (sHO, sHO, W * HEADB))
    e("    s_waitcnt lgkmcnt(0)")
    e("    s_barrier")
    e("    s_cmp_eq_u32 s%d, %d" % (sR, RND))
    e("    s_cbranch_scc1 L_fin")
    init_state()
    e("    s_branch L_vround")
    assert DLO % (2 * NW * 4) == 0
    e("L_klast:")
    e("    s_add_u32 s%d, s%d, %d" % (sTMP, sHO, W * HEADB))
    e("    s_cmp_lg_u32 s%d, %d" % (sR, RND - 1))
    e("    s_cbranch_scc1 L_klast2")
    e("    s_sub_u32 s%d, s%d, %d" % (sTMP, sHO, (RND - 1) * W * HEADB))
    e("    s_mov_b64 s[16:17], s[8:9]")
    e("    s_mov_b64 s[20:21], s[8:9]")
    e("L_klast2:")
    next_off16(sL0, sTMP)
    e("    s_branch L_kgo")
    e("L_vlast:")
    e("    s_cmp_eq_u32 s%d, %d" % (sR, RND - 1))
    e("    s_cbranch_scc1 L_vlast2")
    e("    s_add_u32 s%d, s%d, %d" % (sTMP, sHO, W * HEADB))
    next_off16(sL0, sTMP)
    e("    s_branch L_vgo")
    e("L_vlast2:")
    e("    s_mov_b64 s[16:17], s[6:7]")
    e("    v_mov_b32 v%d, %d" % (vLA, TLO))
    e("    s_mov_b32 s%d, -1" % sNB)
    waitent("z")
    e("L_zok:")
    next_off8()
    e("    s_branch L_vgo")
    waitent("k")
    waitent("t")

    e("L_fin:")
    e("    s_cmp_ge_u32 s%d, %d" % (sIDX, RND))
    e("    s_cbranch_scc1 L_done")
    e("    s_cmp_ge_u32 s%d, %d" % (sWAVE, NWC))
    e("    s_cbranch_scc1 L_done")
    cA = vT; cB = vT + 1; cT = vT + 2; cB0 = vT + 3; cMX = vT + 4; cLX = vT + 5; cW = vT + 6; cLB = vT + 7
    cM = vQ; cACC = vQ + 4; cO = vQ + 8; cX = vX
    e("    v_mov_b32 v%d, %d" % (cT, NONO))
    e("    ds_read_b32 v%d, v%d" % (cT, cT))
    e("    s_mul_i32 s%d, s%d, %d" % (sHEAD, sIDX, W))
    e("    s_add_u32 s%d, s%d, s%d" % (sHEAD, sHEAD, sCOL))
    e("    v_lshlrev_b32 v%d, 4, v%d" % (cLB, vLANE))
    e("    s_lshl_b32 s%d, s%d, %d" % (sTMP, sHEAD, LOGP + 4))
    e("    s_add_u32 s%d, s%d, 0x%x" % (sTMP, sTMP, MLG))
    e("    s_mul_i32 s%d, s%d, %d" % (sCNT, sWAVE, RPW * 16))
    e("    v_add_u32 v%d, s%d, v%d" % (cA, sCNT, cLB))
    e("    v_and_b32 v%d, %d, v%d" % (cA, PER * 16 - 1, cA))
    e("    v_add_u32 v%d, s%d, v%d" % (cA, sTMP, cA))
    e("    s_lshl_b32 s%d, s%d, %d" % (sTMP, sHEAD, LOGP + 10))
    e("    s_mul_i32 s%d, s%d, %d" % (sCNT, sWAVE, RPW * 1024))
    e("    s_add_u32 s%d, s%d, s%d" % (sCNT, sCNT, sTMP))
    e("    v_add_u32 v%d, s%d, v%d" % (cB0, sCNT, cLB))
    e("    v_and_b32 v%d, 7, v%d" % (cO, vLANE))
    e("    v_lshlrev_b32 v%d, 4, v%d" % (cO, cO))
    e("    v_lshrrev_b32 v%d, 3, v%d" % (cW, vLANE))
    e("    v_lshl_add_u32 v%d, v%d, 1, v%d" % (cO, cW, cO))
    e("    s_mul_i32 s%d, s%d, %d" % (sTMP, sHEAD, ROWB))
    e("    v_add_u32 v%d, s%d, v%d" % (cO, sTMP, cO))
    e("    s_lshl_b32 s%d, s%d, 10" % (sTMP, sWAVE))
    e("    s_add_u32 s%d, s%d, %d" % (sTMP, sTMP, MRG))
    e("    v_add_u32 v%d, s%d, v%d" % (cW, sTMP, cLB))
    e("    s_waitcnt vmcnt(0) lgkmcnt(0)")
    if WARM & 1:
        e("    global_load_ushort v%d, v%d, s[10:11]" % (cMX, cO))
    e("    v_readfirstlane_b32 s%d, v%d" % (sNON, cT))
    e("    s_mov_b32 s%d, 0x%x" % (sN, SPIN))
    e("L_poll1:")
    e("    s_sub_u32 s%d, s%d, 1" % (sN, sN))
    e("    s_cbranch_scc1 L_done")
    e("    global_load_dwordx4 v[%d:%d], v%d, s[14:15] sc1" % (cM, cM + 3, cA))
    e("    s_waitcnt vmcnt(0)")
    e("    v_cmp_eq_u32 vcc, s%d, v%d" % (sNON, cM + 3))
    if PER < 64:
        e("    s_and_b32 vcc_hi, vcc_hi, 0" if PER == 32 else "    s_and_b64 vcc, vcc, 0x%x" % ((1 << PER) - 1))
    e("    s_bcnt1_i32_b64 s%d, vcc" % sTMP)
    e("    s_cmp_lt_u32 s%d, %d" % (sTMP, PER - THR))
    e("    s_cbranch_scc1 L_poll1")
    if STAMP: e("    s_memrealtime s[42:43]")
    e("L_poll2:")
    e("    s_sub_u32 s%d, s%d, 1" % (sN, sN))
    e("    s_cbranch_scc1 L_done")
    e("    v_mov_b32 v%d, v%d" % (cB, cB0))
    e("    global_load_dwordx4 v[%d:%d], v%d, s[14:15] sc1" % (cM, cM + 3, cA))
    for j in range(RPW):
        e("    global_load_dwordx4 v[%d:%d], v%d, s[14:15] offset:%d sc1" % (cX + 4 * j, cX + 4 * j + 3, cB, (j % 4) * 1024))
        if j % 4 == 3 and j + 1 < RPW:
            e("    v_add_u32 v%d, 4096, v%d" % (cB, cB))
    e("    s_waitcnt vmcnt(%d)" % RPW)
    e("    v_cmp_ne_u32 s[%d:%d], s%d, v%d" % (sBAD, sBAD + 1, sNON, cM + 3))
    e("    v_mov_b32 v%d, v%d" % (cMX, cM))
    e("    s_cmp_lg_u64 s[%d:%d], 0" % (sBAD, sBAD + 1))
    e("    s_cbranch_scc1 L_retry")
    if STAMP: e("    s_memrealtime s[44:45]")
    def allreduce(op, r, t):
        e("    s_nop 1")
        for pat in ("quad_perm:[1,0,3,2]", "quad_perm:[2,3,0,1]", "row_half_mirror", "row_ror:8"):
            e("    %s_dpp v%d, v%d, v%d %s row_mask:0xf bank_mask:0xf" % (op, r, r, r, pat))
            e("    s_nop 1")
        for sw in ("v_permlane16_swap_b32", "v_permlane32_swap_b32"):
            e("    v_mov_b32 v%d, v%d" % (t, r))
            e("    s_nop 1")
            e("    %s v%d, v%d" % (sw, r, t))
            e("    s_nop 0")
            e("    %s v%d, v%d, v%d" % (op, r, r, t))
    allreduce("v_max_f32", cMX, cT)
    e("    v_sub_f32 v%d, v%d, v%d" % (cM, cM, cMX))
    e("    v_exp_f32 v%d, v%d" % (cM, cM))
    if PER < 64:
        e("    v_cmp_gt_u32 vcc, %d, v%d" % (PER, vLANE))
    e("    v_mov_b32 v%d, 0" % cACC)
    e("    v_mul_f32 v%d, v%d, v%d" % (cLX, cM, cM + 1))
    e("    v_mov_b32 v%d, 0" % (cACC + 1))
    if PER < 64:
        e("    v_cndmask_b32 v%d, 0, v%d, vcc" % (cLX, cLX))
    e("    v_mov_b32 v%d, 0" % (cACC + 2))
    steps = []
    for pat in ("quad_perm:[1,0,3,2]", "quad_perm:[2,3,0,1]", "row_half_mirror", "row_ror:8"):
        steps.append("    v_add_f32_dpp v%d, v%d, v%d %s row_mask:0xf bank_mask:0xf" % (cLX, cLX, cLX, pat))
    for sw in ("v_permlane16_swap_b32", "v_permlane32_swap_b32"):
        steps.append("    v_mov_b32 v%d, v%d" % (cT, cLX))
        steps.append("    %s v%d, v%d" % (sw, cLX, cT))
        steps.append("    v_add_f32 v%d, v%d, v%d" % (cLX, cLX, cT))
    steps.append("    v_rcp_f32 v%d, v%d" % (cLX, cLX))
    for j in range(RPW):
        e("    v_readlane_b32 s%d, v%d, %d" % (sW + j, cM, j))
        if j % 2 == 1 and len(steps) > 7: e(steps.pop(0))
    if STAMP: e("    s_memrealtime s[46:47]")
    for j in range(RPW):
        if j % 4 == 0:
            e("    s_waitcnt vmcnt(%d)" % (RPW - 4 - j))
        sp = (sW + j) & ~1; hi = (sW + j) & 1
        e("    v_cmp_ne_u32 vcc, s%d, v%d" % (sNON, cX + 4 * j + 3))
        e("    v_pk_fma_f32 v[%d:%d], v[%d:%d], s[%d:%d], v[%d:%d] op_sel:[0,%d,0] op_sel_hi:[1,%d,1]" %
          (cACC, cACC + 1, cX + 4 * j, cX + 4 * j + 1, sp, sp + 1, cACC, cACC + 1, hi, hi))
        e("    v_fma_f32 v%d, v%d, s%d, v%d" % (cACC + 2, cX + 4 * j + 2, sW + j, cACC + 2))
        if steps: e(steps.pop(0))
        e("    s_or_b64 s[%d:%d], s[%d:%d], vcc" % (sBAD, sBAD + 1, sBAD, sBAD + 1))
    assert not steps
    e("    s_cbranch_scc1 L_poll2")
    if STAMP: e("    s_memrealtime s[48:49]")
    if NWC > 1:
        e("    ds_write_b128 v%d, v[%d:%d]" % (cW, cACC, cACC + 3))
        e("    s_waitcnt lgkmcnt(0)")
        e("    s_barrier")
        e("    s_cmp_lg_u32 s%d, 0" % sWAVE)
        e("    s_cbranch_scc1 L_done")
        for w in range(1, NWC):
            e("    ds_read_b128 v[%d:%d], v%d offset:%d" % (cX + 4 * w, cX + 4 * w + 3, cW, w * 1024))
        for w in range(1, NWC):
            e("    s_waitcnt lgkmcnt(%d)" % (NWC - 1 - w))
            e("    v_pk_add_f32 v[%d:%d], v[%d:%d], v[%d:%d]" % (cACC, cACC + 1, cACC, cACC + 1, cX + 4 * w, cX + 4 * w + 1))
            e("    v_add_f32 v%d, v%d, v%d" % (cACC + 2, cACC + 2, cX + 4 * w + 2))
    for k in range(3):
        e("    v_mul_f32 v%d, v%d, v%d" % (cACC + k, cACC + k, cLX))
    e("    v_cvt_pk_bf16_f32 v%d, v%d, v%d" % (cACC, cACC, cACC + 1))
    e("    v_cvt_pk_bf16_f32 v%d, v%d, v%d" % (cACC + 2, cACC + 2, cACC + 2))
    e("    global_store_short v%d, v%d, s[10:11]" % (cO, cACC))
    e("    global_store_short_d16_hi v%d, v%d, s[10:11] offset:128" % (cO, cACC))
    e("    global_store_short v%d, v%d, s[10:11] offset:256" % (cO, cACC + 2))
    if HOLD and HMODE:
        e("    v_mov_b32 v%d, 0" % cT)
        e("    global_load_dword v%d, v%d, s[12:13] offset:128 sc1" % (cT, cT))
        e("    s_waitcnt vmcnt(0)")
        e("    v_readfirstlane_b32 s%d, v%d" % (sT0, cT))
        if HMODE == 1: e("    s_not_b32 s%d, s%d" % (sT0, sT0))
    if HOLD:
        e("L_hold:")
        e("    s_memrealtime s[50:51]")
        e("    s_waitcnt lgkmcnt(0)")
        e("    s_sub_u32 s50, s50, s%d" % sT0)
        e("    s_cmp_lt_u32 s50, %d" % HOLD)
        e("    s_cbranch_scc1 L_hold")
    if STAMP:
        e("    s_waitcnt vmcnt(0)")
        e("    s_memrealtime s[50:51]")
        e("    s_lshl_b32 s%d, s2, 6" % sTMP)
        e("    s_add_u32 s%d, s%d, 0x1000000" % (sTMP, sTMP))
        e("    v_mov_b32 v%d, s%d" % (cT, sTMP))
        e("    s_waitcnt lgkmcnt(0)")
        e("    v_mov_b32 v%d, s50" % cACC)
        e("    v_mov_b32 v%d, s51" % (cACC + 1))
        e("    s_mov_b64 exec, 1")
        e("    global_store_dwordx2 v%d, v[%d:%d], s[14:15] offset:48" % (cT, cACC, cACC + 1))
        for i in range(4): e("    v_mov_b32 v%d, s%d" % (cX + i, 42 + 2 * i))
        e("    v_add_u32 v%d, 0x8000, v%d" % (cT, cT))
        e("    global_store_dwordx4 v%d, v[%d:%d], s[14:15]" % (cT, cX, cX + 3))
    e("    s_endpgm")
    e("L_retry:")
    e("    s_waitcnt vmcnt(0)")
    e("    s_branch L_poll2")

    e("L_service:")
    vAD = vT; vRA = vT + 1; vGA = vT + 2; vONE = vT + 3; vMX = vT + 4; vLX = vT + 5; t0 = vT + 6; t1 = vT + 7
    vE = vX + 5 * NW + (NW & 1)
    vR0 = vQ; vR1 = vQ + 1; vZERO = vQ + 2; vRL = vQ + 3; vCW = vQ + 4; vML = vQ + 5; vZ = vQ + 6; vG = vQ + 10; vDL = vQ + 14
    e("    v_lshlrev_b32 v%d, 4, v%d" % (vAD, vLANE))
    e("    v_mul_u32_u24 v%d, %d, v%d" % (t0, SST, vLANE))
    e("    v_add_u32 v%d, s%d, v%d" % (t0, sL0, t0))
    e("    v_lshlrev_b32 v%d, 2, v%d" % (t1, vLANE))
    e("    s_mov_b32 exec_lo, 0x%x" % (((1 << (SSF + 1)) - 1) & 0xffffffff))
    e("    s_mov_b32 exec_hi, 0x%x" % (((1 << (SSF + 1)) - 1) >> 32))
    e("    ds_write_b32 v%d, v%d offset:%d" % (t1, t0, LSO))
    e("    s_mov_b64 exec, -1")
    e("    v_cmp_gt_u32 vcc, %d, v%d" % (SSL, vLANE))
    e("    v_mov_b32 v%d, -1" % vONE)
    e("    v_mov_b32 v%d, 0" % vZERO)
    e("    v_cndmask_b32 v%d, -1, v%d, vcc" % (t0, t0))
    e("    ds_write_b32 v%d, v%d offset:%d" % (t1, t0, LLO))
    for k in range(64, LLN + TLN, 64):
        e("    ds_write_b32 v%d, v%d offset:%d" % (t1, vONE, LLO + 4 * k))
    e("    v_and_b32 v%d, 12, v%d" % (t1, t1))
    e("    ds_write_b32 v%d, v%d offset:%d" % (t1, vZERO, PO))
    e("    s_mul_i32 s%d, s%d, %d" % (sTMP, sCOL, ROWB))
    e("    v_add_u32 v%d, s%d, v%d" % (vRA, sTMP, vAD))
    e("    s_waitcnt lgkmcnt(0)")
    e("    v_mov_b32 v%d, 1" % vONE)
    e("    s_barrier")
    e("    s_mov_b64 exec, 0xffffff")
    for r in range(1, RND):
        e("    v_add_u32 v%d, %d, v%d" % (vRA, W * ROWB, vRA))
        e("    global_load_dwordx4 v[%d:%d], v%d, s[4:5]" % (vX + 4 * r, vX + 4 * r + 3, vRA))
    e("    s_waitcnt vmcnt(0)")
    for r in range(1, RND):
        e("    ds_write_b128 v%d, v[%d:%d] offset:%d" % (vAD, vX + 4 * r, vX + 4 * r + 3, QO + r * ROWB))
    e("    s_mov_b64 exec, -1")
    e("    s_lshl_b32 s%d, s%d, %d" % (sTMP, sCOL, LOGP))
    e("    s_add_u32 s%d, s%d, s%d" % (sTMP, sTMP, sIDX))
    e("    s_lshl_b32 s%d, s%d, 10" % (sCNT, sTMP))
    e("    v_add_u32 v%d, s%d, v%d" % (vRA, sCNT, vAD))
    e("    s_lshl_b32 s%d, s%d, 4" % (sCNT, sTMP))
    e("    s_add_u32 s%d, s%d, 0x%x" % (sCNT, sCNT, MLG))
    e("    v_mul_u32_u24 v%d, %d, v%d" % (vGA, NWG * 16, vLANE))
    e("    v_add_u32 v%d, s%d, v%d" % (vGA, sCNT, vGA))
    e("    s_lshr_b32 s%d, s%d, 3" % (sNT, sIDX))
    e("    s_and_b32 s%d, s%d, %d" % (sNT, sNT, S - 1))
    e("    s_mul_i32 s%d, s%d, %d" % (sTMP, sCOL, S))
    e("    s_add_u32 s%d, s%d, s%d" % (sTMP, sTMP, sNT))
    e("    s_mul_i32 s%d, s%d, %d" % (sNT, sNT, NW))
    e("    s_lshl_b32 s%d, s%d, 8" % (sTMP, sTMP))
    e("    s_add_u32 s%d, s%d, 0x%x" % (sTMP, sTMP, CTR_OFF))
    e("    v_mov_b32 v%d, s%d" % (vCW, sTMP))
    e("    s_mov_b32 s%d, 0" % sR)
    e("    s_mov_b32 s%d, %d" % (sT2, SLOTB))
    e("    v_add_u32 v%d, %d, v%d" % (vDA, DO, vAD))
    e("    v_mov_b32 v%d, %d" % (vDL, DLO))
    e("    v_add_u32 v%d, %d, v%d" % (vRL, RECO, vAD))
    e("    v_mov_b32 v%d, %d" % (vML, MLO))
    e("    v_mov_b32 v%d, 0" % (vG + 2))
    def ph():
        if PH:
            e("    s_memrealtime s[50:51]")
            e("    s_waitcnt lgkmcnt(0)")
            e("    v_mov_b32 v%d, s50" % (vTR + 1))
            e("    global_store_dword v%d, v%d, s[14:15]" % (vTR, vTR + 1))
            e("    v_add_u32 v%d, 4, v%d" % (vTR, vTR))
    if PH:
        e("    s_lshl_b32 s52, s2, 8")
        e("    s_add_u32 s52, s52, 0x1100000")
        e("    v_mov_b32 v%d, s52" % vTR)
        e("    v_mov_b32 v%d, s%d" % (vTR + 1, sT0))
        e("    s_mov_b64 exec, 1")
        e("    global_store_dword v%d, v%d, s[14:15]" % (vTR, vTR + 1))
        e("    v_add_u32 v%d, 4, v%d" % (vTR, vTR))
        e("    s_mov_b64 exec, -1")
    def elect(tag):
        e("    s_mov_b64 exec, 1")
        e("    global_atomic_add v%d, v%d, v%d, s[12:13] sc0" % (t0, vZERO, vONE))
        e("    s_memrealtime s[50:51]")
        e("    s_waitcnt vmcnt(0) lgkmcnt(0)")
        e("    v_readfirstlane_b32 s%d, v%d" % (sTMP, t0))
        e("    s_mov_b64 exec, -1")
        e("    s_cmp_lg_u32 s%d, 0" % sTMP)
        e("    s_cbranch_scc1 L_lost%s" % tag)
        e("    v_lshlrev_b32 v%d, 8, v%d" % (t0, vLANE))
        e("    v_add_u32 v%d, 0x%x, v%d" % (t0, CTR_OFF, t0))
        e("    s_or_b32 s50, s50, 1")
        e("    v_mov_b32 v%d, s50" % t1)
        e("    global_store_dword v%d, v%d, s[14:15] sc1" % (t0, vZERO))
        e("    s_waitcnt vmcnt(0)")
        e("    global_store_dword v%d, v%d, s[12:13] offset:64 sc1" % (vZERO, t1))
        e("L_lost%s:" % tag)
    if HMODE:
        e("    v_mov_b32 v%d, s%d" % (t0, sT0))
        if HMODE == 1: e("    v_not_b32 v%d, v%d" % (t0, t0))
        e("    s_mov_b64 exec, 1")
        e("    global_atomic_umax v%d, v%d, s[12:13] offset:128" % (vZERO, t0))
        e("    s_mov_b64 exec, -1")
    e("    s_cmp_lg_u32 s2, 0")
    e("    s_cbranch_scc1 L_lostA")
    elect("A")
    e("    s_waitcnt lgkmcnt(0)")
    e("    s_barrier")
    if PH:
        e("    s_mov_b64 exec, 1")
        ph()
        e("    s_mov_b64 exec, -1")
    if WARM & 2:
        e("    s_mul_i32 s%d, s%d, %d" % (sTMP, sCOL, HEADB))
        e("    s_mul_i32 s%d, s%d, %d" % (sCNT, sL0, TB2))
        e("    s_add_u32 s%d, s%d, s%d" % (sTMP, sTMP, sCNT))
        e("    v_mov_b32 v%d, s%d" % (t1, sTMP))
        e("    s_mov_b64 exec, 1")
        e("    global_load_dword v%d, v%d, s[8:9] nt" % (vX, t1))
        e("    global_load_dword v%d, v%d, s[14:15] nt" % (vX + 1, vCW))
        e("    global_load_dword v%d, v%d, s[14:15] nt" % (vX + 2, vRA))
        e("    global_load_dword v%d, v%d, s[14:15] nt" % (vX + 3, vGA))
        e("    s_mov_b64 exec, -1")
    e("    global_load_dword v%d, v%d, s[12:13] offset:64 sc1" % (t0, vZERO))
    e("    s_waitcnt vmcnt(0)")
    e("    v_readfirstlane_b32 s%d, v%d" % (sNON, t0))
    e("    s_cmp_lg_u32 s%d, 0" % sNON)
    e("    s_cbranch_scc1 L_ready")
    elect("B")
    e("    s_mov_b32 s%d, 0x%x" % (sN, SPIN))
    e("L_spinf:")
    e("    s_sub_u32 s%d, s%d, 1" % (sN, sN))
    e("    s_cbranch_scc1 L_ready")
    e("    global_load_dword v%d, v%d, s[12:13] offset:64 sc1" % (t0, vZERO))
    e("    s_waitcnt vmcnt(0)")
    e("    v_readfirstlane_b32 s%d, v%d" % (sNON, t0))
    e("    s_cmp_eq_u32 s%d, 0" % sNON)
    e("    s_cbranch_scc1 L_spinf")
    e("L_ready:")
    e("    v_mov_b32 v%d, s%d" % (vZ + 3, sNON))
    e("    v_mov_b32 v%d, s%d" % (vG + 3, sNON))
    e("    ds_write_b32 v%d, v%d offset:%d" % (vZERO, vZ + 3, NONO))
    e("    s_mov_b32 s%d, %d" % (sLIM, LIML))
    e("    s_add_u32 s%d, s%d, %d" % (sBASE, sNT, SSL * SST))
    e("    v_mov_b32 v%d, %d" % (vLA, LLO + 4 * SSL))
    e("    s_mov_b32 s%d, %d" % (sCAP, CAP))
    e("    s_mov_b32 s%d, %d" % (sNEED, (RND - 1) * SSF + SSL - 1 - LOOK))
    e("L_seq:")
    e("    s_mov_b64 exec, 1")
    e("    s_mov_b32 s%d, 0x%x" % (sN, SPIN))
    ph()
    e("L_sls:")
    e("    ds_read_b128 v[%d:%d], v%d offset:%d" % (vX, vX + 3, vZERO, PO))
    e("    s_waitcnt lgkmcnt(0)")
    e("    v_max3_u32 v%d, v%d, v%d, v%d" % (t0, vX, vX + 1, vX + 2))
    e("    v_max_u32 v%d, v%d, v%d" % (t0, t0, vX + 3))
    e("    s_nop 0")
    e("    v_readfirstlane_b32 s%d, v%d" % (sP, t0))
    e("    s_cmp_ge_u32 s%d, s%d" % (sP, sNEED))
    e("    s_cbranch_scc1 L_grab")
    if SLP: e("    s_sleep %d" % SLP)
    e("    s_sub_u32 s%d, s%d, 1" % (sN, sN))
    e("    s_cbranch_scc0 L_sls")
    e("    s_mov_b32 s%d, 0" % sN)
    e("L_grab:")
    e("    s_mov_b32 s%d, %d" % (sM1, TPH))
    e("    s_sub_u32 s%d, s%d, 1" % (sCAP, sCAP))
    e("    s_cbranch_scc1 L_got")
    e("    global_atomic_add v%d, v%d, v%d, s[14:15] sc0" % (vR0, vCW, vONE))
    e("    s_waitcnt vmcnt(0)")
    e("    v_readfirstlane_b32 s%d, v%d" % (sM1, vR0))
    e("    s_min_u32 s%d, s%d, %d" % (sM1, sM1, TPH))
    e("L_got:")
    e("    s_mul_i32 s%d, s%d, %d" % (sM1, sM1, NW * S))
    e("    s_add_u32 s%d, s%d, s%d" % (sM1, sM1, sBASE))
    e("    v_mov_b32 v%d, s%d" % (t0, sM1))
    e("    ds_write_b32 v%d, v%d" % (vLA, t0))
    e("    v_add_u32 v%d, 4, v%d" % (vLA, vLA))
    e("    s_add_u32 s%d, s%d, 1" % (sNEED, sNEED))
    e("    s_cmp_lt_u32 s%d, s%d" % (sM1, sLIM))
    e("    s_cbranch_scc1 L_sls")
    e("L_slsend:")
    ph()
    e("    s_mov_b64 exec, -1")
    e("    s_cmp_eq_u32 s%d, %d" % (sLIM, TPH))
    e("    s_cbranch_scc1 %s" % ("L_early" if EARLY else "L_sdump"))
    e("L_svround:")
    e("    s_cmp_lg_u32 s%d, %d" % (sR, RND - 1))
    e("    s_cbranch_scc1 L_sdump")
    e("    s_mov_b32 s%d, %d" % (sLIM, TPH))
    e("    s_add_u32 s%d, s%d, %d" % (sBASE, sNT, 2 * LIML))
    e("    s_mov_b32 s%d, %d" % (sCAP, NUT))
    e("    v_add_u32 v%d, %d, v%d" % (vCW, W * S * 256, vCW))
    e("    v_mov_b32 v%d, %d" % (vLA, TLO))
    e("    s_lshl_b32 s%d, s%d, 1" % (sNEED, sNEED))
    e("    s_add_u32 s%d, s%d, %d" % (sNEED, sNEED, LOOK - 1))
    e("    s_branch L_seq")
    if EARLY:
        e("; ---- the streamers are on their last tiles: publish the records of the earlier rounds")
        e("L_early:")
        e("    v_min_u32 v%d, %d, v%d" % (t1, (RND - 2) * 16, vAD))
        e("    ds_read_b128 v[%d:%d], v%d offset:%d" % (vE, vE + 3, t1, MLO))
        for r in range(RND - 1):
            e("    ds_read_b128 v[%d:%d], v%d offset:%d" % (vE + 4 + 4 * r, vE + 4 + 4 * r + 3, vAD, RECO + r * 1024))
        e("    s_mov_b64 exec, %d" % ((1 << (RND - 1)) - 1))
        e("    s_waitcnt lgkmcnt(%d)" % (RND - 1))
        e("    global_store_dwordx4 v%d, v[%d:%d], s[14:15] sc1" % (vGA, vE, vE + 3))
        e("    s_mov_b64 exec, -1")
        for r in range(RND - 1):
            e("    s_waitcnt lgkmcnt(%d)" % (RND - 2 - r))
            e("    global_store_dwordx4 v%d, v[%d:%d], s[14:15] sc1" % (vRA, vE + 4 + 4 * r, vE + 4 + 4 * r + 3))
            e("    v_add_u32 v%d, %d, v%d" % (vRA, NWG * 1024, vRA))
    e("L_sdump:")
    e("    s_waitcnt lgkmcnt(0)")
    e("    s_barrier")
    if PH:
        e("    s_mov_b64 exec, 1")
        ph()
        e("    s_mov_b64 exec, -1")
    if STAMP:
        e("    s_memrealtime s[%d:%d]" % (sT0 + 2, sT0 + 3))
    vY = vX + 4 * NW
    for w in range(NW):
        e("    ds_read_b128 v[%d:%d], v%d offset:%d" % (vX + 4 * w, vX + 4 * w + 3, vDA, w * 1024))
    for w in range(NW):
        e("    ds_read_b32 v%d, v%d offset:%d" % (vY + w, vDL, w * 4))
    e("    v_add_u32 v%d, s%d, v%d" % (vDA, sT2, vDA))
    e("    s_sub_u32 s%d, 0, s%d" % (sT2, sT2))
    e("    v_xor_b32 v%d, %d, v%d" % (vDL, DLO ^ (DLO + NW * 4), vDL))
    e("    s_add_u32 s%d, s%d, 1" % (sR, sR))
    e("    s_waitcnt lgkmcnt(%d)" % (0 if STAMP else NW))
    e("    v_max_f32 v%d, v%d, v%d" % (vG, vX + 3, vX + 7))
    for w in range(2, NW):
        e("    v_max_f32 v%d, v%d, v%d" % (vG, vG, vX + 4 * w + 3))
    for w in range(NW):
        e("    v_sub_f32 v%d, v%d, v%d" % (vX + 4 * w + 3, vX + 4 * w + 3, vG))
    for w in range(NW):
        e("    v_exp_f32 v%d, v%d" % (vX + 4 * w + 3, vX + 4 * w + 3))
    e("    s_waitcnt lgkmcnt(0)")
    for k in range(3):
        e("    v_mul_f32 v%d, v%d, v%d" % (vZ + k, vX + k, vX + 3))
    e("    v_mul_f32 v%d, v%d, v%d" % (vG + 1, vY, vX + 3))
    for w in range(1, NW):
        for k in range(3):
            e("    v_fma_f32 v%d, v%d, v%d, v%d" % (vZ + k, vX + 4 * w + k, vX + 4 * w + 3, vZ + k))
        e("    v_fma_f32 v%d, v%d, v%d, v%d" % (vG + 1, vY + w, vX + 4 * w + 3, vG + 1))
    e("    s_cmp_eq_u32 s%d, %d" % (sR, RND))
    e("    s_cbranch_scc1 L_final")
    e("    ds_write_b128 v%d, v[%d:%d]" % (vRL, vZ, vZ + 3))
    e("    ds_write_b128 v%d, v[%d:%d]" % (vML, vG, vG + 3))
    e("    v_add_u32 v%d, 1024, v%d" % (vRL, vRL))
    e("    v_add_u32 v%d, 16, v%d" % (vML, vML))
    e("    s_branch L_svround")
    e("L_final:")
    if EARLY:
        e("    global_store_dwordx4 v%d, v[%d:%d], s[14:15] sc1" % (vRA, vZ, vZ + 3))
        e("    s_mov_b64 exec, %d" % (1 << (RND - 1)))
        e("    global_store_dwordx4 v%d, v[%d:%d], s[14:15] sc1" % (vGA, vG, vG + 3))
        if STAMP: e("    s_mov_b64 exec, -1")
    else:
        e("    v_add_u32 v%d, %d, v%d" % (t0, (RND - 1) * NWG * 1024, vRA))
        e("    global_store_dwordx4 v%d, v[%d:%d], s[14:15] sc1" % (t0, vZ, vZ + 3))
        e("    ds_write_b128 v%d, v[%d:%d]" % (vML, vG, vG + 3))
        e("    v_min_u32 v%d, %d, v%d" % (t1, (RND - 1) * 16, vAD))
        e("    ds_read_b128 v[%d:%d], v%d offset:%d" % (vX, vX + 3, t1, MLO))
        for r in range(RND - 1):
            e("    ds_read_b128 v[%d:%d], v%d offset:%d" % (vX + 4 + 4 * r, vX + 4 + 4 * r + 3, vAD, RECO + r * 1024))
        e("    s_mov_b64 exec, %d" % ((1 << RND) - 1))
        e("    s_waitcnt lgkmcnt(%d)" % (RND - 1))
        e("    global_store_dwordx4 v%d, v[%d:%d], s[14:15] sc1" % (vGA, vX, vX + 3))
        e("    s_mov_b64 exec, -1")
        for r in range(RND - 1):
            e("    s_waitcnt lgkmcnt(%d)" % (RND - 2 - r))
            e("    global_store_dwordx4 v%d, v[%d:%d], s[14:15] sc1" % (vRA, vX + 4 + 4 * r, vX + 4 + 4 * r + 3))
            if r + 2 < RND:
                e("    v_add_u32 v%d, %d, v%d" % (vRA, NWG * 1024, vRA))
    if STAMP:
        e("    s_memrealtime s[%d:%d]" % (sT0 + 4, sT0 + 5))
        e("    s_waitcnt vmcnt(0)")
        e("    s_memrealtime s[%d:%d]" % (sT0 + 6, sT0 + 7))
        e("    s_getreg_b32 s%d, hwreg(HW_REG_XCC_ID)" % (sT0 + 8))
        e("    s_getreg_b32 s%d, hwreg(HW_REG_HW_ID)" % (sT0 + 9))
        e("    s_waitcnt lgkmcnt(0)")
        for i in range(10):
            e("    v_mov_b32 v%d, s%d" % (vX + i, sT0 + i))
        e("    v_mov_b32 v%d, s%d" % (vX + 10, sT0 + 6))
        e("    v_mov_b32 v%d, s%d" % (vX + 11, sT0 + 7))
        e("    s_lshl_b32 s%d, s2, 6" % (sT0))
        e("    s_add_u32 s%d, s%d, 0x1000000" % (sT0, sT0))
        e("    v_mov_b32 v%d, s%d" % (t1, sT0))
        e("    s_mov_b64 exec, 1")
        e("    global_store_dwordx4 v%d, v[%d:%d], s[14:15]" % (t1, vX, vX + 3))
        e("    global_store_dwordx4 v%d, v[%d:%d], s[14:15] offset:16" % (t1, vX + 4, vX + 7))
        e("    global_store_dwordx4 v%d, v[%d:%d], s[14:15] offset:32" % (t1, vX + 8, vX + 11))
    e("L_done:")
    e("    s_endpgm")
    e('.section .rodata,"a"')
    e(".p2align 6")
    e(".amdhsa_kernel %s" % KNAME)
    e("  .amdhsa_next_free_vgpr %d" % NVGPR)
    e("  .amdhsa_next_free_sgpr %d" % NSGPR)
    e("  .amdhsa_accum_offset %d" % ((NVGPR + 3) // 4 * 4))
    e("  .amdhsa_group_segment_fixed_size 0")
    e("  .amdhsa_kernarg_size 48")
    e("  .amdhsa_user_sgpr_count 2")
    e("  .amdhsa_user_sgpr_kernarg_segment_ptr 1")
    e("  .amdhsa_system_sgpr_workgroup_id_x 1")
    e("  .amdhsa_float_denorm_mode_32 3")
    e(".end_amdhsa_kernel")
    return "\n".join(o) + "\n"

if __name__ == "__main__":
    ap = argparse.ArgumentParser()
    ap.add_argument("-o", default="standalone__mha_softmax__decode.s")
    for k, d in dict(W=4, NW=4, SSL=4, TP=640, CAP=8, THR=3, NWC=4, LOOK=2, SLP=0, S=2, STAMP=0, TRACE=0, HOLD=0, HMODE=0, SPROBE=0, LIN=0, EARLY=1, PH=0, QKF=0, WARM=0).items():
        ap.add_argument("--" + k, type=int, default=d)
    ap.add_argument("--POL", default="nt")
    for k, d in (("KW", "545454"), ("VW", "554555"), ("TW", "555555")): ap.add_argument("--" + k, default=d)
    a = vars(ap.parse_args())
    out = a.pop("o")
    open(out, "w").write(gen(**a))
    print("wrote", out)
```

```python
import math, struct, sys, argparse
H = 32; SK = 32768; D = 192
ROWB = D * 2
HEADB = SK * ROWB
NWG = 256
TB = 8 * ROWB
TPH = SK // 8

def f32hex(x):
    return "0x%08x" % struct.unpack("<I", struct.pack("<f", x))[0]

HEADER = """; Kernarg layout for this problem (48 bytes, ptrs only, base s[0:1]):
"""


DOC = """;
;
; Work split.  256 workgroups = %(W)d columns x %(PER)d; round r (0..%(RL)d) covers heads r*%(W)d+col, so the whole chip sweeps a
;
"""

def gen(W=4, NW=4, SSL=4, TP=640, CAP=8, THR=3, NWC=4, LOOK=2, SLP=0, S=2, KW="545454", VW="554555", TW="555555", POL="nt", STAMP=0, TRACE=0, HOLD=0, HMODE=0, SPROBE=0, LIN=0, EARLY=1, PH=0, QKF=0, WARM=0,
        KNAME="standalone__mha_softmax__decode_kernel"):
    o = []
    e = o.append
    PER = NWG // W; RND = H // W
    LOGP = int(math.log2(PER))
    TB2 = 2 * TB; TPH2 = SK // 16
    TOTB = H * HEADB
    SST = PER * NW
    SSF = TPH2 // SST
    LA = 3
    LIML = TPH2 - TP
    assert SSF * SST == TPH2 and SSF < 63 and RND >= 2
    assert SSL * SST <= LIML and SSL >= 2 and LOOK >= 1
    assert CAP * (PER // S) >= -(-(LIML - SSL * SST) // (NW * S)), "cap too small to cover the dynamic units"
    NUT = -(-(2 * TP) // (NW * S))
    RPW = PER // NWC
    assert NW >= NWC and PER <= 64 and RPW % 4 == 0 and 2 * W * S <= 64 and PER // 8 >= S
    pol = (" " + POL) if POL else ""
    C = (D ** -0.5) * math.log2(math.e)
    QO = 0
    NONO = RND * ROWB
    MLO = (NONO + 16 + 15) // 16 * 16
    LSO = MLO + RND * 16
    LLO = LSO + (SSF + 2) * 4
    LLN = max(SSL + CAP + 1, SSF + 1)
    TLO = LLO + LLN * 4
    TLN = NUT + 1
    PO = (TLO + TLN * 4 + 15) // 16 * 16
    assert NW == 4
    DLO = (PO + 16 + 63) // 64 * 64
    DO = (DLO + 2 * NW * 4 + 1023) // 1024 * 1024
    SLOTB = NW * 1024
    RECO = DO + 2 * SLOTB
    SCO = RECO + (RND - 1) * 1024
    SCR = (SSF + 1) * 64
    SCW = (RND - 1) * SCR + (SSL + CAP + 1) * 64
    LDS = SCO + NW * SCW
    MRG = DO + (RND & 1) * SLOTB
    assert LDS <= 64 * 1024 and NWC * 1024 <= SLOTB
    CTR_OFF = 0x800000
    MLG = 0x400000
    OOB = 0xF0000000
    SPIN = 0x100000

    vLANE = 0; vOFF = 1; vM = 2; vNB = 3; vA = 3; vS = 4
    vT = 6; vQ = 14; vO = 28; vMC = 52; vL = 53
    vDA = 54; vQA = 55; vTR = 56; vSA = 57; vLA = 58; vS0 = 59; vPA = 26; vP = 27; vS2 = 84; vNB2 = 86; vQF = 88; vAC = 112
    vB = 60; vX = 60
    NVGPR = max(116 if QKF else 88, vX + 5 * NW + 1 + 4 * RND, vX + 4 * RND + 4, vX + 4 * RPW)
    sCOL = 24; sIDX = 25; sWAVE = 26; sMASK = 27; sC = 28; sCNT = 29; sR = 30; sTMP = 31
    sOFF = 32; sHO = 33; sG = 34; sBIAS = 35; sNB = 36; sHEAD = 37; sT2 = 38; sNON = 39
    sT0 = 40
    sM1 = 53; sN = 54; sNT = 55; sL0 = 56; sOFB = 57; sLIM = 58; sNEED = 59; sBASE = 60; sP = 61; sCAP = 62; sT3 = 63
    sW = 64
    sBAD = sW + RPW + (RPW & 1)
    NSGPR = sBAD + 2

    e(HEADER + "; @launch grid=(%d,1,1) block=(%d,1,1) lds=%d" % (NWG, (NW + 1) * 64, LDS))
    if TRACE: e("; UNITBYTES=%d" % TB2)
    e(DOC.rstrip("\n") % dict(W=W, PER=PER, RL=RND - 1))
    e('.amdgcn_target "amdgcn-amd-amdhsa--gfx950"')
    e(".text")
    e(".globl %s" % KNAME)
    e(".p2align 8")
    e(".type %s,@function" % KNAME)
    e("%s:" % KNAME)
    e("    s_cmp_ge_u32 s2, %d" % NWG)
    e("    s_cbranch_scc1 L_done")
    e("    s_load_dwordx4 s[4:7], s[0:1], 0")
    e("    s_load_dwordx4 s[8:11], s[0:1], 16")
    e("    s_load_dwordx4 s[12:15], s[0:1], 32")
    if STAMP or HOLD or SPROBE or PH:
        e("    s_memrealtime s[%d:%d]" % (sT0, sT0 + 1))
    e("    v_lshrrev_b32 v%d, 6, v0" % vA)
    e("    v_and_b32 v%d, 63, v0" % vLANE)
    e("    v_readfirstlane_b32 s%d, v%d" % (sWAVE, vA))
    e("    s_lshr_b32 s%d, s2, %d" % (sCOL, LOGP))
    e("    s_and_b32 s%d, s2, %d" % (sIDX, PER - 1))
    e("    s_mul_i32 s%d, s%d, %d" % (sL0, sIDX, NW))
    e("    s_cmp_eq_u32 s%d, %d" % (sWAVE, NW))
    e("    s_cbranch_scc1 L_service")
    e("    v_lshrrev_b32 v%d, 3, v%d" % (vS0, vLANE))
    e("    v_and_b32 v%d, 7, v%d" % (vQA, vLANE))
    e("    v_lshlrev_b32 v%d, 4, v%d" % (vQA, vQA))
    e("    v_mul_u32_u24 v%d, %d, v%d" % (vT, ROWB, vS0))
    e("    v_add_u32 v%d, v%d, v%d" % (vOFF, vT, vQA))
    if LIN: e("    v_lshlrev_b32 v%d, 4, v%d" % (vOFF, vLANE))
    e("    s_mov_b32 s18, %d" % TOTB)
    e("    s_mov_b32 s19, 0x00020000")
    e("    s_mov_b32 s22, %d" % TOTB)
    e("    s_mov_b32 s23, 0x00020000")
    e("    s_mul_i32 s%d, s%d, %d" % (sHO, sCOL, HEADB))
    e("    s_add_u32 s%d, s%d, s%d" % (sG, sL0, sWAVE))
    e("    s_mul_i32 s%d, s%d, %d" % (sOFF, sG, TB2))
    e("    s_add_u32 s%d, s%d, s%d" % (sOFF, sOFF, sHO))
    e("    s_add_u32 s%d, s%d, %d" % (sOFB, sOFF, TB))
    e("    s_mul_i32 s%d, s%d, %d" % (sCNT, sCOL, ROWB))
    e("    v_add_u32 v%d, s%d, v%d" % (vT + 1, sCNT, vQA))
    e("    s_waitcnt lgkmcnt(0)")
    if SPROBE: e("    s_memrealtime s[42:43]")
    for j in range(3):
        e("    global_load_dwordx4 v[%d:%d], v%d, s[4:5] offset:%d" % (vQ + 4 * j, vQ + 4 * j + 3, vT + 1, j * 128))
    e("    s_and_b32 s7, s7, 0xffff")
    e("    s_and_b32 s9, s9, 0xffff")
    e("    s_mov_b64 s[16:17], s[6:7]")
    e("    s_mov_b64 s[20:21], s[6:7]")
    def load(j):
        e("    buffer_load_dwordx4 v[%d:%d], v%d, s[%s], s%d offen offset:%d%s" %
          (vB + 4 * j, vB + 4 * j + 3, vOFF, "16:19" if j < 3 else "20:23", sOFF if j < 3 else sOFB, (j % 3) * (1024 if LIN else 128), pol))
    for j in range(6): load(j)
    if TRACE:
        e("    s_mul_i32 s52, s2, %d" % (NW + 1))
        e("    s_add_u32 s52, s52, s%d" % sWAVE)
        e("    s_lshl_b32 s52, s52, 10")
        e("    s_add_u32 s52, s52, 0x1100000")
        e("    v_mov_b32 v%d, s52" % vTR)
    e("    s_mov_b32 s%d, 0xffff0000" % sMASK)
    e("    s_mov_b32 s%d, %s" % (sC, f32hex(C)))
    e("    s_mov_b32 s%d, 0" % sR)
    e("    v_mov_b32 v%d, 0" % vP)
    e("    s_lshl_b32 s%d, s%d, 2" % (sTMP, sWAVE))
    e("    s_add_u32 s%d, s%d, %d" % (sTMP, sTMP, PO))
    e("    v_mov_b32 v%d, s%d" % (vPA, sTMP))
    e("    s_mov_b32 s%d, %d" % (sT2, SLOTB))
    e("    s_lshl_b32 s%d, s%d, 10" % (sTMP, sWAVE))
    e("    s_add_u32 s%d, s%d, %d" % (sTMP, sTMP, DO))
    e("    v_lshlrev_b32 v%d, 4, v%d" % (vDA, vLANE))
    e("    v_add_u32 v%d, s%d, v%d" % (vDA, sTMP, vDA))
    e("    s_lshl_b32 s%d, s%d, 2" % (sT3, sWAVE))
    e("    s_add_u32 s%d, s%d, %d" % (sT3, sT3, DLO))
    e("    s_mul_i32 s%d, s%d, %d" % (sTMP, sWAVE, SCW))
    e("    s_add_u32 s%d, s%d, %d" % (sTMP, sTMP, SCO))
    e("    v_lshlrev_b32 v%d, 3, v%d" % (vS0, vS0))
    e("    v_add_u32 v%d, s%d, v%d" % (vS0, sTMP, vS0))
    def init_state():
        e("    v_mov_b32 v%d, 0" % vL)
        for i in range(24): e("    v_mov_b32 v%d, 0" % (vO + i))
    init_state()
    if SPROBE:
        e("    s_memrealtime s[44:45]")
        e("    s_waitcnt vmcnt(5)")
        e("    s_memrealtime s[46:47]")
    e("    s_barrier")
    if SPROBE: e("    s_waitcnt vmcnt(0)")
    if SPROBE:
        e("    s_memrealtime s[48:49]")
        e("    s_mul_i32 s52, s2, %d" % (NW + 1))
        e("    s_add_u32 s52, s52, s%d" % sWAVE)
        e("    s_lshl_b32 s52, s52, 5")
        e("    s_add_u32 s52, s52, 0x1100000")
        e("    v_mov_b32 v%d, s52" % vTR)
        e("    s_waitcnt lgkmcnt(0)")
        for i in range(5): e("    v_mov_b32 v%d, s%d" % (vT + i, 40 + 2 * i))
        e("    s_mov_b64 exec, 1")
        e("    global_store_dwordx4 v%d, v[%d:%d], s[14:15]" % (vTR, vT, vT + 3))
        e("    global_store_dword v%d, v%d, s[14:15] offset:16" % (vTR, vT + 4))
        e("    s_mov_b64 exec, -1")
    def trace():
        if TRACE:
            e("    s_memrealtime s[50:51]")
            e("    s_waitcnt lgkmcnt(0)")
            e("    v_mov_b32 v%d, s50" % vT)
            e("    s_mov_b64 exec, 1")
            e("    global_store_dword v%d, v%d, s[14:15]" % (vTR, vT))
            e("    s_mov_b64 exec, -1")
            e("    v_add_u32 v%d, 4, v%d" % (vTR, vTR))
    def next_off16(sbase, sh):
        e("    s_add_u32 s%d, s%d, s%d" % (sG, sbase, sWAVE))
        e("    s_mul_i32 s%d, s%d, %d" % (sOFF, sG, TB2))
        e("    s_add_u32 s%d, s%d, s%d" % (sOFF, sOFF, sh))
        e("    s_cmp_lt_u32 s%d, s%d" % (sG, sLIM))
        e("    s_cselect_b32 s%d, s%d, 0x%x" % (sOFF, sOFF, OOB))
        e("    s_add_u32 s%d, s%d, %d" % (sOFB, sOFF, TB))
    def next_off8():
        e("    s_add_u32 s%d, s%d, s%d" % (sG, sNB, sWAVE))
        e("    s_mul_i32 s%d, s%d, %d" % (sOFF, sG, TB))
        e("    s_add_u32 s%d, s%d, s%d" % (sOFF, sOFF, sHO))
        e("    s_cmp_lt_u32 s%d, %d" % (sG, TPH))
        e("    s_cselect_b32 s%d, s%d, 0x%x" % (sOFF, sOFF, OOB))
        e("    s_mov_b32 s%d, s%d" % (sOFB, sOFF))
    def dots4(jj, accs, first):
        j = jj % 3
        for i in range(4):
            acc = accs[i % 2]
            if first and i < 2:
                e("    v_dot2_f32_bf16 v%d, v%d, v%d, 0" % (acc, vB + 4 * jj + i, vQ + 4 * j + i))
            else:
                e("    v_dot2_f32_bf16 v%d, v%d, v%d, v%d" % (acc, vB + 4 * jj + i, vQ + 4 * j + i, acc))
    def pv(jj, r, pat):
        j = jj % 3
        e("    s_waitcnt vmcnt(%s)" % pat[jj])
        for i in range(4):
            e("    v_lshlrev_b32 v%d, 16, v%d" % (vT + 2 * i, vB + 4 * jj + i))
            e("    v_and_b32 v%d, s%d, v%d" % (vT + 2 * i + 1, sMASK, vB + 4 * jj + i))
        load(jj)
        for i in range(4):
            oo = vO + j * 8 + 2 * i
            e("    v_pk_fma_f32 v[%d:%d], v[%d:%d], v[%d:%d], v[%d:%d] op_sel:[0,%d,0] op_sel_hi:[1,%d,1]" %
              (oo, oo + 1, vT + 2 * i, vT + 2 * i + 1, vS, vS + 1, oo, oo + 1, r, r))
    def set_round():
        e("    s_cmp_eq_u32 s%d, %d" % (sR, RND - 1))
        e("    s_cselect_b32 s%d, %d, 0" % (sLIM, TP))
        e("    s_cselect_b32 s%d, %d, 0" % (sTMP, LLO - LSO))
        e("    s_sub_u32 s%d, %d, s%d" % (sLIM, TPH2, sLIM))
        e("    s_add_u32 s%d, s%d, %d" % (sTMP, sTMP, LSO))
        e("    v_mov_b32 v%d, s%d" % (vLA, sTMP))
        e("    s_mul_i32 s%d, s%d, %d" % (sTMP, sR, SCR))
        e("    v_add_u32 v%d, s%d, v%d" % (vSA, sTMP, vS0))
    def progress():
        e("    ds_write_b32 v%d, v%d" % (vPA, vP))
        e("    v_add_u32 v%d, 1, v%d" % (vP, vP))
    def waitent(name):
        e("L_%sw:" % name)
        e("    s_mov_b32 s%d, 0x%x" % (sN, SPIN))
        e("L_%sw1:" % name)
        e("    ds_read_b32 v%d, v%d" % (vNB, vLA))
        e("    s_sub_u32 s%d, s%d, 1" % (sN, sN))
        e("    s_cbranch_scc1 L_%sok" % name)
        e("    s_waitcnt lgkmcnt(0)")
        e("    v_readfirstlane_b32 s%d, v%d" % (sNB, vNB))
        e("    s_cmp_eq_u32 s%d, -1" % sNB)
        e("    s_cbranch_scc1 L_%sw1" % name)
        e("    s_branch L_%sok" % name)
    def ahead():
        e("    ds_read_b32 v%d, v%d offset:4" % (vNB2, vLA))
        e("    v_add_u32 v%d, 4, v%d" % (vLA, vLA))
        progress()
    e("L_kround:")
    set_round()
    e("    ds_read_b32 v%d, v%d offset:4" % (vNB2, vLA))
    e("    v_add_u32 v%d, 4, v%d" % (vLA, vLA))
    e("    v_mov_b32 v%d, 0xff7fffff" % vM)
    e("    v_mov_b32 v%d, v%d" % (vMC, vSA))
    e("    v_add_u32 v%d, 64, v%d" % (vSA, vSA))
    e("    s_waitcnt lgkmcnt(0)")
    if QKF:
        e("    s_waitcnt vmcnt(6)")
        for i in range(12):
            e("    v_lshlrev_b32 v%d, 16, v%d" % (vQF + 2 * i, vQ + i))
            e("    v_and_b32 v%d, s%d, v%d" % (vQF + 2 * i + 1, sMASK, vQ + i))
    e("L_k:")
    e("    s_cmp_lt_u32 s%d, s%d" % (sG, sLIM))
    e("    s_cselect_b32 s%d, 0, 0xff800000" % sBIAS)
    e("    s_waitcnt lgkmcnt(2)")
    e("    v_readfirstlane_b32 s%d, v%d" % (sNB, vNB2))
    e("    s_cmp_eq_u32 s%d, -1" % sNB)
    e("    s_cbranch_scc1 L_kw")
    e("L_kok:")
    e("    s_cmp_lt_u32 s%d, s%d" % (sNB, sLIM))
    e("    s_cbranch_scc0 L_klast")
    next_off16(sNB, sHO)
    e("L_kgo:")
    for jj in range(6):
        r = jj // 3
        e("    s_waitcnt vmcnt(%s)" % KW[jj])
        if QKF:
            j = jj % 3
            for i in range(4):
                e("    v_lshlrev_b32 v%d, 16, v%d" % (vT + 2 * i, vB + 4 * jj + i))
                e("    v_and_b32 v%d, s%d, v%d" % (vT + 2 * i + 1, sMASK, vB + 4 * jj + i))
            load(jj)
            for i in range(4):
                ac = vAC + 2 * r
                qq = vQF + 8 * j + 2 * i
                if j == 0 and i == 0:
                    e("    v_pk_mul_f32 v[%d:%d], v[%d:%d], v[%d:%d]" % (ac, ac + 1, vT, vT + 1, qq, qq + 1))
                else:
                    e("    v_pk_fma_f32 v[%d:%d], v[%d:%d], v[%d:%d], v[%d:%d]" % (ac, ac + 1, vT + 2 * i, vT + 2 * i + 1, qq, qq + 1, ac, ac + 1))
        else:
            dots4(jj, (vS + r, vT + r), jj % 3 == 0)
            load(jj)
        if jj == 2: ahead()
    if QKF:
        e("    v_add_f32 v%d, v%d, v%d" % (vS, vAC, vAC + 1))
        e("    v_add_f32 v%d, v%d, v%d" % (vS + 1, vAC + 2, vAC + 3))
    else:
        e("    v_add_f32 v%d, v%d, v%d" % (vS, vS, vT))
        e("    s_nop 0")
        e("    v_add_f32 v%d, v%d, v%d" % (vS + 1, vS + 1, vT + 1))
    e("    s_nop 0")
    for pat in ("quad_perm:[1,0,3,2]", "quad_perm:[2,3,0,1]", "row_half_mirror"):
        for r in range(2):
            e("    v_add_f32_dpp v%d, v%d, v%d %s row_mask:0xf bank_mask:0xf" % (vS + r, vS + r, vS + r, pat))
        if pat != "row_half_mirror": e("    s_nop 0")
    e("    v_add_f32 v%d, s%d, v%d" % (vS, sBIAS, vS))
    e("    v_add_f32 v%d, s%d, v%d" % (vS + 1, sBIAS, vS + 1))
    e("    v_max3_f32 v%d, v%d, v%d, v%d" % (vM, vM, vS, vS + 1))
    e("    ds_write_b64 v%d, v[%d:%d]" % (vSA, vS, vS + 1))
    e("    v_add_u32 v%d, 64, v%d" % (vSA, vSA))
    trace()
    e("    s_cmp_lt_u32 s%d, s%d" % (sNB, sLIM))
    e("    s_cbranch_scc1 L_k")
    e("    ds_write_b32 v%d, v%d" % (vMC, vM))
    e("    s_cmp_eq_u32 s%d, %d" % (sR, RND - 1))
    e("    s_cbranch_scc1 L_vstart")
    e("    s_cmp_lg_u32 s%d, 0" % sR)
    e("    s_cbranch_scc1 L_qok")
    e("    s_barrier")
    e("L_qok:")
    e("    v_add_u32 v%d, %d, v%d" % (vQA, ROWB, vQA))
    e("    s_add_u32 s%d, s%d, 1" % (sR, sR))
    e("    s_add_u32 s%d, s%d, %d" % (sHO, sHO, W * HEADB))
    for j in range(3):
        e("    ds_read_b128 v[%d:%d], v%d offset:%d" % (vQ + 4 * j, vQ + 4 * j + 3, vQA, QO + j * 128))
    e("    s_branch L_kround")
    e("L_vstart:")
    e("    s_mov_b32 s%d, 0" % sR)
    e("    s_sub_u32 s%d, s%d, %d" % (sHO, sHO, (RND - 1) * W * HEADB))
    e("L_vround:")
    set_round()
    e("    ds_read_b32 v%d, v%d" % (vM, vSA))
    e("    v_add_u32 v%d, 64, v%d" % (vSA, vSA))
    e("    ds_read_b64 v[%d:%d], v%d" % (vS2, vS2 + 1, vSA))
    e("    ds_read_b32 v%d, v%d offset:4" % (vNB2, vLA))
    e("    v_add_u32 v%d, 4, v%d" % (vLA, vLA))
    e("    s_waitcnt lgkmcnt(0)")
    e("    v_mul_f32 v%d, s%d, v%d" % (vMC, sC, vM))
    e("L_v:")
    e("    s_waitcnt lgkmcnt(1)")
    e("    v_readfirstlane_b32 s%d, v%d" % (sNB, vNB2))
    e("    v_fma_f32 v%d, v%d, s%d, -v%d" % (vS, vS2, sC, vMC))
    e("    v_fma_f32 v%d, v%d, s%d, -v%d" % (vS + 1, vS2 + 1, sC, vMC))
    e("    s_cmp_lt_u32 s%d, s%d" % (sNB, sLIM))
    e("    s_cbranch_scc0 L_vlast")
    next_off16(sNB, sHO)
    e("L_vgo:")
    e("    v_exp_f32 v%d, v%d" % (vS, vS))
    e("    v_exp_f32 v%d, v%d" % (vS + 1, vS + 1))
    e("    s_nop 0")
    e("    v_add_f32 v%d, v%d, v%d" % (vL, vL, vS))
    e("    v_add_f32 v%d, v%d, v%d" % (vL, vL, vS + 1))
    for jj in range(6):
        pv(jj, jj // 3, VW)
        if jj == 2:
            e("    ds_read_b64 v[%d:%d], v%d offset:64" % (vS2, vS2 + 1, vSA))
            e("    v_add_u32 v%d, 64, v%d" % (vSA, vSA))
            ahead()
    trace()
    e("    s_cmp_lt_u32 s%d, s%d" % (sNB, sLIM))
    e("    s_cbranch_scc1 L_v")
    e("    s_cmp_lg_u32 s%d, %d" % (sR, RND - 1))
    e("    s_cbranch_scc1 L_dump")
    e("    s_cmp_ge_u32 s%d, %d" % (sNB, TPH))
    e("    s_cbranch_scc1 L_dump")
    e("L_t:")
    e("    s_cmp_lt_u32 s%d, %d" % (sG, TPH))
    e("    s_cselect_b32 s%d, 0, 0xff800000" % sBIAS)
    e("    s_waitcnt lgkmcnt(1)")
    e("    v_readfirstlane_b32 s%d, v%d" % (sNB, vNB2))
    e("    s_cmp_eq_u32 s%d, -1" % sNB)
    e("    s_cbranch_scc1 L_tw")
    e("L_tok:")
    next_off8()
    for jj in range(3):
        e("    s_waitcnt vmcnt(%s)" % TW[jj])
        dots4(jj, (vS, vT), jj == 0)
        load(jj)
    ahead()
    e("    v_add_f32 v%d, v%d, v%d" % (vS, vS, vT))
    e("    s_nop 1")
    for pat in ("quad_perm:[1,0,3,2]", "quad_perm:[2,3,0,1]", "row_half_mirror"):
        e("    v_add_f32_dpp v%d, v%d, v%d %s row_mask:0xf bank_mask:0xf" % (vS, vS, vS, pat))
        if pat != "row_half_mirror": e("    s_nop 1")
    e("    v_add_f32 v%d, s%d, v%d" % (vS, sBIAS, vS))
    e("    v_max_f32 v%d, v%d, v%d" % (vM, vM, vS))
    e("    v_mov_b32 v%d, v%d" % (vA, vMC))
    e("    v_mul_f32 v%d, s%d, v%d" % (vMC, sC, vM))
    e("    v_sub_f32 v%d, v%d, v%d" % (vA, vA, vMC))
    e("    v_fma_f32 v%d, v%d, s%d, -v%d" % (vS, vS, sC, vMC))
    e("    v_exp_f32 v%d, v%d" % (vA, vA))
    e("    v_exp_f32 v%d, v%d" % (vS, vS))
    for i in range(12):
        e("    v_pk_mul_f32 v[%d:%d], v[%d:%d], v[%d:%d] op_sel:[0,1] op_sel_hi:[1,1]" %
          (vO + 2 * i, vO + 2 * i + 1, vO + 2 * i, vO + 2 * i + 1, vA - 1, vA))
    e("    v_fma_f32 v%d, v%d, v%d, v%d" % (vL, vL, vA, vS))
    for jj in range(3, 6): pv(jj, 0, TW)
    trace()
    e("    s_cmp_lt_u32 s%d, %d" % (sNB, TPH))
    e("    s_cbranch_scc1 L_t")
    e("L_dump:")
    vZ = vT; vMX = vT + 3; t0 = vT + 4; vLX = vT + 5; t1 = vT + 6
    e("    v_max_f32_dpp v%d, v%d, v%d row_ror:8 row_mask:0xf bank_mask:0xf" % (vMX, vMC, vMC))
    e("    v_mov_b32 v%d, s%d" % (t1, sT3))
    for sw in ("v_permlane16_swap_b32", "v_permlane32_swap_b32"):
        e("    v_mov_b32 v%d, v%d" % (t0, vMX))
        e("    s_nop 1")
        e("    %s v%d, v%d" % (sw, vMX, t0))
        e("    s_nop 0")
        e("    v_max_f32 v%d, v%d, v%d" % (vMX, vMX, t0))
    e("    v_sub_f32 v%d, v%d, v%d" % (vA, vMC, vMX))
    e("    v_exp_f32 v%d, v%d" % (vA, vA))
    e("    s_xor_b32 s%d, s%d, %d" % (sT3, sT3, DLO ^ (DLO + NW * 4)) if (DLO % (2 * NW * 4) == 0) else "    s_nop 0")
    e("    v_mul_f32 v%d, v%d, v%d" % (vL, vL, vA))
    for i in range(12):
        e("    v_pk_mul_f32 v[%d:%d], v[%d:%d], v[%d:%d] op_sel:[0,1] op_sel_hi:[1,1]" %
          (vO + 2 * i, vO + 2 * i + 1, vO + 2 * i, vO + 2 * i + 1, vA - 1, vA))
    e("    v_add_f32_dpp v%d, v%d, v%d row_ror:8 row_mask:0xf bank_mask:0xf" % (vLX, vL, vL))
    for j in range(3):
        for ee in range(4):
            a = vO + j * 8 + ee
            e("    v_permlane32_swap_b32 v%d, v%d" % (a, a + 4))
    e("    v_mov_b32 v%d, v%d" % (t0, vLX))
    for j in range(3):
        for ee in range(4):
            a = vO + j * 8 + ee
            e("    v_add_f32 v%d, v%d, v%d" % (a, a, a + 4))
    e("    v_permlane16_swap_b32 v%d, v%d" % (vLX, t0))
    for j in range(3):
        for ee in range(2):
            a = vO + j * 8 + ee
            e("    v_permlane16_swap_b32 v%d, v%d" % (a, a + 2))
    e("    v_add_f32 v%d, v%d, v%d" % (vLX, vLX, t0))
    for j in range(3):
        for ee in range(2):
            a = vO + j * 8 + ee
            e("    v_add_f32 v%d, v%d, v%d" % (a, a, a + 2))
    e("    v_mov_b32 v%d, v%d" % (t0, vLX))
    e("    s_add_u32 s%d, s%d, 1" % (sR, sR))
    for j in range(3):
        a = vO + j * 8
        e("    v_add_f32_dpp v%d, v%d, v%d row_ror:8 row_mask:0xf bank_mask:0x3" % (vZ + j, a, a))
    e("    v_permlane32_swap_b32 v%d, v%d" % (vLX, t0))
    for j in range(3):
        a = vO + j * 8
        e("    v_add_f32_dpp v%d, v%d, v%d row_ror:8 row_mask:0xf bank_mask:0xc" % (vZ + j, a + 1, a + 1))
    e("    v_add_f32 v%d, v%d, v%d" % (vLX, vLX, t0))
    e("    ds_write_b128 v%d, v[%d:%d]" % (vDA, vZ, vZ + 3))
    e("    ds_write_b32 v%d, v%d" % (t1, vLX))
    e("    v_add_u32 v%d, s%d, v%d" % (vDA, sT2, vDA))
    e("    s_sub_u32 s%d, 0, s%d" % (sT2, sT2))
    e("    s_add_u32 s%d, s%d, %d" % (sHO, sHO, W * HEADB))
    e("    s_waitcnt lgkmcnt(0)")
    e("    s_barrier")
    e("    s_cmp_eq_u32 s%d, %d" % (sR, RND))
    e("    s_cbranch_scc1 L_fin")
    init_state()
    e("    s_branch L_vround")
    assert DLO % (2 * NW * 4) == 0
    e("L_klast:")
    e("    s_add_u32 s%d, s%d, %d" % (sTMP, sHO, W * HEADB))
    e("    s_cmp_lg_u32 s%d, %d" % (sR, RND - 1))
    e("    s_cbranch_scc1 L_klast2")
    e("    s_sub_u32 s%d, s%d, %d" % (sTMP, sHO, (RND - 1) * W * HEADB))
    e("    s_mov_b64 s[16:17], s[8:9]")
    e("    s_mov_b64 s[20:21], s[8:9]")
    e("L_klast2:")
    next_off16(sL0, sTMP)
    e("    s_branch L_kgo")
    e("L_vlast:")
    e("    s_cmp_eq_u32 s%d, %d" % (sR, RND - 1))
    e("    s_cbranch_scc1 L_vlast2")
    e("    s_add_u32 s%d, s%d, %d" % (sTMP, sHO, W * HEADB))
    next_off16(sL0, sTMP)
    e("    s_branch L_vgo")
    e("L_vlast2:")
    e("    s_mov_b64 s[16:17], s[6:7]")
    e("    v_mov_b32 v%d, %d" % (vLA, TLO))
    e("    s_mov_b32 s%d, -1" % sNB)
    waitent("z")
    e("L_zok:")
    next_off8()
    e("    s_branch L_vgo")
    waitent("k")
    waitent("t")

    e("L_fin:")
    e("    s_cmp_ge_u32 s%d, %d" % (sIDX, RND))
    e("    s_cbranch_scc1 L_done")
    e("    s_cmp_ge_u32 s%d, %d" % (sWAVE, NWC))
    e("    s_cbranch_scc1 L_done")
    cA = vT; cB = vT + 1; cT = vT + 2; cB0 = vT + 3; cMX = vT + 4; cLX = vT + 5; cW = vT + 6; cLB = vT + 7
    cM = vQ; cACC = vQ + 4; cO = vQ + 8; cX = vX
    e("    v_mov_b32 v%d, %d" % (cT, NONO))
    e("    ds_read_b32 v%d, v%d" % (cT, cT))
    e("    s_mul_i32 s%d, s%d, %d" % (sHEAD, sIDX, W))
    e("    s_add_u32 s%d, s%d, s%d" % (sHEAD, sHEAD, sCOL))
    e("    v_lshlrev_b32 v%d, 4, v%d" % (cLB, vLANE))
    e("    s_lshl_b32 s%d, s%d, %d" % (sTMP, sHEAD, LOGP + 4))
    e("    s_add_u32 s%d, s%d, 0x%x" % (sTMP, sTMP, MLG))
    e("    s_mul_i32 s%d, s%d, %d" % (sCNT, sWAVE, RPW * 16))
    e("    v_add_u32 v%d, s%d, v%d" % (cA, sCNT, cLB))
    e("    v_and_b32 v%d, %d, v%d" % (cA, PER * 16 - 1, cA))
    e("    v_add_u32 v%d, s%d, v%d" % (cA, sTMP, cA))
    e("    s_lshl_b32 s%d, s%d, %d" % (sTMP, sHEAD, LOGP + 10))
    e("    s_mul_i32 s%d, s%d, %d" % (sCNT, sWAVE, RPW * 1024))
    e("    s_add_u32 s%d, s%d, s%d" % (sCNT, sCNT, sTMP))
    e("    v_add_u32 v%d, s%d, v%d" % (cB0, sCNT, cLB))
    e("    v_and_b32 v%d, 7, v%d" % (cO, vLANE))
    e("    v_lshlrev_b32 v%d, 4, v%d" % (cO, cO))
    e("    v_lshrrev_b32 v%d, 3, v%d" % (cW, vLANE))
    e("    v_lshl_add_u32 v%d, v%d, 1, v%d" % (cO, cW, cO))
    e("    s_mul_i32 s%d, s%d, %d" % (sTMP, sHEAD, ROWB))
    e("    v_add_u32 v%d, s%d, v%d" % (cO, sTMP, cO))
    e("    s_lshl_b32 s%d, s%d, 10" % (sTMP, sWAVE))
    e("    s_add_u32 s%d, s%d, %d" % (sTMP, sTMP, MRG))
    e("    v_add_u32 v%d, s%d, v%d" % (cW, sTMP, cLB))
    e("    s_waitcnt vmcnt(0) lgkmcnt(0)")
    if WARM & 1:
        e("    global_load_ushort v%d, v%d, s[10:11]" % (cMX, cO))
    e("    v_readfirstlane_b32 s%d, v%d" % (sNON, cT))
    e("    s_mov_b32 s%d, 0x%x" % (sN, SPIN))
    e("L_poll1:")
    e("    s_sub_u32 s%d, s%d, 1" % (sN, sN))
    e("    s_cbranch_scc1 L_done")
    e("    global_load_dwordx4 v[%d:%d], v%d, s[14:15] sc1" % (cM, cM + 3, cA))
    e("    s_waitcnt vmcnt(0)")
    e("    v_cmp_eq_u32 vcc, s%d, v%d" % (sNON, cM + 3))
    if PER < 64:
        e("    s_and_b32 vcc_hi, vcc_hi, 0" if PER == 32 else "    s_and_b64 vcc, vcc, 0x%x" % ((1 << PER) - 1))
    e("    s_bcnt1_i32_b64 s%d, vcc" % sTMP)
    e("    s_cmp_lt_u32 s%d, %d" % (sTMP, PER - THR))
    e("    s_cbranch_scc1 L_poll1")
    if STAMP: e("    s_memrealtime s[42:43]")
    e("L_poll2:")
    e("    s_sub_u32 s%d, s%d, 1" % (sN, sN))
    e("    s_cbranch_scc1 L_done")
    e("    v_mov_b32 v%d, v%d" % (cB, cB0))
    e("    global_load_dwordx4 v[%d:%d], v%d, s[14:15] sc1" % (cM, cM + 3, cA))
    for j in range(RPW):
        e("    global_load_dwordx4 v[%d:%d], v%d, s[14:15] offset:%d sc1" % (cX + 4 * j, cX + 4 * j + 3, cB, (j % 4) * 1024))
        if j % 4 == 3 and j + 1 < RPW:
            e("    v_add_u32 v%d, 4096, v%d" % (cB, cB))
    e("    s_waitcnt vmcnt(%d)" % RPW)
    e("    v_cmp_ne_u32 s[%d:%d], s%d, v%d" % (sBAD, sBAD + 1, sNON, cM + 3))
    e("    v_mov_b32 v%d, v%d" % (cMX, cM))
    e("    s_cmp_lg_u64 s[%d:%d], 0" % (sBAD, sBAD + 1))
    e("    s_cbranch_scc1 L_retry")
    if STAMP: e("    s_memrealtime s[44:45]")
    def allreduce(op, r, t):
        e("    s_nop 1")
        for pat in ("quad_perm:[1,0,3,2]", "quad_perm:[2,3,0,1]", "row_half_mirror", "row_ror:8"):
            e("    %s_dpp v%d, v%d, v%d %s row_mask:0xf bank_mask:0xf" % (op, r, r, r, pat))
            e("    s_nop 1")
        for sw in ("v_permlane16_swap_b32", "v_permlane32_swap_b32"):
            e("    v_mov_b32 v%d, v%d" % (t, r))
            e("    s_nop 1")
            e("    %s v%d, v%d" % (sw, r, t))
            e("    s_nop 0")
            e("    %s v%d, v%d, v%d" % (op, r, r, t))
    allreduce("v_max_f32", cMX, cT)
    e("    v_sub_f32 v%d, v%d, v%d" % (cM, cM, cMX))
    e("    v_exp_f32 v%d, v%d" % (cM, cM))
    if PER < 64:
        e("    v_cmp_gt_u32 vcc, %d, v%d" % (PER, vLANE))
    e("    v_mov_b32 v%d, 0" % cACC)
    e("    v_mul_f32 v%d, v%d, v%d" % (cLX, cM, cM + 1))
    e("    v_mov_b32 v%d, 0" % (cACC + 1))
    if PER < 64:
        e("    v_cndmask_b32 v%d, 0, v%d, vcc" % (cLX, cLX))
    e("    v_mov_b32 v%d, 0" % (cACC + 2))
    steps = []
    for pat in ("quad_perm:[1,0,3,2]", "quad_perm:[2,3,0,1]", "row_half_mirror", "row_ror:8"):
        steps.append("    v_add_f32_dpp v%d, v%d, v%d %s row_mask:0xf bank_mask:0xf" % (cLX, cLX, cLX, pat))
    for sw in ("v_permlane16_swap_b32", "v_permlane32_swap_b32"):
        steps.append("    v_mov_b32 v%d, v%d" % (cT, cLX))
        steps.append("    %s v%d, v%d" % (sw, cLX, cT))
        steps.append("    v_add_f32 v%d, v%d, v%d" % (cLX, cLX, cT))
    steps.append("    v_rcp_f32 v%d, v%d" % (cLX, cLX))
    for j in range(RPW):
        e("    v_readlane_b32 s%d, v%d, %d" % (sW + j, cM, j))
        if j % 2 == 1 and len(steps) > 7: e(steps.pop(0))
    if STAMP: e("    s_memrealtime s[46:47]")
    for j in range(RPW):
        if j % 4 == 0:
            e("    s_waitcnt vmcnt(%d)" % (RPW - 4 - j))
        sp = (sW + j) & ~1; hi = (sW + j) & 1
        e("    v_cmp_ne_u32 vcc, s%d, v%d" % (sNON, cX + 4 * j + 3))
        e("    v_pk_fma_f32 v[%d:%d], v[%d:%d], s[%d:%d], v[%d:%d] op_sel:[0,%d,0] op_sel_hi:[1,%d,1]" %
          (cACC, cACC + 1, cX + 4 * j, cX + 4 * j + 1, sp, sp + 1, cACC, cACC + 1, hi, hi))
        e("    v_fma_f32 v%d, v%d, s%d, v%d" % (cACC + 2, cX + 4 * j + 2, sW + j, cACC + 2))
        if steps: e(steps.pop(0))
        e("    s_or_b64 s[%d:%d], s[%d:%d], vcc" % (sBAD, sBAD + 1, sBAD, sBAD + 1))
    assert not steps
    e("    s_cbranch_scc1 L_poll2")
    if STAMP: e("    s_memrealtime s[48:49]")
    if NWC > 1:
        e("    ds_write_b128 v%d, v[%d:%d]" % (cW, cACC, cACC + 3))
        e("    s_waitcnt lgkmcnt(0)")
        e("    s_barrier")
        e("    s_cmp_lg_u32 s%d, 0" % sWAVE)
        e("    s_cbranch_scc1 L_done")
        for w in range(1, NWC):
            e("    ds_read_b128 v[%d:%d], v%d offset:%d" % (cX + 4 * w, cX + 4 * w + 3, cW, w * 1024))
        for w in range(1, NWC):
            e("    s_waitcnt lgkmcnt(%d)" % (NWC - 1 - w))
            e("    v_pk_add_f32 v[%d:%d], v[%d:%d], v[%d:%d]" % (cACC, cACC + 1, cACC, cACC + 1, cX + 4 * w, cX + 4 * w + 1))
            e("    v_add_f32 v%d, v%d, v%d" % (cACC + 2, cACC + 2, cX + 4 * w + 2))
    for k in range(3):
        e("    v_mul_f32 v%d, v%d, v%d" % (cACC + k, cACC + k, cLX))
    e("    v_cvt_pk_bf16_f32 v%d, v%d, v%d" % (cACC, cACC, cACC + 1))
    e("    v_cvt_pk_bf16_f32 v%d, v%d, v%d" % (cACC + 2, cACC + 2, cACC + 2))
    e("    global_store_short v%d, v%d, s[10:11]" % (cO, cACC))
    e("    global_store_short_d16_hi v%d, v%d, s[10:11] offset:128" % (cO, cACC))
    e("    global_store_short v%d, v%d, s[10:11] offset:256" % (cO, cACC + 2))
    if HOLD and HMODE:
        e("    v_mov_b32 v%d, 0" % cT)
        e("    global_load_dword v%d, v%d, s[12:13] offset:128 sc1" % (cT, cT))
        e("    s_waitcnt vmcnt(0)")
        e("    v_readfirstlane_b32 s%d, v%d" % (sT0, cT))
        if HMODE == 1: e("    s_not_b32 s%d, s%d" % (sT0, sT0))
    if HOLD:
        e("L_hold:")
        e("    s_memrealtime s[50:51]")
        e("    s_waitcnt lgkmcnt(0)")
        e("    s_sub_u32 s50, s50, s%d" % sT0)
        e("    s_cmp_lt_u32 s50, %d" % HOLD)
        e("    s_cbranch_scc1 L_hold")
    if STAMP:
        e("    s_waitcnt vmcnt(0)")
        e("    s_memrealtime s[50:51]")
        e("    s_lshl_b32 s%d, s2, 6" % sTMP)
        e("    s_add_u32 s%d, s%d, 0x1000000" % (sTMP, sTMP))
        e("    v_mov_b32 v%d, s%d" % (cT, sTMP))
        e("    s_waitcnt lgkmcnt(0)")
        e("    v_mov_b32 v%d, s50" % cACC)
        e("    v_mov_b32 v%d, s51" % (cACC + 1))
        e("    s_mov_b64 exec, 1")
        e("    global_store_dwordx2 v%d, v[%d:%d], s[14:15] offset:48" % (cT, cACC, cACC + 1))
        for i in range(4): e("    v_mov_b32 v%d, s%d" % (cX + i, 42 + 2 * i))
        e("    v_add_u32 v%d, 0x8000, v%d" % (cT, cT))
        e("    global_store_dwordx4 v%d, v[%d:%d], s[14:15]" % (cT, cX, cX + 3))
    e("    s_endpgm")
    e("L_retry:")
    e("    s_waitcnt vmcnt(0)")
    e("    s_branch L_poll2")

    e("L_service:")
    vAD = vT; vRA = vT + 1; vGA = vT + 2; vONE = vT + 3; vMX = vT + 4; vLX = vT + 5; t0 = vT + 6; t1 = vT + 7
    vE = vX + 5 * NW + (NW & 1)
    vR0 = vQ; vR1 = vQ + 1; vZERO = vQ + 2; vRL = vQ + 3; vCW = vQ + 4; vML = vQ + 5; vZ = vQ + 6; vG = vQ + 10; vDL = vQ + 14
    e("    v_lshlrev_b32 v%d, 4, v%d" % (vAD, vLANE))
    e("    v_mul_u32_u24 v%d, %d, v%d" % (t0, SST, vLANE))
    e("    v_add_u32 v%d, s%d, v%d" % (t0, sL0, t0))
    e("    v_lshlrev_b32 v%d, 2, v%d" % (t1, vLANE))
    e("    s_mov_b32 exec_lo, 0x%x" % (((1 << (SSF + 1)) - 1) & 0xffffffff))
    e("    s_mov_b32 exec_hi, 0x%x" % (((1 << (SSF + 1)) - 1) >> 32))
    e("    ds_write_b32 v%d, v%d offset:%d" % (t1, t0, LSO))
    e("    s_mov_b64 exec, -1")
    e("    v_cmp_gt_u32 vcc, %d, v%d" % (SSL, vLANE))
    e("    v_mov_b32 v%d, -1" % vONE)
    e("    v_mov_b32 v%d, 0" % vZERO)
    e("    v_cndmask_b32 v%d, -1, v%d, vcc" % (t0, t0))
    e("    ds_write_b32 v%d, v%d offset:%d" % (t1, t0, LLO))
    for k in range(64, LLN + TLN, 64):
        e("    ds_write_b32 v%d, v%d offset:%d" % (t1, vONE, LLO + 4 * k))
    e("    v_and_b32 v%d, 12, v%d" % (t1, t1))
    e("    ds_write_b32 v%d, v%d offset:%d" % (t1, vZERO, PO))
    e("    s_mul_i32 s%d, s%d, %d" % (sTMP, sCOL, ROWB))
    e("    v_add_u32 v%d, s%d, v%d" % (vRA, sTMP, vAD))
    e("    s_waitcnt lgkmcnt(0)")
    e("    v_mov_b32 v%d, 1" % vONE)
    if WARM & 4:
        e("    s_mul_i32 s%d, s%d, %d" % (sTMP, sCOL, HEADB))
        e("    v_mul_u32_u24 v%d, 0x200000, v%d" % (vX, vLANE))
        e("    v_add_u32 v%d, s%d, v%d" % (vX, sTMP, vX))
        e("    s_mov_b64 exec, %d" % (0x3f if WARM & 8 == 0 else 0x3fffffff))
        e("    global_load_dword v%d, v%d, s[6:7] nt" % (vX + 1, vX))
        e("    s_mov_b64 exec, -1")
    e("    s_barrier")
    e("    s_mov_b64 exec, 0xffffff")
    for r in range(1, RND):
        e("    v_add_u32 v%d, %d, v%d" % (vRA, W * ROWB, vRA))
        e("    global_load_dwordx4 v[%d:%d], v%d, s[4:5]" % (vX + 4 * r, vX + 4 * r + 3, vRA))
    e("    s_waitcnt vmcnt(0)")
    for r in range(1, RND):
        e("    ds_write_b128 v%d, v[%d:%d] offset:%d" % (vAD, vX + 4 * r, vX + 4 * r + 3, QO + r * ROWB))
    e("    s_mov_b64 exec, -1")
    e("    s_lshl_b32 s%d, s%d, %d" % (sTMP, sCOL, LOGP))
    e("    s_add_u32 s%d, s%d, s%d" % (sTMP, sTMP, sIDX))
    e("    s_lshl_b32 s%d, s%d, 10" % (sCNT, sTMP))
    e("    v_add_u32 v%d, s%d, v%d" % (vRA, sCNT, vAD))
    e("    s_lshl_b32 s%d, s%d, 4" % (sCNT, sTMP))
    e("    s_add_u32 s%d, s%d, 0x%x" % (sCNT, sCNT, MLG))
    e("    v_mul_u32_u24 v%d, %d, v%d" % (vGA, NWG * 16, vLANE))
    e("    v_add_u32 v%d, s%d, v%d" % (vGA, sCNT, vGA))
    e("    s_lshr_b32 s%d, s%d, 3" % (sNT, sIDX))
    e("    s_and_b32 s%d, s%d, %d" % (sNT, sNT, S - 1))
    e("    s_mul_i32 s%d, s%d, %d" % (sTMP, sCOL, S))
    e("    s_add_u32 s%d, s%d, s%d" % (sTMP, sTMP, sNT))
    e("    s_mul_i32 s%d, s%d, %d" % (sNT, sNT, NW))
    e("    s_lshl_b32 s%d, s%d, 8" % (sTMP, sTMP))
    e("    s_add_u32 s%d, s%d, 0x%x" % (sTMP, sTMP, CTR_OFF))
    e("    v_mov_b32 v%d, s%d" % (vCW, sTMP))
    e("    s_mov_b32 s%d, 0" % sR)
    e("    s_mov_b32 s%d, %d" % (sT2, SLOTB))
    e("    v_add_u32 v%d, %d, v%d" % (vDA, DO, vAD))
    e("    v_mov_b32 v%d, %d" % (vDL, DLO))
    e("    v_add_u32 v%d, %d, v%d" % (vRL, RECO, vAD))
    e("    v_mov_b32 v%d, %d" % (vML, MLO))
    e("    v_mov_b32 v%d, 0" % (vG + 2))
    def ph():
        if PH:
            e("    s_memrealtime s[50:51]")
            e("    s_waitcnt lgkmcnt(0)")
            e("    v_mov_b32 v%d, s50" % (vTR + 1))
            e("    global_store_dword v%d, v%d, s[14:15]" % (vTR, vTR + 1))
            e("    v_add_u32 v%d, 4, v%d" % (vTR, vTR))
    if PH:
        e("    s_lshl_b32 s52, s2, 8")
        e("    s_add_u32 s52, s52, 0x1100000")
        e("    v_mov_b32 v%d, s52" % vTR)
        e("    v_mov_b32 v%d, s%d" % (vTR + 1, sT0))
        e("    s_mov_b64 exec, 1")
        e("    global_store_dword v%d, v%d, s[14:15]" % (vTR, vTR + 1))
        e("    v_add_u32 v%d, 4, v%d" % (vTR, vTR))
        e("    s_mov_b64 exec, -1")
    def elect(tag):
        e("    s_mov_b64 exec, 1")
        e("    global_atomic_add v%d, v%d, v%d, s[12:13] sc0" % (t0, vZERO, vONE))
        e("    s_memrealtime s[50:51]")
        e("    s_waitcnt vmcnt(0) lgkmcnt(0)")
        e("    v_readfirstlane_b32 s%d, v%d" % (sTMP, t0))
        e("    s_mov_b64 exec, -1")
        e("    s_cmp_lg_u32 s%d, 0" % sTMP)
        e("    s_cbranch_scc1 L_lost%s" % tag)
        e("    v_lshlrev_b32 v%d, 8, v%d" % (t0, vLANE))
        e("    v_add_u32 v%d, 0x%x, v%d" % (t0, CTR_OFF, t0))
        e("    s_or_b32 s50, s50, 1")
        e("    v_mov_b32 v%d, s50" % t1)
        e("    global_store_dword v%d, v%d, s[14:15] sc1" % (t0, vZERO))
        e("    s_waitcnt vmcnt(0)")
        e("    global_store_dword v%d, v%d, s[12:13] offset:64 sc1" % (vZERO, t1))
        e("L_lost%s:" % tag)
    if HMODE:
        e("    v_mov_b32 v%d, s%d" % (t0, sT0))
        if HMODE == 1: e("    v_not_b32 v%d, v%d" % (t0, t0))
        e("    s_mov_b64 exec, 1")
        e("    global_atomic_umax v%d, v%d, s[12:13] offset:128" % (vZERO, t0))
        e("    s_mov_b64 exec, -1")
    e("    s_cmp_lg_u32 s2, 0")
    e("    s_cbranch_scc1 L_lostA")
    elect("A")
    e("    s_waitcnt lgkmcnt(0)")
    e("    s_barrier")
    if PH:
        e("    s_mov_b64 exec, 1")
        ph()
        e("    s_mov_b64 exec, -1")
    if WARM & 2:
        e("    s_mul_i32 s%d, s%d, %d" % (sTMP, sCOL, HEADB))
        e("    s_mul_i32 s%d, s%d, %d" % (sCNT, sL0, TB2))
        e("    s_add_u32 s%d, s%d, s%d" % (sTMP, sTMP, sCNT))
        e("    v_mov_b32 v%d, s%d" % (t1, sTMP))
        e("    s_mov_b64 exec, 1")
        e("    global_load_dword v%d, v%d, s[8:9] nt" % (vX, t1))
        e("    global_load_dword v%d, v%d, s[14:15] nt" % (vX + 1, vCW))
        e("    global_load_dword v%d, v%d, s[14:15] nt" % (vX + 2, vRA))
        e("    global_load_dword v%d, v%d, s[14:15] nt" % (vX + 3, vGA))
        e("    s_mov_b64 exec, -1")
    e("    global_load_dword v%d, v%d, s[12:13] offset:64 sc1" % (t0, vZERO))
    e("    s_waitcnt vmcnt(0)")
    e("    v_readfirstlane_b32 s%d, v%d" % (sNON, t0))
    e("    s_cmp_lg_u32 s%d, 0" % sNON)
    e("    s_cbranch_scc1 L_ready")
    elect("B")
    e("    s_mov_b32 s%d, 0x%x" % (sN, SPIN))
    e("L_spinf:")
    e("    s_sub_u32 s%d, s%d, 1" % (sN, sN))
    e("    s_cbranch_scc1 L_ready")
    e("    global_load_dword v%d, v%d, s[12:13] offset:64 sc1" % (t0, vZERO))
    e("    s_waitcnt vmcnt(0)")
    e("    v_readfirstlane_b32 s%d, v%d" % (sNON, t0))
    e("    s_cmp_eq_u32 s%d, 0" % sNON)
    e("    s_cbranch_scc1 L_spinf")
    e("L_ready:")
    e("    v_mov_b32 v%d, s%d" % (vZ + 3, sNON))
    e("    v_mov_b32 v%d, s%d" % (vG + 3, sNON))
    e("    ds_write_b32 v%d, v%d offset:%d" % (vZERO, vZ + 3, NONO))
    e("    s_mov_b32 s%d, %d" % (sLIM, LIML))
    e("    s_add_u32 s%d, s%d, %d" % (sBASE, sNT, SSL * SST))
    e("    v_mov_b32 v%d, %d" % (vLA, LLO + 4 * SSL))
    e("    s_mov_b32 s%d, %d" % (sCAP, CAP))
    e("    s_mov_b32 s%d, %d" % (sNEED, (RND - 1) * SSF + SSL - 1 - LOOK))
    e("L_seq:")
    e("    s_mov_b64 exec, 1")
    e("    s_mov_b32 s%d, 0x%x" % (sN, SPIN))
    ph()
    e("L_sls:")
    e("    ds_read_b128 v[%d:%d], v%d offset:%d" % (vX, vX + 3, vZERO, PO))
    e("    s_waitcnt lgkmcnt(0)")
    e("    v_max3_u32 v%d, v%d, v%d, v%d" % (t0, vX, vX + 1, vX + 2))
    e("    v_max_u32 v%d, v%d, v%d" % (t0, t0, vX + 3))
    e("    s_nop 0")
    e("    v_readfirstlane_b32 s%d, v%d" % (sP, t0))
    e("    s_cmp_ge_u32 s%d, s%d" % (sP, sNEED))
    e("    s_cbranch_scc1 L_grab")
    if SLP: e("    s_sleep %d" % SLP)
    e("    s_sub_u32 s%d, s%d, 1" % (sN, sN))
    e("    s_cbranch_scc0 L_sls")
    e("    s_mov_b32 s%d, 0" % sN)
    e("L_grab:")
    e("    s_mov_b32 s%d, %d" % (sM1, TPH))
    e("    s_sub_u32 s%d, s%d, 1" % (sCAP, sCAP))
    e("    s_cbranch_scc1 L_got")
    e("    global_atomic_add v%d, v%d, v%d, s[14:15] sc0" % (vR0, vCW, vONE))
    e("    s_waitcnt vmcnt(0)")
    e("    v_readfirstlane_b32 s%d, v%d" % (sM1, vR0))
    e("    s_min_u32 s%d, s%d, %d" % (sM1, sM1, TPH))
    e("L_got:")
    e("    s_mul_i32 s%d, s%d, %d" % (sM1, sM1, NW * S))
    e("    s_add_u32 s%d, s%d, s%d" % (sM1, sM1, sBASE))
    e("    v_mov_b32 v%d, s%d" % (t0, sM1))
    e("    ds_write_b32 v%d, v%d" % (vLA, t0))
    e("    v_add_u32 v%d, 4, v%d" % (vLA, vLA))
    e("    s_add_u32 s%d, s%d, 1" % (sNEED, sNEED))
    e("    s_cmp_lt_u32 s%d, s%d" % (sM1, sLIM))
    e("    s_cbranch_scc1 L_sls")
    e("L_slsend:")
    ph()
    if PH == 2:
        e("    v_mov_b32 v%d, s%d" % (vTR + 1, sCAP))
        e("    global_store_dword v%d, v%d, s[14:15] offset:124" % (vTR, vTR + 1))
    e("    s_mov_b64 exec, -1")
    e("    s_cmp_eq_u32 s%d, %d" % (sLIM, TPH))
    e("    s_cbranch_scc1 %s" % ("L_early" if EARLY else "L_sdump"))
    e("L_svround:")
    e("    s_cmp_lg_u32 s%d, %d" % (sR, RND - 1))
    e("    s_cbranch_scc1 L_sdump")
    e("    s_mov_b32 s%d, %d" % (sLIM, TPH))
    e("    s_add_u32 s%d, s%d, %d" % (sBASE, sNT, 2 * LIML))
    e("    s_mov_b32 s%d, %d" % (sCAP, NUT))
    e("    v_add_u32 v%d, %d, v%d" % (vCW, W * S * 256, vCW))
    e("    v_mov_b32 v%d, %d" % (vLA, TLO))
    e("    s_lshl_b32 s%d, s%d, 1" % (sNEED, sNEED))
    e("    s_add_u32 s%d, s%d, %d" % (sNEED, sNEED, LOOK - 1))
    e("    s_branch L_seq")
    if EARLY:
        e("; ---- the streamers are on their last tiles: publish the records of the earlier rounds")
        e("L_early:")
        e("    v_min_u32 v%d, %d, v%d" % (t1, (RND - 2) * 16, vAD))
        e("    ds_read_b128 v[%d:%d], v%d offset:%d" % (vE, vE + 3, t1, MLO))
        for r in range(RND - 1):
            e("    ds_read_b128 v[%d:%d], v%d offset:%d" % (vE + 4 + 4 * r, vE + 4 + 4 * r + 3, vAD, RECO + r * 1024))
        e("    s_mov_b64 exec, %d" % ((1 << (RND - 1)) - 1))
        e("    s_waitcnt lgkmcnt(%d)" % (RND - 1))
        e("    global_store_dwordx4 v%d, v[%d:%d], s[14:15] sc1" % (vGA, vE, vE + 3))
        e("    s_mov_b64 exec, -1")
        for r in range(RND - 1):
            e("    s_waitcnt lgkmcnt(%d)" % (RND - 2 - r))
            e("    global_store_dwordx4 v%d, v[%d:%d], s[14:15] sc1" % (vRA, vE + 4 + 4 * r, vE + 4 + 4 * r + 3))
            e("    v_add_u32 v%d, %d, v%d" % (vRA, NWG * 1024, vRA))
    e("L_sdump:")
    e("    s_waitcnt lgkmcnt(0)")
    e("    s_barrier")
    if PH:
        e("    s_mov_b64 exec, 1")
        ph()
        e("    s_mov_b64 exec, -1")
    if STAMP:
        e("    s_memrealtime s[%d:%d]" % (sT0 + 2, sT0 + 3))
    vY = vX + 4 * NW
    for w in range(NW):
        e("    ds_read_b128 v[%d:%d], v%d offset:%d" % (vX + 4 * w, vX + 4 * w + 3, vDA, w * 1024))
    for w in range(NW):
        e("    ds_read_b32 v%d, v%d offset:%d" % (vY + w, vDL, w * 4))
    e("    v_add_u32 v%d, s%d, v%d" % (vDA, sT2, vDA))
    e("    s_sub_u32 s%d, 0, s%d" % (sT2, sT2))
    e("    v_xor_b32 v%d, %d, v%d" % (vDL, DLO ^ (DLO + NW * 4), vDL))
    e("    s_add_u32 s%d, s%d, 1" % (sR, sR))
    e("    s_waitcnt lgkmcnt(%d)" % (0 if STAMP else NW))
    e("    v_max_f32 v%d, v%d, v%d" % (vG, vX + 3, vX + 7))
    for w in range(2, NW):
        e("    v_max_f32 v%d, v%d, v%d" % (vG, vG, vX + 4 * w + 3))
    for w in range(NW):
        e("    v_sub_f32 v%d, v%d, v%d" % (vX + 4 * w + 3, vX + 4 * w + 3, vG))
    for w in range(NW):
        e("    v_exp_f32 v%d, v%d" % (vX + 4 * w + 3, vX + 4 * w + 3))
    e("    s_waitcnt lgkmcnt(0)")
    for k in range(3):
        e("    v_mul_f32 v%d, v%d, v%d" % (vZ + k, vX + k, vX + 3))
    e("    v_mul_f32 v%d, v%d, v%d" % (vG + 1, vY, vX + 3))
    for w in range(1, NW):
        for k in range(3):
            e("    v_fma_f32 v%d, v%d, v%d, v%d" % (vZ + k, vX + 4 * w + k, vX + 4 * w + 3, vZ + k))
        e("    v_fma_f32 v%d, v%d, v%d, v%d" % (vG + 1, vY + w, vX + 4 * w + 3, vG + 1))
    e("    s_cmp_eq_u32 s%d, %d" % (sR, RND))
    e("    s_cbranch_scc1 L_final")
    e("    ds_write_b128 v%d, v[%d:%d]" % (vRL, vZ, vZ + 3))
    e("    ds_write_b128 v%d, v[%d:%d]" % (vML, vG, vG + 3))
    e("    v_add_u32 v%d, 1024, v%d" % (vRL, vRL))
    e("    v_add_u32 v%d, 16, v%d" % (vML, vML))
    e("    s_branch L_svround")
    e("L_final:")
    if EARLY:
        e("    global_store_dwordx4 v%d, v[%d:%d], s[14:15] sc1" % (vRA, vZ, vZ + 3))
        e("    s_mov_b64 exec, %d" % (1 << (RND - 1)))
        e("    global_store_dwordx4 v%d, v[%d:%d], s[14:15] sc1" % (vGA, vG, vG + 3))
        if STAMP: e("    s_mov_b64 exec, -1")
    else:
        e("    v_add_u32 v%d, %d, v%d" % (t0, (RND - 1) * NWG * 1024, vRA))
        e("    global_store_dwordx4 v%d, v[%d:%d], s[14:15] sc1" % (t0, vZ, vZ + 3))
        e("    ds_write_b128 v%d, v[%d:%d]" % (vML, vG, vG + 3))
        e("    v_min_u32 v%d, %d, v%d" % (t1, (RND - 1) * 16, vAD))
        e("    ds_read_b128 v[%d:%d], v%d offset:%d" % (vX, vX + 3, t1, MLO))
        for r in range(RND - 1):
            e("    ds_read_b128 v[%d:%d], v%d offset:%d" % (vX + 4 + 4 * r, vX + 4 + 4 * r + 3, vAD, RECO + r * 1024))
        e("    s_mov_b64 exec, %d" % ((1 << RND) - 1))
        e("    s_waitcnt lgkmcnt(%d)" % (RND - 1))
        e("    global_store_dwordx4 v%d, v[%d:%d], s[14:15] sc1" % (vGA, vX, vX + 3))
        e("    s_mov_b64 exec, -1")
        for r in range(RND - 1):
            e("    s_waitcnt lgkmcnt(%d)" % (RND - 2 - r))
            e("    global_store_dwordx4 v%d, v[%d:%d], s[14:15] sc1" % (vRA, vX + 4 + 4 * r, vX + 4 + 4 * r + 3))
            if r + 2 < RND:
                e("    v_add_u32 v%d, %d, v%d" % (vRA, NWG * 1024, vRA))
    if STAMP:
        e("    s_memrealtime s[%d:%d]" % (sT0 + 4, sT0 + 5))
        e("    s_waitcnt vmcnt(0)")
        e("    s_memrealtime s[%d:%d]" % (sT0 + 6, sT0 + 7))
        e("    s_getreg_b32 s%d, hwreg(HW_REG_XCC_ID)" % (sT0 + 8))
        e("    s_getreg_b32 s%d, hwreg(HW_REG_HW_ID)" % (sT0 + 9))
        e("    s_waitcnt lgkmcnt(0)")
        for i in range(10):
            e("    v_mov_b32 v%d, s%d" % (vX + i, sT0 + i))
        e("    v_mov_b32 v%d, s%d" % (vX + 10, sT0 + 6))
        e("    v_mov_b32 v%d, s%d" % (vX + 11, sT0 + 7))
        e("    s_lshl_b32 s%d, s2, 6" % (sT0))
        e("    s_add_u32 s%d, s%d, 0x1000000" % (sT0, sT0))
        e("    v_mov_b32 v%d, s%d" % (t1, sT0))
        e("    s_mov_b64 exec, 1")
        e("    global_store_dwordx4 v%d, v[%d:%d], s[14:15]" % (t1, vX, vX + 3))
        e("    global_store_dwordx4 v%d, v[%d:%d], s[14:15] offset:16" % (t1, vX + 4, vX + 7))
        e("    global_store_dwordx4 v%d, v[%d:%d], s[14:15] offset:32" % (t1, vX + 8, vX + 11))
    e("L_done:")
    e("    s_endpgm")
    e('.section .rodata,"a"')
    e(".p2align 6")
    e(".amdhsa_kernel %s" % KNAME)
    e("  .amdhsa_next_free_vgpr %d" % NVGPR)
    e("  .amdhsa_next_free_sgpr %d" % NSGPR)
    e("  .amdhsa_accum_offset %d" % ((NVGPR + 3) // 4 * 4))
    e("  .amdhsa_group_segment_fixed_size 0")
    e("  .amdhsa_kernarg_size 48")
    e("  .amdhsa_user_sgpr_count 2")
    e("  .amdhsa_user_sgpr_kernarg_segment_ptr 1")
    e("  .amdhsa_system_sgpr_workgroup_id_x 1")
    e("  .amdhsa_float_denorm_mode_32 3")
    e(".end_amdhsa_kernel")
    return "\n".join(o) + "\n"

if __name__ == "__main__":
    ap = argparse.ArgumentParser()
    ap.add_argument("-o", default="standalone__mha_softmax__decode.s")
    for k, d in dict(W=4, NW=4, SSL=4, TP=640, CAP=8, THR=3, NWC=4, LOOK=2, SLP=0, S=2, STAMP=0, TRACE=0, HOLD=0, HMODE=0, SPROBE=0, LIN=0, EARLY=1, PH=0, QKF=0, WARM=0).items():
        ap.add_argument("--" + k, type=int, default=d)
    ap.add_argument("--POL", default="nt")
    for k, d in (("KW", "545454"), ("VW", "554555"), ("TW", "555555")): ap.add_argument("--" + k, default=d)
    a = vars(ap.parse_args())
    out = a.pop("o")
    open(out, "w").write(gen(**a))
    print("wrote", out)
```

```python
import math, struct, sys, argparse
H = 32; SK = 32768; D = 192
ROWB = D * 2
HEADB = SK * ROWB
NWG = 256
TB = 8 * ROWB
TPH = SK // 8

def f32hex(x):
    return "0x%08x" % struct.unpack("<I", struct.pack("<f", x))[0]

HEADER = """; Kernarg layout for this problem (48 bytes, ptrs only, base s[0:1]):
"""


DOC = """;
;
; Work split.  256 workgroups = %(W)d columns x %(PER)d; round r (0..%(RL)d) covers heads r*%(W)d+col, so the whole chip sweeps a
;
"""

def gen(W=4, NW=4, SSL=4, TP=640, CAP=8, THR=3, NWC=4, LOOK=2, SLP=0, S=2, KW="545454", VW="554555", TW="555555", POL="nt", STAMP=0, TRACE=0, HOLD=0, HMODE=0, SPROBE=0, LIN=0, EARLY=1, PH=0, QKF=0, WARM=0,
        KNAME="standalone__mha_softmax__decode_kernel"):
    o = []
    e = o.append
    PER = NWG // W; RND = H // W
    LOGP = int(math.log2(PER))
    TB2 = 2 * TB; TPH2 = SK // 16
    TOTB = H * HEADB
    SST = PER * NW
    SSF = TPH2 // SST
    LA = 3
    LIML = TPH2 - TP
    assert SSF * SST == TPH2 and SSF < 63 and RND >= 2
    assert SSL * SST <= LIML and SSL >= 1 and LOOK >= 1
    assert CAP * (PER // S) >= -(-(LIML - SSL * SST) // (NW * S)), "cap too small to cover the dynamic units"
    NUT = -(-(2 * TP) // (NW * S))
    RPW = PER // NWC
    NG = max(1, PER // 64)
    assert NW >= NWC and PER <= 128 and RPW % 4 == 0 and 2 * W * S <= 64 and PER // 8 >= S
    pol = (" " + POL) if POL else ""
    C = (D ** -0.5) * math.log2(math.e)
    QO = 0
    NONO = RND * ROWB
    MLO = (NONO + 16 + 15) // 16 * 16
    LSO = MLO + RND * 16
    LLO = LSO + (SSF + 2) * 4
    LLN = max(SSL + CAP + 1, SSF + 1)
    TLO = LLO + LLN * 4
    TLN = NUT + 1
    PO = (TLO + TLN * 4 + 15) // 16 * 16
    assert NW == 4
    DLO = (PO + 16 + 63) // 64 * 64
    DO = (DLO + 2 * NW * 4 + 1023) // 1024 * 1024
    SLOTB = NW * 1024
    RECO = DO + 2 * SLOTB
    SCO = RECO + (RND - 1) * 1024
    SCR = (SSF + 1) * 64
    SCW = (RND - 1) * SCR + (SSL + CAP + 1) * 64
    LDS = SCO + NW * SCW
    MRG = DO + (RND & 1) * SLOTB
    assert LDS <= 64 * 1024 and NWC * 1024 <= SLOTB
    CTR_OFF = 0x800000
    MLG = 0x400000
    OOB = 0xF0000000
    SPIN = 0x100000

    vLANE = 0; vOFF = 1; vM = 2; vNB = 3; vA = 3; vS = 4
    vT = 6; vQ = 14; vO = 28; vMC = 52; vL = 53
    vDA = 54; vQA = 55; vTR = 56; vSA = 57; vLA = 58; vS0 = 59; vPA = 26; vP = 27; vS2 = 84; vNB2 = 86; vQF = 88; vAC = 112
    vB = 60; vX = 60
    NVGPR = max(116 if QKF else 88, vX + 5 * NW + 1 + 4 * RND, vX + 4 * RND + 4, vX + 4 * RPW)
    sCOL = 24; sIDX = 25; sWAVE = 26; sMASK = 27; sC = 28; sCNT = 29; sR = 30; sTMP = 31
    sOFF = 32; sHO = 33; sG = 34; sBIAS = 35; sNB = 36; sHEAD = 37; sT2 = 38; sNON = 39
    sT0 = 40
    sM1 = 53; sN = 54; sNT = 55; sL0 = 56; sOFB = 57; sLIM = 58; sNEED = 59; sBASE = 60; sP = 61; sCAP = 62; sT3 = 63
    sW = 64
    sBAD = sW + RPW + (RPW & 1)
    NSGPR = sBAD + 2

    e(HEADER + "; @launch grid=(%d,1,1) block=(%d,1,1) lds=%d" % (NWG, (NW + 1) * 64, LDS))
    if TRACE: e("; UNITBYTES=%d" % TB2)
    e(DOC.rstrip("\n") % dict(W=W, PER=PER, RL=RND - 1))
    e('.amdgcn_target "amdgcn-amd-amdhsa--gfx950"')
    e(".text")
    e(".globl %s" % KNAME)
    e(".p2align 8")
    e(".type %s,@function" % KNAME)
    e("%s:" % KNAME)
    e("    s_cmp_ge_u32 s2, %d" % NWG)
    e("    s_cbranch_scc1 L_done")
    e("    s_load_dwordx4 s[4:7], s[0:1], 0")
    e("    s_load_dwordx4 s[8:11], s[0:1], 16")
    e("    s_load_dwordx4 s[12:15], s[0:1], 32")
    if STAMP or HOLD or SPROBE or PH:
        e("    s_memrealtime s[%d:%d]" % (sT0, sT0 + 1))
    e("    v_lshrrev_b32 v%d, 6, v0" % vA)
    e("    v_and_b32 v%d, 63, v0" % vLANE)
    e("    v_readfirstlane_b32 s%d, v%d" % (sWAVE, vA))
    e("    s_lshr_b32 s%d, s2, %d" % (sCOL, LOGP))
    e("    s_and_b32 s%d, s2, %d" % (sIDX, PER - 1))
    e("    s_mul_i32 s%d, s%d, %d" % (sL0, sIDX, NW))
    e("    s_cmp_eq_u32 s%d, %d" % (sWAVE, NW))
    e("    s_cbranch_scc1 L_service")
    e("    v_lshrrev_b32 v%d, 3, v%d" % (vS0, vLANE))
    e("    v_and_b32 v%d, 7, v%d" % (vQA, vLANE))
    e("    v_lshlrev_b32 v%d, 4, v%d" % (vQA, vQA))
    e("    v_mul_u32_u24 v%d, %d, v%d" % (vT, ROWB, vS0))
    e("    v_add_u32 v%d, v%d, v%d" % (vOFF, vT, vQA))
    if LIN: e("    v_lshlrev_b32 v%d, 4, v%d" % (vOFF, vLANE))
    e("    s_mov_b32 s18, %d" % TOTB)
    e("    s_mov_b32 s19, 0x00020000")
    e("    s_mov_b32 s22, %d" % TOTB)
    e("    s_mov_b32 s23, 0x00020000")
    e("    s_mul_i32 s%d, s%d, %d" % (sHO, sCOL, HEADB))
    e("    s_add_u32 s%d, s%d, s%d" % (sG, sL0, sWAVE))
    e("    s_mul_i32 s%d, s%d, %d" % (sOFF, sG, TB2))
    e("    s_add_u32 s%d, s%d, s%d" % (sOFF, sOFF, sHO))
    e("    s_add_u32 s%d, s%d, %d" % (sOFB, sOFF, TB))
    e("    s_mul_i32 s%d, s%d, %d" % (sCNT, sCOL, ROWB))
    e("    v_add_u32 v%d, s%d, v%d" % (vT + 1, sCNT, vQA))
    e("    s_waitcnt lgkmcnt(0)")
    if SPROBE: e("    s_memrealtime s[42:43]")
    for j in range(3):
        e("    global_load_dwordx4 v[%d:%d], v%d, s[4:5] offset:%d" % (vQ + 4 * j, vQ + 4 * j + 3, vT + 1, j * 128))
    e("    s_and_b32 s7, s7, 0xffff")
    e("    s_and_b32 s9, s9, 0xffff")
    e("    s_mov_b64 s[16:17], s[6:7]")
    e("    s_mov_b64 s[20:21], s[6:7]")
    def load(j):
        e("    buffer_load_dwordx4 v[%d:%d], v%d, s[%s], s%d offen offset:%d%s" %
          (vB + 4 * j, vB + 4 * j + 3, vOFF, "16:19" if j < 3 else "20:23", sOFF if j < 3 else sOFB, (j % 3) * (1024 if LIN else 128), pol))
    for j in range(6): load(j)
    if TRACE:
        e("    s_mul_i32 s52, s2, %d" % (NW + 1))
        e("    s_add_u32 s52, s52, s%d" % sWAVE)
        e("    s_lshl_b32 s52, s52, 10")
        e("    s_add_u32 s52, s52, 0x1100000")
        e("    v_mov_b32 v%d, s52" % vTR)
    e("    s_mov_b32 s%d, 0xffff0000" % sMASK)
    e("    s_mov_b32 s%d, %s" % (sC, f32hex(C)))
    e("    s_mov_b32 s%d, 0" % sR)
    e("    v_mov_b32 v%d, 0" % vP)
    e("    s_lshl_b32 s%d, s%d, 2" % (sTMP, sWAVE))
    e("    s_add_u32 s%d, s%d, %d" % (sTMP, sTMP, PO))
    e("    v_mov_b32 v%d, s%d" % (vPA, sTMP))
    e("    s_mov_b32 s%d, %d" % (sT2, SLOTB))
    e("    s_lshl_b32 s%d, s%d, 10" % (sTMP, sWAVE))
    e("    s_add_u32 s%d, s%d, %d" % (sTMP, sTMP, DO))
    e("    v_lshlrev_b32 v%d, 4, v%d" % (vDA, vLANE))
    e("    v_add_u32 v%d, s%d, v%d" % (vDA, sTMP, vDA))
    e("    s_lshl_b32 s%d, s%d, 2" % (sT3, sWAVE))
    e("    s_add_u32 s%d, s%d, %d" % (sT3, sT3, DLO))
    e("    s_mul_i32 s%d, s%d, %d" % (sTMP, sWAVE, SCW))
    e("    s_add_u32 s%d, s%d, %d" % (sTMP, sTMP, SCO))
    e("    v_lshlrev_b32 v%d, 3, v%d" % (vS0, vS0))
    e("    v_add_u32 v%d, s%d, v%d" % (vS0, sTMP, vS0))
    def init_state():
        e("    v_mov_b32 v%d, 0" % vL)
        for i in range(24): e("    v_mov_b32 v%d, 0" % (vO + i))
    init_state()
    if SPROBE:
        e("    s_memrealtime s[44:45]")
        e("    s_waitcnt vmcnt(5)")
        e("    s_memrealtime s[46:47]")
    e("    s_barrier")
    if SPROBE: e("    s_waitcnt vmcnt(0)")
    if SPROBE:
        e("    s_memrealtime s[48:49]")
        e("    s_mul_i32 s52, s2, %d" % (NW + 1))
        e("    s_add_u32 s52, s52, s%d" % sWAVE)
        e("    s_lshl_b32 s52, s52, 5")
        e("    s_add_u32 s52, s52, 0x1100000")
        e("    v_mov_b32 v%d, s52" % vTR)
        e("    s_waitcnt lgkmcnt(0)")
        for i in range(5): e("    v_mov_b32 v%d, s%d" % (vT + i, 40 + 2 * i))
        e("    s_mov_b64 exec, 1")
        e("    global_store_dwordx4 v%d, v[%d:%d], s[14:15]" % (vTR, vT, vT + 3))
        e("    global_store_dword v%d, v%d, s[14:15] offset:16" % (vTR, vT + 4))
        e("    s_mov_b64 exec, -1")
    def trace():
        if TRACE:
            e("    s_memrealtime s[50:51]")
            e("    s_waitcnt lgkmcnt(0)")
            e("    v_mov_b32 v%d, s50" % vT)
            e("    s_mov_b64 exec, 1")
            e("    global_store_dword v%d, v%d, s[14:15]" % (vTR, vT))
            e("    s_mov_b64 exec, -1")
            e("    v_add_u32 v%d, 4, v%d" % (vTR, vTR))
    def next_off16(sbase, sh):
        e("    s_add_u32 s%d, s%d, s%d" % (sG, sbase, sWAVE))
        e("    s_mul_i32 s%d, s%d, %d" % (sOFF, sG, TB2))
        e("    s_add_u32 s%d, s%d, s%d" % (sOFF, sOFF, sh))
        e("    s_cmp_lt_u32 s%d, s%d" % (sG, sLIM))
        e("    s_cselect_b32 s%d, s%d, 0x%x" % (sOFF, sOFF, OOB))
        e("    s_add_u32 s%d, s%d, %d" % (sOFB, sOFF, TB))
    def next_off8():
        e("    s_add_u32 s%d, s%d, s%d" % (sG, sNB, sWAVE))
        e("    s_mul_i32 s%d, s%d, %d" % (sOFF, sG, TB))
        e("    s_add_u32 s%d, s%d, s%d" % (sOFF, sOFF, sHO))
        e("    s_cmp_lt_u32 s%d, %d" % (sG, TPH))
        e("    s_cselect_b32 s%d, s%d, 0x%x" % (sOFF, sOFF, OOB))
        e("    s_mov_b32 s%d, s%d" % (sOFB, sOFF))
    def dots4(jj, accs, first):
        j = jj % 3
        for i in range(4):
            acc = accs[i % 2]
            if first and i < 2:
                e("    v_dot2_f32_bf16 v%d, v%d, v%d, 0" % (acc, vB + 4 * jj + i, vQ + 4 * j + i))
            else:
                e("    v_dot2_f32_bf16 v%d, v%d, v%d, v%d" % (acc, vB + 4 * jj + i, vQ + 4 * j + i, acc))
    def pv(jj, r, pat):
        j = jj % 3
        e("    s_waitcnt vmcnt(%s)" % pat[jj])
        for i in range(4):
            e("    v_lshlrev_b32 v%d, 16, v%d" % (vT + 2 * i, vB + 4 * jj + i))
            e("    v_and_b32 v%d, s%d, v%d" % (vT + 2 * i + 1, sMASK, vB + 4 * jj + i))
        load(jj)
        for i in range(4):
            oo = vO + j * 8 + 2 * i
            e("    v_pk_fma_f32 v[%d:%d], v[%d:%d], v[%d:%d], v[%d:%d] op_sel:[0,%d,0] op_sel_hi:[1,%d,1]" %
              (oo, oo + 1, vT + 2 * i, vT + 2 * i + 1, vS, vS + 1, oo, oo + 1, r, r))
    def set_round():
        e("    s_cmp_eq_u32 s%d, %d" % (sR, RND - 1))
        e("    s_cselect_b32 s%d, %d, 0" % (sLIM, TP))
        e("    s_cselect_b32 s%d, %d, 0" % (sTMP, LLO - LSO))
        e("    s_sub_u32 s%d, %d, s%d" % (sLIM, TPH2, sLIM))
        e("    s_add_u32 s%d, s%d, %d" % (sTMP, sTMP, LSO))
        e("    v_mov_b32 v%d, s%d" % (vLA, sTMP))
        e("    s_mul_i32 s%d, s%d, %d" % (sTMP, sR, SCR))
        e("    v_add_u32 v%d, s%d, v%d" % (vSA, sTMP, vS0))
    def progress():
        e("    ds_write_b32 v%d, v%d" % (vPA, vP))
        e("    v_add_u32 v%d, 1, v%d" % (vP, vP))
    def waitent(name):
        e("L_%sw:" % name)
        e("    s_mov_b32 s%d, 0x%x" % (sN, SPIN))
        e("L_%sw1:" % name)
        e("    ds_read_b32 v%d, v%d" % (vNB, vLA))
        e("    s_sub_u32 s%d, s%d, 1" % (sN, sN))
        e("    s_cbranch_scc1 L_%sok" % name)
        e("    s_waitcnt lgkmcnt(0)")
        e("    v_readfirstlane_b32 s%d, v%d" % (sNB, vNB))
        e("    s_cmp_eq_u32 s%d, -1" % sNB)
        e("    s_cbranch_scc1 L_%sw1" % name)
        e("    s_branch L_%sok" % name)
    def ahead():
        e("    ds_read_b32 v%d, v%d offset:4" % (vNB2, vLA))
        e("    v_add_u32 v%d, 4, v%d" % (vLA, vLA))
        progress()
    e("L_kround:")
    set_round()
    e("    ds_read_b32 v%d, v%d offset:4" % (vNB2, vLA))
    e("    v_add_u32 v%d, 4, v%d" % (vLA, vLA))
    e("    v_mov_b32 v%d, 0xff7fffff" % vM)
    e("    v_mov_b32 v%d, v%d" % (vMC, vSA))
    e("    v_add_u32 v%d, 64, v%d" % (vSA, vSA))
    e("    s_waitcnt lgkmcnt(0)")
    if QKF:
        e("    s_waitcnt vmcnt(6)")
        for i in range(12):
            e("    v_lshlrev_b32 v%d, 16, v%d" % (vQF + 2 * i, vQ + i))
            e("    v_and_b32 v%d, s%d, v%d" % (vQF + 2 * i + 1, sMASK, vQ + i))
    e("L_k:")
    e("    s_cmp_lt_u32 s%d, s%d" % (sG, sLIM))
    e("    s_cselect_b32 s%d, 0, 0xff800000" % sBIAS)
    e("    s_waitcnt lgkmcnt(2)")
    e("    v_readfirstlane_b32 s%d, v%d" % (sNB, vNB2))
    e("    s_cmp_eq_u32 s%d, -1" % sNB)
    e("    s_cbranch_scc1 L_kw")
    e("L_kok:")
    e("    s_cmp_lt_u32 s%d, s%d" % (sNB, sLIM))
    e("    s_cbranch_scc0 L_klast")
    next_off16(sNB, sHO)
    e("L_kgo:")
    for jj in range(6):
        r = jj // 3
        e("    s_waitcnt vmcnt(%s)" % KW[jj])
        if QKF:
            j = jj % 3
            for i in range(4):
                e("    v_lshlrev_b32 v%d, 16, v%d" % (vT + 2 * i, vB + 4 * jj + i))
                e("    v_and_b32 v%d, s%d, v%d" % (vT + 2 * i + 1, sMASK, vB + 4 * jj + i))
            load(jj)
            for i in range(4):
                ac = vAC + 2 * r
                qq = vQF + 8 * j + 2 * i
                if j == 0 and i == 0:
                    e("    v_pk_mul_f32 v[%d:%d], v[%d:%d], v[%d:%d]" % (ac, ac + 1, vT, vT + 1, qq, qq + 1))
                else:
                    e("    v_pk_fma_f32 v[%d:%d], v[%d:%d], v[%d:%d], v[%d:%d]" % (ac, ac + 1, vT + 2 * i, vT + 2 * i + 1, qq, qq + 1, ac, ac + 1))
        else:
            dots4(jj, (vS + r, vT + r), jj % 3 == 0)
            load(jj)
        if jj == 2: ahead()
    if QKF:
        e("    v_add_f32 v%d, v%d, v%d" % (vS, vAC, vAC + 1))
        e("    v_add_f32 v%d, v%d, v%d" % (vS + 1, vAC + 2, vAC + 3))
    else:
        e("    v_add_f32 v%d, v%d, v%d" % (vS, vS, vT))
        e("    s_nop 0")
        e("    v_add_f32 v%d, v%d, v%d" % (vS + 1, vS + 1, vT + 1))
    e("    s_nop 0")
    for pat in ("quad_perm:[1,0,3,2]", "quad_perm:[2,3,0,1]", "row_half_mirror"):
        for r in range(2):
            e("    v_add_f32_dpp v%d, v%d, v%d %s row_mask:0xf bank_mask:0xf" % (vS + r, vS + r, vS + r, pat))
        if pat != "row_half_mirror": e("    s_nop 0")
    e("    v_add_f32 v%d, s%d, v%d" % (vS, sBIAS, vS))
    e("    v_add_f32 v%d, s%d, v%d" % (vS + 1, sBIAS, vS + 1))
    e("    v_max3_f32 v%d, v%d, v%d, v%d" % (vM, vM, vS, vS + 1))
    e("    ds_write_b64 v%d, v[%d:%d]" % (vSA, vS, vS + 1))
    e("    v_add_u32 v%d, 64, v%d" % (vSA, vSA))
    trace()
    e("    s_cmp_lt_u32 s%d, s%d" % (sNB, sLIM))
    e("    s_cbranch_scc1 L_k")
    e("    ds_write_b32 v%d, v%d" % (vMC, vM))
    e("    s_cmp_eq_u32 s%d, %d" % (sR, RND - 1))
    e("    s_cbranch_scc1 L_vstart")
    e("    s_cmp_lg_u32 s%d, 0" % sR)
    e("    s_cbranch_scc1 L_qok")
    e("    s_barrier")
    e("L_qok:")
    e("    v_add_u32 v%d, %d, v%d" % (vQA, ROWB, vQA))
    e("    s_add_u32 s%d, s%d, 1" % (sR, sR))
    e("    s_add_u32 s%d, s%d, %d" % (sHO, sHO, W * HEADB))
    for j in range(3):
        e("    ds_read_b128 v[%d:%d], v%d offset:%d" % (vQ + 4 * j, vQ + 4 * j + 3, vQA, QO + j * 128))
    e("    s_branch L_kround")
    e("L_vstart:")
    e("    s_mov_b32 s%d, 0" % sR)
    e("    s_sub_u32 s%d, s%d, %d" % (sHO, sHO, (RND - 1) * W * HEADB))
    e("L_vround:")
    set_round()
    e("    ds_read_b32 v%d, v%d" % (vM, vSA))
    e("    v_add_u32 v%d, 64, v%d" % (vSA, vSA))
    e("    ds_read_b64 v[%d:%d], v%d" % (vS2, vS2 + 1, vSA))
    e("    ds_read_b32 v%d, v%d offset:4" % (vNB2, vLA))
    e("    v_add_u32 v%d, 4, v%d" % (vLA, vLA))
    e("    s_waitcnt lgkmcnt(0)")
    e("    v_mul_f32 v%d, s%d, v%d" % (vMC, sC, vM))
    e("L_v:")
    e("    s_waitcnt lgkmcnt(1)")
    e("    v_readfirstlane_b32 s%d, v%d" % (sNB, vNB2))
    e("    v_fma_f32 v%d, v%d, s%d, -v%d" % (vS, vS2, sC, vMC))
    e("    v_fma_f32 v%d, v%d, s%d, -v%d" % (vS + 1, vS2 + 1, sC, vMC))
    e("    s_cmp_lt_u32 s%d, s%d" % (sNB, sLIM))
    e("    s_cbranch_scc0 L_vlast")
    next_off16(sNB, sHO)
    e("L_vgo:")
    e("    v_exp_f32 v%d, v%d" % (vS, vS))
    e("    v_exp_f32 v%d, v%d" % (vS + 1, vS + 1))
    e("    s_nop 0")
    e("    v_add_f32 v%d, v%d, v%d" % (vL, vL, vS))
    e("    v_add_f32 v%d, v%d, v%d" % (vL, vL, vS + 1))
    for jj in range(6):
        pv(jj, jj // 3, VW)
        if jj == 2:
            e("    ds_read_b64 v[%d:%d], v%d offset:64" % (vS2, vS2 + 1, vSA))
            e("    v_add_u32 v%d, 64, v%d" % (vSA, vSA))
            ahead()
    trace()
    e("    s_cmp_lt_u32 s%d, s%d" % (sNB, sLIM))
    e("    s_cbranch_scc1 L_v")
    e("    s_cmp_lg_u32 s%d, %d" % (sR, RND - 1))
    e("    s_cbranch_scc1 L_dump")
    e("    s_cmp_ge_u32 s%d, %d" % (sNB, TPH))
    e("    s_cbranch_scc1 L_dump")
    e("L_t:")
    e("    s_cmp_lt_u32 s%d, %d" % (sG, TPH))
    e("    s_cselect_b32 s%d, 0, 0xff800000" % sBIAS)
    e("    s_waitcnt lgkmcnt(1)")
    e("    v_readfirstlane_b32 s%d, v%d" % (sNB, vNB2))
    e("    s_cmp_eq_u32 s%d, -1" % sNB)
    e("    s_cbranch_scc1 L_tw")
    e("L_tok:")
    next_off8()
    for jj in range(3):
        e("    s_waitcnt vmcnt(%s)" % TW[jj])
        dots4(jj, (vS, vT), jj == 0)
        load(jj)
    ahead()
    e("    v_add_f32 v%d, v%d, v%d" % (vS, vS, vT))
    e("    s_nop 1")
    for pat in ("quad_perm:[1,0,3,2]", "quad_perm:[2,3,0,1]", "row_half_mirror"):
        e("    v_add_f32_dpp v%d, v%d, v%d %s row_mask:0xf bank_mask:0xf" % (vS, vS, vS, pat))
        if pat != "row_half_mirror": e("    s_nop 1")
    e("    v_add_f32 v%d, s%d, v%d" % (vS, sBIAS, vS))
    e("    v_max_f32 v%d, v%d, v%d" % (vM, vM, vS))
    e("    v_mov_b32 v%d, v%d" % (vA, vMC))
    e("    v_mul_f32 v%d, s%d, v%d" % (vMC, sC, vM))
    e("    v_sub_f32 v%d, v%d, v%d" % (vA, vA, vMC))
    e("    v_fma_f32 v%d, v%d, s%d, -v%d" % (vS, vS, sC, vMC))
    e("    v_exp_f32 v%d, v%d" % (vA, vA))
    e("    v_exp_f32 v%d, v%d" % (vS, vS))
    for i in range(12):
        e("    v_pk_mul_f32 v[%d:%d], v[%d:%d], v[%d:%d] op_sel:[0,1] op_sel_hi:[1,1]" %
          (vO + 2 * i, vO + 2 * i + 1, vO + 2 * i, vO + 2 * i + 1, vA - 1, vA))
    e("    v_fma_f32 v%d, v%d, v%d, v%d" % (vL, vL, vA, vS))
    for jj in range(3, 6): pv(jj, 0, TW)
    trace()
    e("    s_cmp_lt_u32 s%d, %d" % (sNB, TPH))
    e("    s_cbranch_scc1 L_t")
    e("L_dump:")
    vZ = vT; vMX = vT + 3; t0 = vT + 4; vLX = vT + 5; t1 = vT + 6
    e("    v_max_f32_dpp v%d, v%d, v%d row_ror:8 row_mask:0xf bank_mask:0xf" % (vMX, vMC, vMC))
    e("    v_mov_b32 v%d, s%d" % (t1, sT3))
    for sw in ("v_permlane16_swap_b32", "v_permlane32_swap_b32"):
        e("    v_mov_b32 v%d, v%d" % (t0, vMX))
        e("    s_nop 1")
        e("    %s v%d, v%d" % (sw, vMX, t0))
        e("    s_nop 0")
        e("    v_max_f32 v%d, v%d, v%d" % (vMX, vMX, t0))
    e("    v_sub_f32 v%d, v%d, v%d" % (vA, vMC, vMX))
    e("    v_exp_f32 v%d, v%d" % (vA, vA))
    e("    s_xor_b32 s%d, s%d, %d" % (sT3, sT3, DLO ^ (DLO + NW * 4)) if (DLO % (2 * NW * 4) == 0) else "    s_nop 0")
    e("    v_mul_f32 v%d, v%d, v%d" % (vL, vL, vA))
    for i in range(12):
        e("    v_pk_mul_f32 v[%d:%d], v[%d:%d], v[%d:%d] op_sel:[0,1] op_sel_hi:[1,1]" %
          (vO + 2 * i, vO + 2 * i + 1, vO + 2 * i, vO + 2 * i + 1, vA - 1, vA))
    e("    v_add_f32_dpp v%d, v%d, v%d row_ror:8 row_mask:0xf bank_mask:0xf" % (vLX, vL, vL))
    for j in range(3):
        for ee in range(4):
            a = vO + j * 8 + ee
            e("    v_permlane32_swap_b32 v%d, v%d" % (a, a + 4))
    e("    v_mov_b32 v%d, v%d" % (t0, vLX))
    for j in range(3):
        for ee in range(4):
            a = vO + j * 8 + ee
            e("    v_add_f32 v%d, v%d, v%d" % (a, a, a + 4))
    e("    v_permlane16_swap_b32 v%d, v%d" % (vLX, t0))
    for j in range(3):
        for ee in range(2):
            a = vO + j * 8 + ee
            e("    v_permlane16_swap_b32 v%d, v%d" % (a, a + 2))
    e("    v_add_f32 v%d, v%d, v%d" % (vLX, vLX, t0))
    for j in range(3):
        for ee in range(2):
            a = vO + j * 8 + ee
            e("    v_add_f32 v%d, v%d, v%d" % (a, a, a + 2))
    e("    v_mov_b32 v%d, v%d" % (t0, vLX))
    e("    s_add_u32 s%d, s%d, 1" % (sR, sR))
    for j in range(3):
        a = vO + j * 8
        e("    v_add_f32_dpp v%d, v%d, v%d row_ror:8 row_mask:0xf bank_mask:0x3" % (vZ + j, a, a))
    e("    v_permlane32_swap_b32 v%d, v%d" % (vLX, t0))
    for j in range(3):
        a = vO + j * 8
        e("    v_add_f32_dpp v%d, v%d, v%d row_ror:8 row_mask:0xf bank_mask:0xc" % (vZ + j, a + 1, a + 1))
    e("    v_add_f32 v%d, v%d, v%d" % (vLX, vLX, t0))
    e("    ds_write_b128 v%d, v[%d:%d]" % (vDA, vZ, vZ + 3))
    e("    ds_write_b32 v%d, v%d" % (t1, vLX))
    e("    v_add_u32 v%d, s%d, v%d" % (vDA, sT2, vDA))
    e("    s_sub_u32 s%d, 0, s%d" % (sT2, sT2))
    e("    s_add_u32 s%d, s%d, %d" % (sHO, sHO, W * HEADB))
    e("    s_waitcnt lgkmcnt(0)")
    e("    s_barrier")
    e("    s_cmp_eq_u32 s%d, %d" % (sR, RND))
    e("    s_cbranch_scc1 L_fin")
    init_state()
    e("    s_branch L_vround")
    assert DLO % (2 * NW * 4) == 0
    e("L_klast:")
    e("    s_add_u32 s%d, s%d, %d" % (sTMP, sHO, W * HEADB))
    e("    s_cmp_lg_u32 s%d, %d" % (sR, RND - 1))
    e("    s_cbranch_scc1 L_klast2")
    e("    s_sub_u32 s%d, s%d, %d" % (sTMP, sHO, (RND - 1) * W * HEADB))
    e("    s_mov_b64 s[16:17], s[8:9]")
    e("    s_mov_b64 s[20:21], s[8:9]")
    e("L_klast2:")
    next_off16(sL0, sTMP)
    e("    s_branch L_kgo")
    e("L_vlast:")
    e("    s_cmp_eq_u32 s%d, %d" % (sR, RND - 1))
    e("    s_cbranch_scc1 L_vlast2")
    e("    s_add_u32 s%d, s%d, %d" % (sTMP, sHO, W * HEADB))
    next_off16(sL0, sTMP)
    e("    s_branch L_vgo")
    e("L_vlast2:")
    e("    s_mov_b64 s[16:17], s[6:7]")
    e("    v_mov_b32 v%d, %d" % (vLA, TLO))
    e("    s_mov_b32 s%d, -1" % sNB)
    waitent("z")
    e("L_zok:")
    next_off8()
    e("    s_branch L_vgo")
    waitent("k")
    waitent("t")

    e("L_fin:")
    e("    s_cmp_ge_u32 s%d, %d" % (sIDX, RND))
    e("    s_cbranch_scc1 L_done")
    e("    s_cmp_ge_u32 s%d, %d" % (sWAVE, NWC))
    e("    s_cbranch_scc1 L_done")
    cA = vT; cB = vT + 1; cT = vT + 2; cB0 = vT + 3; cMX = vT + 4; cLX = vT + 5; cW = vT + 6; cLB = vT + 7
    cM = vQ; cACC = vQ + 4; cO = vQ + 8; cX = vX; cM2 = vO; cA2 = vO + 4
    e("    v_mov_b32 v%d, %d" % (cT, NONO))
    e("    ds_read_b32 v%d, v%d" % (cT, cT))
    e("    s_mul_i32 s%d, s%d, %d" % (sHEAD, sIDX, W))
    e("    s_add_u32 s%d, s%d, s%d" % (sHEAD, sHEAD, sCOL))
    e("    v_lshlrev_b32 v%d, 4, v%d" % (cLB, vLANE))
    e("    s_lshl_b32 s%d, s%d, %d" % (sTMP, sHEAD, LOGP + 4))
    e("    s_add_u32 s%d, s%d, 0x%x" % (sTMP, sTMP, MLG))
    e("    s_mul_i32 s%d, s%d, %d" % (sCNT, sWAVE, RPW * 16))
    e("    v_add_u32 v%d, s%d, v%d" % (cA, sCNT, cLB))
    e("    v_and_b32 v%d, %d, v%d" % (cA, PER * 16 - 1, cA))
    if NG == 2:
        e("    v_xor_b32 v%d, 1024, v%d" % (cA2, cA))
        e("    v_add_u32 v%d, s%d, v%d" % (cA2, sTMP, cA2))
    e("    v_add_u32 v%d, s%d, v%d" % (cA, sTMP, cA))
    e("    s_lshl_b32 s%d, s%d, %d" % (sTMP, sHEAD, LOGP + 10))
    e("    s_mul_i32 s%d, s%d, %d" % (sCNT, sWAVE, RPW * 1024))
    e("    s_add_u32 s%d, s%d, s%d" % (sCNT, sCNT, sTMP))
    e("    v_add_u32 v%d, s%d, v%d" % (cB0, sCNT, cLB))
    e("    v_and_b32 v%d, 7, v%d" % (cO, vLANE))
    e("    v_lshlrev_b32 v%d, 4, v%d" % (cO, cO))
    e("    v_lshrrev_b32 v%d, 3, v%d" % (cW, vLANE))
    e("    v_lshl_add_u32 v%d, v%d, 1, v%d" % (cO, cW, cO))
    e("    s_mul_i32 s%d, s%d, %d" % (sTMP, sHEAD, ROWB))
    e("    v_add_u32 v%d, s%d, v%d" % (cO, sTMP, cO))
    e("    s_lshl_b32 s%d, s%d, 10" % (sTMP, sWAVE))
    e("    s_add_u32 s%d, s%d, %d" % (sTMP, sTMP, MRG))
    e("    v_add_u32 v%d, s%d, v%d" % (cW, sTMP, cLB))
    e("    s_waitcnt vmcnt(0) lgkmcnt(0)")
    if WARM & 1:
        e("    global_load_ushort v%d, v%d, s[10:11]" % (cMX, cO))
    e("    v_readfirstlane_b32 s%d, v%d" % (sNON, cT))
    e("    s_mov_b32 s%d, 0x%x" % (sN, SPIN))
    e("L_poll1:")
    e("    s_sub_u32 s%d, s%d, 1" % (sN, sN))
    e("    s_cbranch_scc1 L_done")
    e("    global_load_dwordx4 v[%d:%d], v%d, s[14:15] sc1" % (cM, cM + 3, cA))
    if NG == 2:
        e("    global_load_dwordx4 v[%d:%d], v%d, s[14:15] sc1" % (cM2, cM2 + 3, cA2))
    e("    s_waitcnt vmcnt(0)")
    if NG == 2:
        e("    v_cmp_eq_u32 vcc, s%d, v%d" % (sNON, cM2 + 3))
        e("    s_bcnt1_i32_b64 s%d, vcc" % sCNT)
    e("    v_cmp_eq_u32 vcc, s%d, v%d" % (sNON, cM + 3))
    if PER < 64:
        e("    s_and_b32 vcc_hi, vcc_hi, 0" if PER == 32 else "    s_and_b64 vcc, vcc, 0x%x" % ((1 << PER) - 1))
    e("    s_bcnt1_i32_b64 s%d, vcc" % sTMP)
    if NG == 2: e("    s_add_u32 s%d, s%d, s%d" % (sTMP, sTMP, sCNT))
    e("    s_cmp_lt_u32 s%d, %d" % (sTMP, PER - THR))
    e("    s_cbranch_scc1 L_poll1")
    if STAMP: e("    s_memrealtime s[42:43]")
    e("L_poll2:")
    e("    s_sub_u32 s%d, s%d, 1" % (sN, sN))
    e("    s_cbranch_scc1 L_done")
    e("    v_mov_b32 v%d, v%d" % (cB, cB0))
    e("    global_load_dwordx4 v[%d:%d], v%d, s[14:15] sc1" % (cM, cM + 3, cA))
    if NG == 2:
        e("    global_load_dwordx4 v[%d:%d], v%d, s[14:15] sc1" % (cM2, cM2 + 3, cA2))
    for j in range(RPW):
        e("    global_load_dwordx4 v[%d:%d], v%d, s[14:15] offset:%d sc1" % (cX + 4 * j, cX + 4 * j + 3, cB, (j % 4) * 1024))
        if j % 4 == 3 and j + 1 < RPW:
            e("    v_add_u32 v%d, 4096, v%d" % (cB, cB))
    e("    s_waitcnt vmcnt(%d)" % RPW)
    e("    v_cmp_ne_u32 s[%d:%d], s%d, v%d" % (sBAD, sBAD + 1, sNON, cM + 3))
    if NG == 2:
        e("    v_cmp_ne_u32 vcc, s%d, v%d" % (sNON, cM2 + 3))
        e("    v_max_f32 v%d, v%d, v%d" % (cMX, cM, cM2))
        e("    s_or_b64 s[%d:%d], s[%d:%d], vcc" % (sBAD, sBAD + 1, sBAD, sBAD + 1))
    else:
        e("    v_mov_b32 v%d, v%d" % (cMX, cM))
    e("    s_cmp_lg_u64 s[%d:%d], 0" % (sBAD, sBAD + 1))
    e("    s_cbranch_scc1 L_retry")
    if STAMP: e("    s_memrealtime s[44:45]")
    def allreduce(op, r, t):
        e("    s_nop 1")
        for pat in ("quad_perm:[1,0,3,2]", "quad_perm:[2,3,0,1]", "row_half_mirror", "row_ror:8"):
            e("    %s_dpp v%d, v%d, v%d %s row_mask:0xf bank_mask:0xf" % (op, r, r, r, pat))
            e("    s_nop 1")
        for sw in ("v_permlane16_swap_b32", "v_permlane32_swap_b32"):
            e("    v_mov_b32 v%d, v%d" % (t, r))
            e("    s_nop 1")
            e("    %s v%d, v%d" % (sw, r, t))
            e("    s_nop 0")
            e("    %s v%d, v%d, v%d" % (op, r, r, t))
    allreduce("v_max_f32", cMX, cT)
    e("    v_sub_f32 v%d, v%d, v%d" % (cM, cM, cMX))
    if NG == 2: e("    v_sub_f32 v%d, v%d, v%d" % (cM2, cM2, cMX))
    e("    v_exp_f32 v%d, v%d" % (cM, cM))
    if NG == 2: e("    v_exp_f32 v%d, v%d" % (cM2, cM2))
    if PER < 64:
        e("    v_cmp_gt_u32 vcc, %d, v%d" % (PER, vLANE))
    e("    v_mov_b32 v%d, 0" % cACC)
    e("    v_mul_f32 v%d, v%d, v%d" % (cLX, cM, cM + 1))
    e("    v_mov_b32 v%d, 0" % (cACC + 1))
    if NG == 2: e("    v_fma_f32 v%d, v%d, v%d, v%d" % (cLX, cM2, cM2 + 1, cLX))
    if PER < 64:
        e("    v_cndmask_b32 v%d, 0, v%d, vcc" % (cLX, cLX))
    e("    v_mov_b32 v%d, 0" % (cACC + 2))
    steps = []
    for pat in ("quad_perm:[1,0,3,2]", "quad_perm:[2,3,0,1]", "row_half_mirror", "row_ror:8"):
        steps.append("    v_add_f32_dpp v%d, v%d, v%d %s row_mask:0xf bank_mask:0xf" % (cLX, cLX, cLX, pat))
    for sw in ("v_permlane16_swap_b32", "v_permlane32_swap_b32"):
        steps.append("    v_mov_b32 v%d, v%d" % (cT, cLX))
        steps.append("    %s v%d, v%d" % (sw, cLX, cT))
        steps.append("    v_add_f32 v%d, v%d, v%d" % (cLX, cLX, cT))
    steps.append("    v_rcp_f32 v%d, v%d" % (cLX, cLX))
    for j in range(RPW):
        e("    v_readlane_b32 s%d, v%d, %d" % (sW + j, cM, j))
        if j % 2 == 1 and len(steps) > 7: e(steps.pop(0))
    if STAMP: e("    s_memrealtime s[46:47]")
    for j in range(RPW):
        if j % 4 == 0:
            e("    s_waitcnt vmcnt(%d)" % (RPW - 4 - j))
        sp = (sW + j) & ~1; hi = (sW + j) & 1
        e("    v_cmp_ne_u32 vcc, s%d, v%d" % (sNON, cX + 4 * j + 3))
        e("    v_pk_fma_f32 v[%d:%d], v[%d:%d], s[%d:%d], v[%d:%d] op_sel:[0,%d,0] op_sel_hi:[1,%d,1]" %
          (cACC, cACC + 1, cX + 4 * j, cX + 4 * j + 1, sp, sp + 1, cACC, cACC + 1, hi, hi))
        e("    v_fma_f32 v%d, v%d, s%d, v%d" % (cACC + 2, cX + 4 * j + 2, sW + j, cACC + 2))
        if steps: e(steps.pop(0))
        e("    s_or_b64 s[%d:%d], s[%d:%d], vcc" % (sBAD, sBAD + 1, sBAD, sBAD + 1))
    assert not steps
    e("    s_cbranch_scc1 L_poll2")
    if STAMP: e("    s_memrealtime s[48:49]")
    if NWC > 1:
        e("    ds_write_b128 v%d, v[%d:%d]" % (cW, cACC, cACC + 3))
        e("    s_waitcnt lgkmcnt(0)")
        e("    s_barrier")
        e("    s_cmp_lg_u32 s%d, 0" % sWAVE)
        e("    s_cbranch_scc1 L_done")
        for w in range(1, NWC):
            e("    ds_read_b128 v[%d:%d], v%d offset:%d" % (cX + 4 * w, cX + 4 * w + 3, cW, w * 1024))
        for w in range(1, NWC):
            e("    s_waitcnt lgkmcnt(%d)" % (NWC - 1 - w))
            e("    v_pk_add_f32 v[%d:%d], v[%d:%d], v[%d:%d]" % (cACC, cACC + 1, cACC, cACC + 1, cX + 4 * w, cX + 4 * w + 1))
            e("    v_add_f32 v%d, v%d, v%d" % (cACC + 2, cACC + 2, cX + 4 * w + 2))
    for k in range(3):
        e("    v_mul_f32 v%d, v%d, v%d" % (cACC + k, cACC + k, cLX))
    e("    v_cvt_pk_bf16_f32 v%d, v%d, v%d" % (cACC, cACC, cACC + 1))
    e("    v_cvt_pk_bf16_f32 v%d, v%d, v%d" % (cACC + 2, cACC + 2, cACC + 2))
    e("    global_store_short v%d, v%d, s[10:11]" % (cO, cACC))
    e("    global_store_short_d16_hi v%d, v%d, s[10:11] offset:128" % (cO, cACC))
    e("    global_store_short v%d, v%d, s[10:11] offset:256" % (cO, cACC + 2))
    if HOLD and HMODE:
        e("    v_mov_b32 v%d, 0" % cT)
        e("    global_load_dword v%d, v%d, s[12:13] offset:128 sc1" % (cT, cT))
        e("    s_waitcnt vmcnt(0)")
        e("    v_readfirstlane_b32 s%d, v%d" % (sT0, cT))
        if HMODE == 1: e("    s_not_b32 s%d, s%d" % (sT0, sT0))
    if HOLD:
        e("L_hold:")
        e("    s_memrealtime s[50:51]")
        e("    s_waitcnt lgkmcnt(0)")
        e("    s_sub_u32 s50, s50, s%d" % sT0)
        e("    s_cmp_lt_u32 s50, %d" % HOLD)
        e("    s_cbranch_scc1 L_hold")
    if STAMP:
        e("    s_waitcnt vmcnt(0)")
        e("    s_memrealtime s[50:51]")
        e("    s_lshl_b32 s%d, s2, 6" % sTMP)
        e("    s_add_u32 s%d, s%d, 0x1000000" % (sTMP, sTMP))
        e("    v_mov_b32 v%d, s%d" % (cT, sTMP))
        e("    s_waitcnt lgkmcnt(0)")
        e("    v_mov_b32 v%d, s50" % cACC)
        e("    v_mov_b32 v%d, s51" % (cACC + 1))
        e("    s_mov_b64 exec, 1")
        e("    global_store_dwordx2 v%d, v[%d:%d], s[14:15] offset:48" % (cT, cACC, cACC + 1))
        for i in range(4): e("    v_mov_b32 v%d, s%d" % (cX + i, 42 + 2 * i))
        e("    v_add_u32 v%d, 0x8000, v%d" % (cT, cT))
        e("    global_store_dwordx4 v%d, v[%d:%d], s[14:15]" % (cT, cX, cX + 3))
    e("    s_endpgm")
    e("L_retry:")
    e("    s_waitcnt vmcnt(0)")
    e("    s_branch L_poll2")

    e("L_service:")
    vAD = vT; vRA = vT + 1; vGA = vT + 2; vONE = vT + 3; vMX = vT + 4; vLX = vT + 5; t0 = vT + 6; t1 = vT + 7
    vE = vX + 5 * NW + (NW & 1)
    vR0 = vQ; vR1 = vQ + 1; vZERO = vQ + 2; vRL = vQ + 3; vCW = vQ + 4; vML = vQ + 5; vZ = vQ + 6; vG = vQ + 10; vDL = vQ + 14
    e("    v_lshlrev_b32 v%d, 4, v%d" % (vAD, vLANE))
    e("    v_mul_u32_u24 v%d, %d, v%d" % (t0, SST, vLANE))
    e("    v_add_u32 v%d, s%d, v%d" % (t0, sL0, t0))
    e("    v_lshlrev_b32 v%d, 2, v%d" % (t1, vLANE))
    e("    s_mov_b32 exec_lo, 0x%x" % (((1 << (SSF + 1)) - 1) & 0xffffffff))
    e("    s_mov_b32 exec_hi, 0x%x" % (((1 << (SSF + 1)) - 1) >> 32))
    e("    ds_write_b32 v%d, v%d offset:%d" % (t1, t0, LSO))
    e("    s_mov_b64 exec, -1")
    e("    v_cmp_gt_u32 vcc, %d, v%d" % (SSL, vLANE))
    e("    v_mov_b32 v%d, -1" % vONE)
    e("    v_mov_b32 v%d, 0" % vZERO)
    e("    v_cndmask_b32 v%d, -1, v%d, vcc" % (t0, t0))
    e("    ds_write_b32 v%d, v%d offset:%d" % (t1, t0, LLO))
    for k in range(64, LLN + TLN, 64):
        e("    ds_write_b32 v%d, v%d offset:%d" % (t1, vONE, LLO + 4 * k))
    e("    v_and_b32 v%d, 12, v%d" % (t1, t1))
    e("    ds_write_b32 v%d, v%d offset:%d" % (t1, vZERO, PO))
    e("    s_mul_i32 s%d, s%d, %d" % (sTMP, sCOL, ROWB))
    e("    v_add_u32 v%d, s%d, v%d" % (vRA, sTMP, vAD))
    e("    s_waitcnt lgkmcnt(0)")
    e("    v_mov_b32 v%d, 1" % vONE)
    if WARM & 4:
        e("    s_mul_i32 s%d, s%d, %d" % (sTMP, sCOL, HEADB))
        e("    v_mul_u32_u24 v%d, 0x200000, v%d" % (vX, vLANE))
        e("    v_add_u32 v%d, s%d, v%d" % (vX, sTMP, vX))
        e("    s_mov_b64 exec, %d" % (0x3f if WARM & 8 == 0 else 0x3fffffff))
        e("    global_load_dword v%d, v%d, s[6:7] nt" % (vX + 1, vX))
        e("    s_mov_b64 exec, -1")
    e("    s_barrier")
    e("    s_mov_b64 exec, 0xffffff")
    for r in range(1, RND):
        e("    v_add_u32 v%d, %d, v%d" % (vRA, W * ROWB, vRA))
        e("    global_load_dwordx4 v[%d:%d], v%d, s[4:5]" % (vX + 4 * r, vX + 4 * r + 3, vRA))
    e("    s_waitcnt vmcnt(0)")
    for r in range(1, RND):
        e("    ds_write_b128 v%d, v[%d:%d] offset:%d" % (vAD, vX + 4 * r, vX + 4 * r + 3, QO + r * ROWB))
    e("    s_mov_b64 exec, -1")
    e("    s_lshl_b32 s%d, s%d, %d" % (sTMP, sCOL, LOGP))
    e("    s_add_u32 s%d, s%d, s%d" % (sTMP, sTMP, sIDX))
    e("    s_lshl_b32 s%d, s%d, 10" % (sCNT, sTMP))
    e("    v_add_u32 v%d, s%d, v%d" % (vRA, sCNT, vAD))
    e("    s_lshl_b32 s%d, s%d, 4" % (sCNT, sTMP))
    e("    s_add_u32 s%d, s%d, 0x%x" % (sCNT, sCNT, MLG))
    e("    v_mul_u32_u24 v%d, %d, v%d" % (vGA, NWG * 16, vLANE))
    e("    v_add_u32 v%d, s%d, v%d" % (vGA, sCNT, vGA))
    e("    s_lshr_b32 s%d, s%d, 3" % (sNT, sIDX))
    e("    s_and_b32 s%d, s%d, %d" % (sNT, sNT, S - 1))
    e("    s_mul_i32 s%d, s%d, %d" % (sTMP, sCOL, S))
    e("    s_add_u32 s%d, s%d, s%d" % (sTMP, sTMP, sNT))
    e("    s_mul_i32 s%d, s%d, %d" % (sNT, sNT, NW))
    e("    s_lshl_b32 s%d, s%d, 8" % (sTMP, sTMP))
    e("    s_add_u32 s%d, s%d, 0x%x" % (sTMP, sTMP, CTR_OFF))
    e("    v_mov_b32 v%d, s%d" % (vCW, sTMP))
    e("    s_mov_b32 s%d, 0" % sR)
    e("    s_mov_b32 s%d, %d" % (sT2, SLOTB))
    e("    v_add_u32 v%d, %d, v%d" % (vDA, DO, vAD))
    e("    v_mov_b32 v%d, %d" % (vDL, DLO))
    e("    v_add_u32 v%d, %d, v%d" % (vRL, RECO, vAD))
    e("    v_mov_b32 v%d, %d" % (vML, MLO))
    e("    v_mov_b32 v%d, 0" % (vG + 2))
    def ph():
        if PH:
            e("    s_memrealtime s[50:51]")
            e("    s_waitcnt lgkmcnt(0)")
            e("    v_mov_b32 v%d, s50" % (vTR + 1))
            e("    global_store_dword v%d, v%d, s[14:15]" % (vTR, vTR + 1))
            e("    v_add_u32 v%d, 4, v%d" % (vTR, vTR))
    if PH:
        e("    s_lshl_b32 s52, s2, 8")
        e("    s_add_u32 s52, s52, 0x1100000")
        e("    v_mov_b32 v%d, s52" % vTR)
        e("    v_mov_b32 v%d, s%d" % (vTR + 1, sT0))
        e("    s_mov_b64 exec, 1")
        e("    global_store_dword v%d, v%d, s[14:15]" % (vTR, vTR + 1))
        e("    v_add_u32 v%d, 4, v%d" % (vTR, vTR))
        e("    s_mov_b64 exec, -1")
    def elect(tag):
        e("    s_mov_b64 exec, 1")
        e("    global_atomic_add v%d, v%d, v%d, s[12:13] sc0" % (t0, vZERO, vONE))
        e("    s_memrealtime s[50:51]")
        e("    s_waitcnt vmcnt(0) lgkmcnt(0)")
        e("    v_readfirstlane_b32 s%d, v%d" % (sTMP, t0))
        e("    s_mov_b64 exec, -1")
        e("    s_cmp_lg_u32 s%d, 0" % sTMP)
        e("    s_cbranch_scc1 L_lost%s" % tag)
        e("    v_lshlrev_b32 v%d, 8, v%d" % (t0, vLANE))
        e("    v_add_u32 v%d, 0x%x, v%d" % (t0, CTR_OFF, t0))
        e("    s_or_b32 s50, s50, 1")
        e("    v_mov_b32 v%d, s50" % t1)
        e("    global_store_dword v%d, v%d, s[14:15] sc1" % (t0, vZERO))
        e("    s_waitcnt vmcnt(0)")
        e("    global_store_dword v%d, v%d, s[12:13] offset:64 sc1" % (vZERO, t1))
        e("L_lost%s:" % tag)
    if HMODE:
        e("    v_mov_b32 v%d, s%d" % (t0, sT0))
        if HMODE == 1: e("    v_not_b32 v%d, v%d" % (t0, t0))
        e("    s_mov_b64 exec, 1")
        e("    global_atomic_umax v%d, v%d, s[12:13] offset:128" % (vZERO, t0))
        e("    s_mov_b64 exec, -1")
    e("    s_cmp_lg_u32 s2, 0")
    e("    s_cbranch_scc1 L_lostA")
    elect("A")
    e("    s_waitcnt lgkmcnt(0)")
    e("    s_barrier")
    if PH:
        e("    s_mov_b64 exec, 1")
        ph()
        e("    s_mov_b64 exec, -1")
    if WARM & 2:
        e("    s_mul_i32 s%d, s%d, %d" % (sTMP, sCOL, HEADB))
        e("    s_mul_i32 s%d, s%d, %d" % (sCNT, sL0, TB2))
        e("    s_add_u32 s%d, s%d, s%d" % (sTMP, sTMP, sCNT))
        e("    v_mov_b32 v%d, s%d" % (t1, sTMP))
        e("    s_mov_b64 exec, 1")
        e("    global_load_dword v%d, v%d, s[8:9] nt" % (vX, t1))
        e("    global_load_dword v%d, v%d, s[14:15] nt" % (vX + 1, vCW))
        e("    global_load_dword v%d, v%d, s[14:15] nt" % (vX + 2, vRA))
        e("    global_load_dword v%d, v%d, s[14:15] nt" % (vX + 3, vGA))
        e("    s_mov_b64 exec, -1")
    e("    global_load_dword v%d, v%d, s[12:13] offset:64 sc1" % (t0, vZERO))
    e("    s_waitcnt vmcnt(0)")
    e("    v_readfirstlane_b32 s%d, v%d" % (sNON, t0))
    e("    s_cmp_lg_u32 s%d, 0" % sNON)
    e("    s_cbranch_scc1 L_ready")
    elect("B")
    e("    s_mov_b32 s%d, 0x%x" % (sN, SPIN))
    e("L_spinf:")
    e("    s_sub_u32 s%d, s%d, 1" % (sN, sN))
    e("    s_cbranch_scc1 L_ready")
    e("    global_load_dword v%d, v%d, s[12:13] offset:64 sc1" % (t0, vZERO))
    e("    s_waitcnt vmcnt(0)")
    e("    v_readfirstlane_b32 s%d, v%d" % (sNON, t0))
    e("    s_cmp_eq_u32 s%d, 0" % sNON)
    e("    s_cbranch_scc1 L_spinf")
    e("L_ready:")
    e("    v_mov_b32 v%d, s%d" % (vZ + 3, sNON))
    e("    v_mov_b32 v%d, s%d" % (vG + 3, sNON))
    e("    ds_write_b32 v%d, v%d offset:%d" % (vZERO, vZ + 3, NONO))
    e("    s_mov_b32 s%d, %d" % (sLIM, LIML))
    e("    s_add_u32 s%d, s%d, %d" % (sBASE, sNT, SSL * SST))
    e("    v_mov_b32 v%d, %d" % (vLA, LLO + 4 * SSL))
    e("    s_mov_b32 s%d, %d" % (sCAP, CAP))
    e("    s_mov_b32 s%d, %d" % (sNEED, (RND - 1) * SSF + SSL - 1 - LOOK))
    e("L_seq:")
    e("    s_mov_b64 exec, 1")
    e("    s_mov_b32 s%d, 0x%x" % (sN, SPIN))
    ph()
    e("L_sls:")
    e("    ds_read_b128 v[%d:%d], v%d offset:%d" % (vX, vX + 3, vZERO, PO))
    e("    s_waitcnt lgkmcnt(0)")
    e("    v_max3_u32 v%d, v%d, v%d, v%d" % (t0, vX, vX + 1, vX + 2))
    e("    v_max_u32 v%d, v%d, v%d" % (t0, t0, vX + 3))
    e("    s_nop 0")
    e("    v_readfirstlane_b32 s%d, v%d" % (sP, t0))
    e("    s_cmp_ge_u32 s%d, s%d" % (sP, sNEED))
    e("    s_cbranch_scc1 L_grab")
    if SLP: e("    s_sleep %d" % SLP)
    e("    s_sub_u32 s%d, s%d, 1" % (sN, sN))
    e("    s_cbranch_scc0 L_sls")
    e("    s_mov_b32 s%d, 0" % sN)
    e("L_grab:")
    e("    s_mov_b32 s%d, %d" % (sM1, TPH))
    e("    s_sub_u32 s%d, s%d, 1" % (sCAP, sCAP))
    e("    s_cbranch_scc1 L_got")
    e("    global_atomic_add v%d, v%d, v%d, s[14:15] sc0" % (vR0, vCW, vONE))
    e("    s_waitcnt vmcnt(0)")
    e("    v_readfirstlane_b32 s%d, v%d" % (sM1, vR0))
    e("    s_min_u32 s%d, s%d, %d" % (sM1, sM1, TPH))
    e("L_got:")
    e("    s_mul_i32 s%d, s%d, %d" % (sM1, sM1, NW * S))
    e("    s_add_u32 s%d, s%d, s%d" % (sM1, sM1, sBASE))
    e("    v_mov_b32 v%d, s%d" % (t0, sM1))
    e("    ds_write_b32 v%d, v%d" % (vLA, t0))
    e("    v_add_u32 v%d, 4, v%d" % (vLA, vLA))
    e("    s_add_u32 s%d, s%d, 1" % (sNEED, sNEED))
    e("    s_cmp_lt_u32 s%d, s%d" % (sM1, sLIM))
    e("    s_cbranch_scc1 L_sls")
    e("L_slsend:")
    ph()
    if PH == 2:
        e("    v_mov_b32 v%d, s%d" % (vTR + 1, sCAP))
        e("    global_store_dword v%d, v%d, s[14:15] offset:124" % (vTR, vTR + 1))
    e("    s_mov_b64 exec, -1")
    e("    s_cmp_eq_u32 s%d, %d" % (sLIM, TPH))
    e("    s_cbranch_scc1 %s" % ("L_early" if EARLY else "L_sdump"))
    e("L_svround:")
    e("    s_cmp_lg_u32 s%d, %d" % (sR, RND - 1))
    e("    s_cbranch_scc1 L_sdump")
    e("    s_mov_b32 s%d, %d" % (sLIM, TPH))
    e("    s_add_u32 s%d, s%d, %d" % (sBASE, sNT, 2 * LIML))
    e("    s_mov_b32 s%d, %d" % (sCAP, NUT))
    e("    v_add_u32 v%d, %d, v%d" % (vCW, W * S * 256, vCW))
    e("    v_mov_b32 v%d, %d" % (vLA, TLO))
    e("    s_lshl_b32 s%d, s%d, 1" % (sNEED, sNEED))
    e("    s_add_u32 s%d, s%d, %d" % (sNEED, sNEED, LOOK - 1))
    e("    s_branch L_seq")
    if EARLY:
        e("; ---- the streamers are on their last tiles: publish the records of the earlier rounds")
        e("L_early:")
        e("    v_min_u32 v%d, %d, v%d" % (t1, (RND - 2) * 16, vAD))
        e("    ds_read_b128 v[%d:%d], v%d offset:%d" % (vE, vE + 3, t1, MLO))
        for r in range(RND - 1):
            e("    ds_read_b128 v[%d:%d], v%d offset:%d" % (vE + 4 + 4 * r, vE + 4 + 4 * r + 3, vAD, RECO + r * 1024))
        e("    s_mov_b64 exec, %d" % ((1 << (RND - 1)) - 1))
        e("    s_waitcnt lgkmcnt(%d)" % min(15, RND - 1))
        e("    global_store_dwordx4 v%d, v[%d:%d], s[14:15] sc1" % (vGA, vE, vE + 3))
        e("    s_mov_b64 exec, -1")
        for r in range(RND - 1):
            e("    s_waitcnt lgkmcnt(%d)" % (RND - 2 - r))
            e("    global_store_dwordx4 v%d, v[%d:%d], s[14:15] sc1" % (vRA, vE + 4 + 4 * r, vE + 4 + 4 * r + 3))
            e("    v_add_u32 v%d, %d, v%d" % (vRA, NWG * 1024, vRA))
    e("L_sdump:")
    e("    s_waitcnt lgkmcnt(0)")
    e("    s_barrier")
    if PH:
        e("    s_mov_b64 exec, 1")
        ph()
        e("    s_mov_b64 exec, -1")
    if STAMP:
        e("    s_memrealtime s[%d:%d]" % (sT0 + 2, sT0 + 3))
    vY = vX + 4 * NW
    for w in range(NW):
        e("    ds_read_b128 v[%d:%d], v%d offset:%d" % (vX + 4 * w, vX + 4 * w + 3, vDA, w * 1024))
    for w in range(NW):
        e("    ds_read_b32 v%d, v%d offset:%d" % (vY + w, vDL, w * 4))
    e("    v_add_u32 v%d, s%d, v%d" % (vDA, sT2, vDA))
    e("    s_sub_u32 s%d, 0, s%d" % (sT2, sT2))
    e("    v_xor_b32 v%d, %d, v%d" % (vDL, DLO ^ (DLO + NW * 4), vDL))
    e("    s_add_u32 s%d, s%d, 1" % (sR, sR))
    e("    s_waitcnt lgkmcnt(%d)" % (0 if STAMP else NW))
    e("    v_max_f32 v%d, v%d, v%d" % (vG, vX + 3, vX + 7))
    for w in range(2, NW):
        e("    v_max_f32 v%d, v%d, v%d" % (vG, vG, vX + 4 * w + 3))
    for w in range(NW):
        e("    v_sub_f32 v%d, v%d, v%d" % (vX + 4 * w + 3, vX + 4 * w + 3, vG))
    for w in range(NW):
        e("    v_exp_f32 v%d, v%d" % (vX + 4 * w + 3, vX + 4 * w + 3))
    e("    s_waitcnt lgkmcnt(0)")
    for k in range(3):
        e("    v_mul_f32 v%d, v%d, v%d" % (vZ + k, vX + k, vX + 3))
    e("    v_mul_f32 v%d, v%d, v%d" % (vG + 1, vY, vX + 3))
    for w in range(1, NW):
        for k in range(3):
            e("    v_fma_f32 v%d, v%d, v%d, v%d" % (vZ + k, vX + 4 * w + k, vX + 4 * w + 3, vZ + k))
        e("    v_fma_f32 v%d, v%d, v%d, v%d" % (vG + 1, vY + w, vX + 4 * w + 3, vG + 1))
    e("    s_cmp_eq_u32 s%d, %d" % (sR, RND))
    e("    s_cbranch_scc1 L_final")
    e("    ds_write_b128 v%d, v[%d:%d]" % (vRL, vZ, vZ + 3))
    e("    ds_write_b128 v%d, v[%d:%d]" % (vML, vG, vG + 3))
    e("    v_add_u32 v%d, 1024, v%d" % (vRL, vRL))
    e("    v_add_u32 v%d, 16, v%d" % (vML, vML))
    e("    s_branch L_svround")
    e("L_final:")
    if EARLY:
        e("    global_store_dwordx4 v%d, v[%d:%d], s[14:15] sc1" % (vRA, vZ, vZ + 3))
        e("    s_mov_b64 exec, %d" % (1 << (RND - 1)))
        e("    global_store_dwordx4 v%d, v[%d:%d], s[14:15] sc1" % (vGA, vG, vG + 3))
        if STAMP: e("    s_mov_b64 exec, -1")
    else:
        e("    v_add_u32 v%d, %d, v%d" % (t0, (RND - 1) * NWG * 1024, vRA))
        e("    global_store_dwordx4 v%d, v[%d:%d], s[14:15] sc1" % (t0, vZ, vZ + 3))
        e("    ds_write_b128 v%d, v[%d:%d]" % (vML, vG, vG + 3))
        e("    v_min_u32 v%d, %d, v%d" % (t1, (RND - 1) * 16, vAD))
        e("    ds_read_b128 v[%d:%d], v%d offset:%d" % (vX, vX + 3, t1, MLO))
        for r in range(RND - 1):
            e("    ds_read_b128 v[%d:%d], v%d offset:%d" % (vX + 4 + 4 * r, vX + 4 + 4 * r + 3, vAD, RECO + r * 1024))
        e("    s_mov_b64 exec, %d" % ((1 << RND) - 1))
        e("    s_waitcnt lgkmcnt(%d)" % min(15, RND - 1))
        e("    global_store_dwordx4 v%d, v[%d:%d], s[14:15] sc1" % (vGA, vX, vX + 3))
        e("    s_mov_b64 exec, -1")
        for r in range(RND - 1):
            e("    s_waitcnt lgkmcnt(%d)" % (RND - 2 - r))
            e("    global_store_dwordx4 v%d, v[%d:%d], s[14:15] sc1" % (vRA, vX + 4 + 4 * r, vX + 4 + 4 * r + 3))
            if r + 2 < RND:
                e("    v_add_u32 v%d, %d, v%d" % (vRA, NWG * 1024, vRA))
    if STAMP:
        e("    s_memrealtime s[%d:%d]" % (sT0 + 4, sT0 + 5))
        e("    s_waitcnt vmcnt(0)")
        e("    s_memrealtime s[%d:%d]" % (sT0 + 6, sT0 + 7))
        e("    s_getreg_b32 s%d, hwreg(HW_REG_XCC_ID)" % (sT0 + 8))
        e("    s_getreg_b32 s%d, hwreg(HW_REG_HW_ID)" % (sT0 + 9))
        e("    s_waitcnt lgkmcnt(0)")
        for i in range(10):
            e("    v_mov_b32 v%d, s%d" % (vX + i, sT0 + i))
        e("    v_mov_b32 v%d, s%d" % (vX + 10, sT0 + 6))
        e("    v_mov_b32 v%d, s%d" % (vX + 11, sT0 + 7))
        e("    s_lshl_b32 s%d, s2, 6" % (sT0))
        e("    s_add_u32 s%d, s%d, 0x1000000" % (sT0, sT0))
        e("    v_mov_b32 v%d, s%d" % (t1, sT0))
        e("    s_mov_b64 exec, 1")
        e("    global_store_dwordx4 v%d, v[%d:%d], s[14:15]" % (t1, vX, vX + 3))
        e("    global_store_dwordx4 v%d, v[%d:%d], s[14:15] offset:16" % (t1, vX + 4, vX + 7))
        e("    global_store_dwordx4 v%d, v[%d:%d], s[14:15] offset:32" % (t1, vX + 8, vX + 11))
    e("L_done:")
    e("    s_endpgm")
    e('.section .rodata,"a"')
    e(".p2align 6")
    e(".amdhsa_kernel %s" % KNAME)
    e("  .amdhsa_next_free_vgpr %d" % NVGPR)
    e("  .amdhsa_next_free_sgpr %d" % NSGPR)
    e("  .amdhsa_accum_offset %d" % ((NVGPR + 3) // 4 * 4))
    e("  .amdhsa_group_segment_fixed_size 0")
    e("  .amdhsa_kernarg_size 48")
    e("  .amdhsa_user_sgpr_count 2")
    e("  .amdhsa_user_sgpr_kernarg_segment_ptr 1")
    e("  .amdhsa_system_sgpr_workgroup_id_x 1")
    e("  .amdhsa_float_denorm_mode_32 3")
    e(".end_amdhsa_kernel")
    return "\n".join(o) + "\n"

if __name__ == "__main__":
    ap = argparse.ArgumentParser()
    ap.add_argument("-o", default="standalone__mha_softmax__decode.s")
    for k, d in dict(W=4, NW=4, SSL=4, TP=640, CAP=8, THR=3, NWC=4, LOOK=2, SLP=0, S=2, STAMP=0, TRACE=0, HOLD=0, HMODE=0, SPROBE=0, LIN=0, EARLY=1, PH=0, QKF=0, WARM=0).items():
        ap.add_argument("--" + k, type=int, default=d)
    ap.add_argument("--POL", default="nt")
    for k, d in (("KW", "545454"), ("VW", "554555"), ("TW", "555555")): ap.add_argument("--" + k, default=d)
    a = vars(ap.parse_args())
    out = a.pop("o")
    open(out, "w").write(gen(**a))
    print("wrote", out)
```
